```python
import torch

def _softmax(x, axis=-1):
    return torch.softmax(x, dim=axis)

def _gelu(x):
    return torch.nn.functional.gelu(x, approximate='tanh')

def _silu(x):
    return torch.nn.functional.silu(x)

def _sigmoid(x):
    return torch.sigmoid(x)

def _layernorm(x, axis=-1, eps=1e-05):
    m = x.mean(dim=axis, keepdim=True)
    v = x.var(dim=axis, keepdim=True, unbiased=False)
    return (x - m) / torch.sqrt(v + eps)

def _scatter_add(tgt, idx, src, axis=0):
    return tgt.clone().index_add_(axis, idx, src)

def _segment_sum(src, seg, n):
    out = torch.zeros((n,) + src.shape[1:], dtype=src.dtype)
    return out.index_add_(0, seg, src)

def _pad(x, pw):
    flat = tuple((v for pair in reversed(pw) for v in pair))
    return torch.nn.functional.pad(x, flat)
kernel_name = 'adaLN_cond__sliding_block_cached__glu_gated_swiglu__decode'

def setup_inputs():

    _w = lambda a: (lambda t: t.to(torch.bfloat16) if t.is_floating_point() else t)(torch.as_tensor(a))

    def _A_setup():
        B, Sq, D = (8, 1, 448)
        Hq, Hkv, Sk, Dh = (16, 8, 4096, 256)
        assert Hq % Hkv == 0, (Hq, Hkv)
        return {'x': _w((lambda *s: torch.randn(*s, dtype=torch.bfloat16) * 0.1)(B, Sq, D)), 'k_cache': _w((lambda *s: torch.randn(*s, dtype=torch.bfloat16) * 0.8)(B, Hkv, Sk, Dh)), 'v_cache': _w((lambda *s: torch.randn(*s, dtype=torch.bfloat16) * 3.2)(B, Hkv, Sk, Dh)), 'wq': _w((lambda *s: torch.randn(*s, dtype=torch.bfloat16) * 0.8)(D, Hq * Dh) * D ** (-0.5)), 'wo': _w((lambda *s: torch.randn(*s, dtype=torch.bfloat16) * 3.2)(Hq * Dh, D) * (Hq * Dh) ** (-0.5))}
    _A_in = _A_setup()

    def _B_setup():
        B, S, D, F = (8, 1, 448, 1792)
        return {'x': _w((lambda *s: torch.randn(*s, dtype=torch.bfloat16) * 0.1)(B, S, D)), 'w1': _w((lambda *s: torch.randn(*s, dtype=torch.bfloat16) * 3.2)(D, F) * (2.0 / D) ** 0.5), 'w3': _w((lambda *s: torch.randn(*s, dtype=torch.bfloat16) * 3.2)(D, F) * (2.0 / D) ** 0.5), 'w2': _w((lambda *s: torch.randn(*s, dtype=torch.bfloat16) * 3.2)(F, D) * (2.0 / F) ** 0.5)}
    _B_in = _B_setup()
    return {'A_x': _A_in['x'], 'A_k_cache': _A_in['k_cache'], 'A_v_cache': _A_in['v_cache'], 'A_wq': _A_in['wq'], 'A_wo': _A_in['wo'], 'B_x': _B_in['x'], 'B_w1': _B_in['w1'], 'B_w3': _B_in['w3'], 'B_w2': _B_in['w2'], 'c': _w((lambda *s: torch.randn(*s, dtype=torch.bfloat16) * 0.8)(8, 448) * 8.0), 'w_mod': _w((lambda *s: torch.randn(*s, dtype=torch.bfloat16) * 0.8)(448, 6 * 448) * 448 ** (-0.5) * 8.0)}

def reference(A_x, A_k_cache, A_v_cache, A_wq, A_wo, B_x, B_w1, B_w3, B_w2, c, w_mod):

    def _A_ref(x, k_cache, v_cache, wq, wo):
        B, Sq, D = x.shape
        Hq, Dh = (16, 256)
        Hkv, Sk = (k_cache.shape[1], k_cache.shape[2])
        W = min(4096, max(256, Sk // 4))
        rep = Hq // Hkv
        q = (lambda x, *d: x.permute(*d))((x @ wq).reshape(B, Sq, Hq, Dh), 0, 2, 1, 3)
        k = (lambda x, n, axis: torch.repeat_interleave(x, n, dim=axis))(k_cache[:, :, Sk - W:, :], rep, axis=1)
        v = (lambda x, n, axis: torch.repeat_interleave(x, n, dim=axis))(v_cache[:, :, Sk - W:, :], rep, axis=1)
        scores = torch.einsum('bhqd,bhkd->bhqk', q, k) * Dh ** (-0.5)
        p = _softmax(scores, axis=-1)
        o = torch.einsum('bhqk,bhkd->bhqd', p, v)
        return (lambda x, *d: x.permute(*d))(o, 0, 2, 1, 3).reshape(B, Sq, Hq * Dh) @ wo

    def _B_ref(x, w1, w3, w2):
        gate = torch.einsum('bsd,df->bsf', x, w1)
        up = torch.einsum('bsd,df->bsf', x, w3)
        h = _silu(gate) * up
        out = torch.einsum('bsf,fd->bsd', h, w2)
        return out
    x = A_x
    mod = (_silu(c) @ w_mod).reshape(c.shape[0], 6, 1, -1)
    sa, ca, ga, sb, cb, gb = (mod[:, 0].clone(), mod[:, 1].clone(), mod[:, 2].clone(), mod[:, 3].clone(), mod[:, 4].clone(), mod[:, 5].clone())
    h = _layernorm(x, axis=-1) * (1 + ca) + sa
    x = x + ga * _A_ref(h, A_k_cache, A_v_cache, A_wq, A_wo)
    h = _layernorm(x, axis=-1) * (1 + cb) + sb
    x = x + gb * _B_ref(h, B_w1, B_w3, B_w2)
    return x
```

```python
KNAME = "adaLN_cond__sliding_block_cached__glu_gated_swiglu__decode"
HEADER = open("cdna_kernels/%s.s.ref" % KNAME).read().split("; Override launch")[0]

class Asm:
    def __init__(self):
        self.l = []
    def __call__(self, s):
        for line in s.strip("\n").split("\n"):
            self.l.append(line if line.strip().endswith(":") else "    " + line.strip())
    def text(self):
        return "\n".join(self.l) + "\n"

def kernel_text(name, body, vgpr, sgpr=102, accum=None):
    if accum is None:
        accum = min(256, (vgpr + 3) // 4 * 4)
    return f""".text
.globl {name}
.p2align 8
.type {name},@function
{name}:
{body}
.section .rodata,"a"
.p2align 6
.amdhsa_kernel {name}
  .amdhsa_next_free_vgpr {vgpr}
  .amdhsa_next_free_sgpr {sgpr}
  .amdhsa_accum_offset {accum}
  .amdhsa_group_segment_fixed_size 0
  .amdhsa_kernarg_size 112
  .amdhsa_user_sgpr_count 2
  .amdhsa_user_sgpr_kernarg_segment_ptr 1
  .amdhsa_system_sgpr_workgroup_id_x 1
.end_amdhsa_kernel
"""

def file_text(launch_lines, kernels):
    return HEADER + "\n".join(launch_lines) + "\n" + '.amdgcn_target "amdgcn-amd-amdhsa--gfx950"\n' + "\n".join(kernels)
```

```python
import re

TRANS = ("v_exp_f32", "v_log_f32", "v_rcp_f32", "v_rsq_f32", "v_sqrt_f32", "v_sin_f32", "v_cos_f32")
_REG = re.compile(r"^(-|\|)?(abs\()?([vsa])(\d+|\[(\d+):(\d+)\])\)?\|?$")

def regs_of(tok):
    tok = tok.strip()
    if tok in ("vcc",): return {"vcc"}
    if tok in ("vcc_lo", "vcc_hi"): return {"vcc"}
    if tok in ("exec", "exec_lo", "exec_hi"): return {"exec"}
    if tok == "m0": return {"m0"}
    m = _REG.match(tok)
    if not m: return set()
    c = m.group(3)
    if m.group(5) is not None:
        return {f"{c}{i}" for i in range(int(m.group(5)), int(m.group(6)) + 1)}
    return {f"{c}{m.group(4)}"}

class Ins:
    __slots__ = ("text", "op", "cls", "w", "r", "ws", "dpp", "ops", "cregs", "abregs", "lds", "wide_store", "lanesel")
    def __init__(self, text):
        self.text = text
        t = text.split(";")[0].strip()
        parts = t.split(None, 1)
        op = parts[0]
        rest = parts[1] if len(parts) > 1 else ""
        rest = re.sub(r"quad_perm:\[[^\]]*\]", "quad_perm:X", rest)
        rest = re.sub(r"hwreg\([^)]*\)", "hwregX", rest)
        for suf in ("_e32", "_e64", "_dpp", "_sdwa"):
            if op.endswith(suf): op = op[:-len(suf)]
        self.op = op
        toks = [x.strip() for x in rest.split(",")] if rest else []
        mods = ""
        if toks:
            last = toks[-1].split(None, 1)
            toks[-1] = last[0]
            mods = last[1] if len(last) > 1 else ""
        self.ops = toks
        self.dpp = bool(re.search(r"row_|quad_perm|wave_", rest))
        self.ws = 1
        self.w = set(); self.r = set(); self.cregs = set(); self.abregs = set()
        self.lds = False; self.wide_store = set(); self.lanesel = set()
        R = [regs_of(x) for x in toks]
        if op == "s_nop":
            self.cls = "salu"; self.ws = int(toks[0], 0) + 1
        elif op.startswith("v_mfma"):
            self.cls = "mfma"; self.w = R[0]; self.abregs = R[1] | R[2]; self.cregs = R[3]; self.r = R[1] | R[2] | R[3]
        elif op.startswith("v_"):
            self.cls = "valu"
            if op.startswith("v_cmp"):
                self.w = R[0]; self.r = set().union(*R[1:])
            elif op in ("v_add_co_u32", "v_sub_co_u32", "v_addc_co_u32", "v_subb_co_u32"):
                self.w = R[0] | R[1]; self.r = set().union(*R[2:])
            elif op.startswith("v_permlane") and "swap" in op:
                self.w = R[0] | R[1]; self.r = R[0] | R[1]
            else:
                self.w = R[0]; self.r = set().union(*R[1:]) if len(R) > 1 else set()
                if op in ("v_fmac_f32", "v_dot2c_f32_bf16", "v_writelane_b32") or self.dpp: self.r |= R[0]
                if op in ("v_readlane_b32", "v_writelane_b32"): self.lanesel = R[2]
        elif op.startswith("buffer_") or op.startswith("global_"):
            self.cls = "vmem"
            self.lds = bool(re.search(r"\blds\b", mods)) or "_lds_" in op
            if op in ("buffer_wbl2", "buffer_inv"): pass
            elif self.lds: self.r = set().union(*R) | {"m0"}
            elif "_load" in op: self.w = R[0]; self.r = set().union(*R[1:])
            else:
                self.r = set().union(*R)
                if "x4" in op or "x3" in op:
                    self.wide_store = R[0] if op.startswith("buffer_") else R[1]
                if "atomic" in op and "sc0" in mods: self.w = R[0]
        elif op.startswith("ds_"):
            self.cls = "ds"
            if op.startswith("ds_read") or "permute" in op or "swizzle" in op or "rtn" in op:
                self.w = R[0]; self.r = set().union(*R[1:])
            else:
                self.r = set().union(*R)
        elif op.startswith("s_load") or op.startswith("s_buffer_load") or op.startswith("s_mem"):
            self.cls = "smem"; self.w = R[0]; self.r = set().union(*R[1:]) if len(R) > 1 else set()
        elif op.startswith("s_"):
            self.cls = "salu"
            if op.startswith("s_cmp") or op.startswith("s_cbranch") or op in ("s_branch", "s_waitcnt", "s_barrier", "s_sleep", "s_setprio", "s_endpgm", "s_bitcmp1_b32", "s_bitcmp0_b32"):
                self.r = set().union(*R) if R else set()
            else:
                self.w = R[0] if R else set(); self.r = set().union(*R[1:]) if len(R) > 1 else set()
                if "saveexec" in op: self.w |= {"exec"}
        else:
            raise ValueError("unknown instr: " + text)
        if self.cls == "valu" and op == "v_cndmask_b32" and len(toks) == 3: self.r |= {"vcc"}

def need(p, c):
    n = 0
    pv = {x for x in p.w if x[0] in "va" and x != "vcc"}
    ps = {x for x in p.w if x[0] == "s" or x == "vcc"}
    if p.cls == "valu":
        if c.cls == "mfma" and pv & c.r: n = max(n, 2)
        if c.cls == "valu":
            if ps & c.r: n = max(n, 2)
            if ps & c.lanesel: n = max(n, 4)
            if c.dpp and pv & c.r: n = max(n, 2)
            if c.op in ("v_readlane_b32", "v_readfirstlane_b32") and pv & c.r: n = max(n, 1)
            if c.op.startswith("v_permlane") and pv & c.r: n = max(n, 2)
            if p.op in TRANS and pv & c.r: n = max(n, 1)
        if c.cls == "vmem" and ps & c.r: n = max(n, 5)
        if c.cls in ("salu", "smem") and ps & c.r: n = max(n, 1)
        if p.op in TRANS and c.cls in ("vmem", "ds") and pv & c.r: n = max(n, 1)
    if p.cls == "mfma":
        big = "32x32" in p.op
        if c.cls == "mfma":
            if p.w & c.abregs: n = max(n, 12 if big else 8)
            if p.w & c.cregs and p.w != c.cregs: n = max(n, 10 if big else 6)
            if p.w & c.w and p.w != c.cregs: n = max(n, 10 if big else 6)
        elif c.cls in ("valu", "vmem", "ds"):
            if p.w & (c.r | c.w): n = max(n, 12 if big else 8)
            if c.cls == "valu" and p.cregs & c.w: n = max(n, 7 if big else 3)
    if p.cls == "salu" and "m0" in p.w and c.cls == "vmem" and c.lds: n = max(n, 1)
    if p.wide_store and p.wide_store & c.w: n = max(n, 2)
    return n

class K:
    def __init__(self):
        self.out = []
        self.hist = [[]]
        self.pending = {}
        self.labels = {}
        self.uid = 0
    def _req(self, hist, c):
        d = 0; n = 0
        for p in reversed(hist):
            n = max(n, need(p, c) - d)
            d += p.ws
            if d >= 13: break
        return n
    def _push(self, ins):
        self.out.append(("i", ins))
        for h in self.hist:
            h.append(ins)
            if len(h) > 14: del h[0]
        u = []
        for h in self.hist:
            if not any(len(h) == len(g) and all(a is b for a, b in zip(h, g)) for g in u): u.append(h)
        self.hist = u
    def nop(self, n):
        while n > 0:
            k = min(n, 16)
            self._push(Ins(f"s_nop {k-1}")); n -= k
    def i(self, text):
        for line in text.strip("\n").split("\n"):
            s = line.strip()
            if not s or s.startswith(";"):
                if s: self.out.append(("t", "    " + s))
                continue
            if s.endswith(":"):
                self.label(s[:-1]); continue
            if s.startswith("."):
                self.out.append(("t", s)); continue
            c = Ins(s)
            n = max([self._req(h, c) for h in self.hist] + [0])
            if n > 0: self.nop(n)
            if c.op.startswith("s_cbranch") or c.op == "s_branch":
                tgt = c.ops[0]
                if tgt in self.labels:
                    extra = 0
                    for h in self.hist:
                        hh = list(h) + [c]
                        idx = self.labels[tgt]; d = 0
                        while idx < len(self.out) and d < 13:
                            k, o = self.out[idx]; idx += 1
                            if k != "i": continue
                            extra = max(extra, self._req(hh, o))
                            hh.append(o); d += o.ws
                    if extra > 0: self.nop(extra)
                    self._push(c)
                else:
                    self._push(c)
                    self.pending.setdefault(tgt, []).extend([list(h) for h in self.hist])
                if c.op == "s_branch": self.hist = []
            else:
                self._push(c)
                if c.op == "s_endpgm": self.hist = []
    __call__ = i
    def label(self, name):
        assert name not in self.labels, name
        self.labels[name] = len(self.out)
        self.out.append(("l", name))
        self.hist = self.hist + self.pending.pop(name, [])
        if not self.hist: self.hist = [[]]
    def newlabel(self, p="L"):
        self.uid += 1
        return f"{p}_{self.uid}"
    def text(self):
        assert not self.pending, self.pending.keys()
        r = []
        for k, o in self.out:
            if k == "i": r.append("    " + o.text)
            elif k == "l": r.append(o + ":")
            else: r.append(o)
        return "\n".join(r) + "\n"
```

```python
import sys
from emit import K
from asmlib import KNAME, kernel_text, file_text

WS_H = 0x0000
WS_CLR = 0x10000
WS_Q = 0x10000
WS_S = 0x20000
WS_M = 0x60000
WS_PA = 0x68000
WS_PB = 0xD8000
WS_DBG = 0x200000
WS_BYTES = 0x20000000
L_FLAG = 0
F_SC, F_EARLY, F_GO, F_WO, F_WOR, F_CLR, F_P = 0, 4, 8, 12, 16, 20, 32
L_G = 64
L_GB = 192
L_OACC = 256
L_YACC = 768
L_H2 = 2560
L_MOD = 3456
L_P = 7168
L_X1 = L_P
L_BIG = 11264
L_W1 = L_BIG
L_W3 = L_BIG + 50176 + 128
L_W2 = L_BIG + 100480
L_WO = L_BIG
L_SC = 113536
L_WQ = L_SC + 7168
L_WM0 = L_WQ + 14336
L_WM1 = L_WM0 + 14336
LDS_BYTES = 163840
assert L_WM1 + 14336 <= LDS_BYTES and L_W2 + 56 * 928 <= LDS_BYTES
LOG2E = 1.4426950408889634
import struct
def f32(x): return "0x%08x" % struct.unpack("<I", struct.pack("<f", x))[0]

P_X, P_K, P_V, P_WQ, P_WO, P_W1, P_W3, P_W2, P_C, P_WM, P_OUT, P_DBG, P_WS = 4, 6, 8, 10, 12, 16, 18, 20, 22, 24, 26, 28, 30
SRD_WS = 32
sKVH, sSP, sB, sSIG, sW, sJ, sBUD = 36, 37, 38, 39, 40, 41, 42
sT0, sT1, sT2, sT3, sT4 = 43, 44, 45, 46, 47
SRD_A, SRD_B, SRD_C = 48, 52, 56
sM1, sM2, sM3, sMH = 60, 62, 64, 66
sPEND = 68
sWAVE = 3
sSTAMP = 70
BUDGET = 400000

def gen(debug=False, opts=None):
    o = dict(nt_w="nt", first=8)
    if opts: o.update(opts)
    NTW = o["nt_w"]
    k = K()
    def srd(dst, ptr, nbytes):
        k(f"s_mov_b32 s{dst}, s{ptr}\ns_and_b32 s{dst+1}, s{ptr+1}, 0xffff\ns_mov_b32 s{dst+2}, {nbytes}\ns_mov_b32 s{dst+3}, 0x20000")
    def S(r): return f"s[{r}:{r+3}]"
    def V(r, n=4): return f"v[{r}:{r+n-1}]"
    def stamp(i):
        if debug:
            k(f"s_memrealtime s[{sSTAMP+2*i}:{sSTAMP+2*i+1}]\ns_waitcnt lgkmcnt(0)")
    def budget_loop(L):
        k(f"s_add_u32 s{sBUD}, s{sBUD}, 1\ns_cmp_lt_u32 s{sBUD}, {BUDGET}\ns_cbranch_scc1 {L}")
    def lds_wait(flag, val, vz, vt, sleep=1):
        L = k.newlabel("LW"); D = k.newlabel("LD")
        k(f"{L}:")
        k(f"ds_read_b32 v{vt}, v{vz} offset:{L_FLAG+flag}\ns_waitcnt lgkmcnt(0)\nv_readfirstlane_b32 s{sT4}, v{vt}")
        k(f"s_cmp_ge_u32 s{sT4}, {val}\ns_cbranch_scc1 {D}\ns_sleep {sleep}")
        budget_loop(L)
        k(f"{D}:")
    def lds_signal(flag, vz, vone):
        k(f"s_mov_b64 exec, 1\nds_add_u32 v{vz}, v{vone} offset:{L_FLAG+flag}\ns_mov_b64 exec, -1")
    def wave_red(op, v, sdst):
        ins = {"add": "v_add_f32_dpp", "max": "v_max_f32_dpp"}[op]
        bc = " bound_ctrl:0" if op == "add" else ""
        for sh in (1, 2, 4, 8):
            k(f"{ins} v{v}, v{v}, v{v} row_shr:{sh} row_mask:0xf bank_mask:0xf{bc}")
        k(f"{ins} v{v}, v{v}, v{v} row_bcast:15 row_mask:0xa bank_mask:0xf")
        k(f"{ins} v{v}, v{v}, v{v} row_bcast:31 row_mask:0xc bank_mask:0xf")
        k(f"v_readlane_b32 s{sdst}, v{v}, 63")
    def wave_red2(op, va, sa, vb, sb):
        ins = {"add": "v_add_f32_dpp", "max": "v_max_f32_dpp"}[op]
        bc = " bound_ctrl:0" if op == "add" else ""
        for m in [f"row_shr:{sh} row_mask:0xf bank_mask:0xf{bc}" for sh in (1, 2, 4, 8)] + ["row_bcast:15 row_mask:0xa bank_mask:0xf", "row_bcast:31 row_mask:0xc bank_mask:0xf"]:
            k(f"{ins} v{va}, v{va}, v{va} {m}")
            k(f"{ins} v{vb}, v{vb}, v{vb} {m}")
        k(f"v_readlane_b32 s{sa}, v{va}, 63\nv_readlane_b32 s{sb}, v{vb}, 63")
    def unpack(dlo, dhi, src):
        k(f"v_lshlrev_b32 v{dlo}, 16, v{src}\nv_and_b32 v{dhi}, 0xffff0000, v{src}")
    def round2(a, b, t):
        k(f"v_cvt_pk_bf16_f32 v{t}, v{a}, v{b}")
        unpack(a, b, t)
    MF = "v_mfma_f32_16x16x32_bf16"
    vL, vG, vN, vZ, vONE = 0, 1, 2, 3, 4

    k(f"""
s_cmp_ge_u32 s2, 256
s_cbranch_scc1 L_END
s_load_dwordx16 s[4:19], s[0:1], 0
s_load_dwordx8 s[20:27], s[0:1], 64
s_load_dwordx4 s[28:31], s[0:1], 96
v_lshrrev_b32 v1, 6, v0
v_readfirstlane_b32 s{sWAVE}, v1
v_and_b32 v{vL}, 63, v0
s_and_b32 s{sKVH}, s2, 7
s_bfe_u32 s{sSP}, s2, 0x20003
s_lshr_b32 s{sB}, s2, 5
s_lshl_b32 s{sSIG}, s{sB}, 3
s_add_u32 s{sSIG}, s{sSIG}, s{sKVH}
s_and_b32 s{sJ}, s2, 31
s_and_b32 s{sW}, s{sWAVE}, 3
s_mov_b32 s{sBUD}, 0
v_lshrrev_b32 v{vG}, 4, v{vL}
v_and_b32 v{vN}, 15, v{vL}
v_mov_b32 v{vZ}, 0
v_mov_b32 v{vONE}, 1
v_cmp_eq_u32 s[{sM1}:{sM1+1}], 1, v{vG}
v_cmp_eq_u32 s[{sM2}:{sM2+1}], 2, v{vG}
v_cmp_eq_u32 s[{sM3}:{sM3+1}], 3, v{vG}
v_cmp_lt_u32 s[{sMH}:{sMH+1}], 31, v{vL}
s_lshl_b32 s{sT0}, s{sSIG}, 21
s_add_u32 s{sT0}, s{sT0}, {3072*512}
s_waitcnt lgkmcnt(0)
""")
    if debug:
        for i in range(16): k(f"s_mov_b32 s{sSTAMP+2*i}, 0")
    stamp(0)
    srd(SRD_WS, P_WS, WS_BYTES)
    k(f"s_cmp_ge_u32 s{sWAVE}, 4\ns_cbranch_scc1 L_VROLE")

    KB, QF, ACC = 16, 144, 176
    k("s_setprio 1")
    srd(SRD_A, P_K, 0x8000000)
    k(f"""
v_lshlrev_b32 v5, 9, v{vN}
v_lshl_add_u32 v5, v{vG}, 4, v5            ; n*512 + g*16
s_lshl_b32 s{sT1}, s{sSP}, 17
s_add_u32 s{sT0}, s{sT0}, s{sT1}
s_lshl_b32 s{sT1}, s{sW}, 15
s_add_u32 s{sT0}, s{sT0}, s{sT1}
""")
    n = 0
    for tl in range(4):
        if tl: k(f"s_add_u32 s{sT0}, s{sT0}, 8192")
        for i in range(8):
            k(f"buffer_load_dwordx4 {V(KB+(tl*8+i)*4)}, v5, {S(SRD_A)}, s{sT0} offen offset:{i*64} nt")
            n += 1
            if n == o["first"]: k("s_barrier")
    stamp(1)
    lds_wait(F_EARLY, 2, vZ, 6)
    srd(SRD_B, P_WO, 4096 * 896)
    k(f"""
v_lshlrev_b32 v6, 4, v{vL}
s_lshl_b32 s{sT0}, s{sKVH}, 9
s_lshr_b32 s{sT1}, s{sW}, 1
s_lshl_b32 s{sT1}, s{sT1}, 8
s_add_u32 s{sT0}, s{sT0}, s{sT1}
s_lshl_b32 s{sT1}, s{sSP}, 6
s_add_u32 s{sT0}, s{sT0}, s{sT1}
s_and_b32 s{sT1}, s{sW}, 1
s_lshl_b32 s{sT1}, s{sT1}, 5
s_add_u32 s{sT0}, s{sT0}, s{sT1}           ; first global wo row of this wave
s_mul_i32 s{sT0}, s{sT0}, 896
s_mul_i32 s{sT1}, s{sW}, {32*928}
s_add_u32 s{sT1}, s{sT1}, {L_WO}
s_mov_b32 exec_hi, 0x00ffffff
""")
    for r in range(32):
        k(f"s_mov_b32 m0, s{sT1}\nbuffer_load_dwordx4 v6, {S(SRD_B)}, s{sT0} offen {NTW} lds")
        if r < 31: k(f"s_add_u32 s{sT0}, s{sT0}, 896\ns_add_u32 s{sT1}, s{sT1}, 928")
    k("s_mov_b64 exec, -1")
    stamp(2)
    lds_wait(F_GO, 1, vZ, 6)
    k("s_setprio 3")
    k(f"""
v_and_b32 v6, 1, v{vN}
v_lshlrev_b32 v6, 9, v6
v_lshl_add_u32 v6, v{vG}, 4, v6            ; (m&1)*512 + g*16
s_lshl_b32 s{sT0}, s{sKVH}, 3
s_add_u32 s{sT0}, s{sT0}, s{sB}
s_lshl_b32 s{sT0}, s{sT0}, 10
s_add_u32 s{sT0}, s{sT0}, {WS_Q}
L_QPOLL:
""")
    for i in range(8):
        k(f"buffer_load_dwordx4 {V(QF+4*i)}, v6, {S(SRD_WS)}, s{sT0} offen offset:{i*64} sc1")
    k("s_waitcnt vmcnt(0)")
    k(f"v_max3_u32 v7, v{QF}, v{QF+1}, v{QF+2}")
    for r in range(QF + 3, QF + 31, 2): k(f"v_max3_u32 v7, v7, v{r}, v{r+1}")
    k(f"v_max_u32 v7, v7, v{QF+31}")
    k("v_cmp_eq_u32 vcc, -1, v7\ns_cbranch_vccz L_QOK")
    budget_loop("L_QPOLL")
    k("L_QOK:")
    stamp(3)
    lds_signal(F_WO, vZ, vONE)
    for tl in range(4):
        for i in range(8):
            c = "0" if i == 0 else V(ACC + 4 * tl)
            k(f"{MF} {V(ACC+4*tl)}, {V(QF+4*i)}, {V(KB+(tl*8+i)*4)}, {c}")
    k(f"""
s_lshl_b32 s{sT0}, s{sSIG}, 12
s_add_u32 s{sT0}, s{sT0}, {WS_S}
s_lshl_b32 s{sT1}, s{sSP}, 10
s_lshl_b32 s{sT2}, s{sW}, 8
s_add_u32 s{sT1}, s{sT1}, s{sT2}
s_add_u32 s{sT1}, s{sT1}, s{sT0}
v_lshlrev_b32 v6, 2, v{vL}
""")
    for h in range(2):
        k(f"v_cndmask_b32 v{8+h}, v{ACC+h}, v{ACC+4+h}, s[{sM1}:{sM1+1}]")
        k(f"v_cndmask_b32 v{8+h}, v{8+h}, v{ACC+8+h}, s[{sM2}:{sM2+1}]")
        k(f"v_cndmask_b32 v{8+h}, v{8+h}, v{ACC+12+h}, s[{sM3}:{sM3+1}]")
    k(f"""
v_cvt_pk_bf16_f32 v8, v8, v9
v_min_u32 v8, -2, v8
buffer_store_dword v8, v6, {S(SRD_WS)}, s{sT1} offen sc1
""")
    stamp(4)
    SV, E = 176, 192
    k(f"v_lshlrev_b32 v6, 4, v{vL}")
    k("L_SPOLL:")
    for e in range(4):
        k(f"s_add_u32 s{sT1}, s{sW}, {e}\ns_and_b32 s{sT1}, s{sT1}, 3\ns_lshl_b32 s{sT1}, s{sT1}, 10\ns_add_u32 s{sT1}, s{sT1}, s{sT0}")
        k(f"buffer_load_dwordx4 {V(SV+4*e)}, v6, {S(SRD_WS)}, s{sT1} offen sc1")
    k("s_waitcnt vmcnt(0)")
    k(f"v_max3_u32 v7, v{SV}, v{SV+1}, v{SV+2}")
    for r in range(SV + 3, SV + 15, 2): k(f"v_max3_u32 v7, v7, v{r}, v{r+1}")
    k(f"v_max_u32 v7, v7, v{SV+15}")
    k("v_cmp_eq_u32 vcc, -1, v7\ns_cbranch_vccz L_SOK")
    budget_loop("L_SPOLL")
    k("L_SOK:")
    stamp(5)
    for r in range(16): unpack(E + r, E + 16 + r, SV + r)
    for h in range(2):
        b0 = E + 16 * h
        k(f"v_max3_f32 v{8+h}, v{b0}, v{b0+1}, v{b0+2}")
        for r in range(3, 15, 2): k(f"v_max3_f32 v{8+h}, v{8+h}, v{b0+r}, v{b0+r+1}")
        k(f"v_max_f32 v{8+h}, v{8+h}, v{b0+15}")
    wave_red2("max", 8, sT1, 9, sT2)
    k(f"s_mov_b32 s{sT3}, {f32(0.0625*LOG2E)}")
    for h in range(2):
        for r in range(16):
            x = E + 16 * h + r
            k(f"v_subrev_f32 v{x}, s{sT1+h}, v{x}\nv_mul_f32 v{x}, s{sT3}, v{x}\nv_exp_f32 v{x}, v{x}")
    for h in range(2):
        b0 = E + 16 * h
        k(f"v_add_f32 v{8+h}, v{b0}, v{b0+1}")
        for r in range(2, 16): k(f"v_add_f32 v{8+h}, v{8+h}, v{b0+r}")
    wave_red2("add", 8, sT1, 9, sT2)
    k(f"""
v_rcp_f32 v8, s{sT1}
v_rcp_f32 v9, s{sT2}
v_lshrrev_b32 v10, 4, v{vL}
v_lshlrev_b32 v10, 8, v10                  ; T'*256
v_and_b32 v11, 1, v{vL}
v_lshl_add_u32 v10, v11, 5, v10
v_bfe_u32 v11, v{vL}, 1, 3
v_lshl_add_u32 v10, v11, 1, v10
s_lshl_b32 s{sT1}, s{sW}, 10
v_add_u32 v10, s{sT1}, v10
""")
    for e in range(4):
        k(f"v_mul_f32 v{E+e}, v{E+e}, v8\nv_mul_f32 v{E+16+e}, v{E+16+e}, v9\nv_cvt_pk_bf16_f32 v{E+e}, v{E+e}, v{E+16+e}")
        k(f"ds_write_b16 v10, v{E+e} offset:{L_P + ((0*2+(e&1))*4+(e>>1))*16}")
        k(f"ds_write_b16_d16_hi v10, v{E+e} offset:{L_P + ((1*2+(e&1))*4+(e>>1))*16}")
    k(f"s_waitcnt lgkmcnt(0)\ns_lshl_b32 s{sT1}, s{sW}, 2\nv_mov_b32 v10, s{sT1}")
    lds_signal(F_P, 10, vONE)
    stamp(6)
    WOF = 16
    lds_wait(F_WO, 4, vZ, 6)
    k(f"""
v_bfe_u32 v6, v{vL}, 2, 2
v_lshl_add_u32 v6, v{vG}, 2, v6            ; 4g + r
v_mul_u32_u24 v5, 928, v6
v_and_b32 v7, 3, v{vL}
v_lshl_add_u32 v5, v7, 3, v5               ; + c*8
s_mul_i32 s{sT1}, s{sW}, 224
s_add_u32 s{sT1}, s{sT1}, {L_WO}
v_add_u32 v6, s{sT1}, v5
v_add_u32 v7, {2*29696}, v6
""")
    cnt = 0
    for T in range(4):
        for nb in range(7):
            r = WOF + (T * 7 + nb) * 4
            base = 6 if T < 2 else 7
            off = (T & 1) * 29696 + nb * 32
            k(f"ds_read_b64_tr_b16 {V(r,2)}, v{base} offset:{off}\nds_read_b64_tr_b16 {V(r+2,2)}, v{base} offset:{off+14848}")
        k("s_waitcnt lgkmcnt(0)")
    lds_signal(F_WOR, vZ, vONE)
    k(f"s_cmp_lg_u32 s{sW}, 3\ns_cbranch_scc1 L_NOMOD")
    MV = 192
    srd(SRD_C, P_X, 7168)
    k(f"""
v_lshlrev_b32 v6, 4, v{vL}
s_mul_i32 s{sT1}, s{sB}, 896
s_lshl_b32 s{sT0}, s{sB}, 12
s_add_u32 s{sT0}, s{sT0}, {WS_M}
s_mov_b32 exec_hi, 0x00ffffff
buffer_load_dwordx4 {V(MV+16)}, v6, {S(SRD_C)}, s{sT1} offen
L_MPOLL:
""")
    for e in range(4):
        k(f"buffer_load_dwordx4 {V(MV+4*e)}, v6, {S(SRD_WS)}, s{sT0} offen offset:{e*896} sc1")
    k("s_waitcnt vmcnt(0)")
    k(f"v_max3_u32 v7, v{MV}, v{MV+1}, v{MV+2}")
    for r in range(MV + 3, MV + 15, 2): k(f"v_max3_u32 v7, v7, v{r}, v{r+1}")
    k(f"v_max_u32 v7, v7, v{MV+15}")
    k("v_cmp_eq_u32 vcc, -1, v7\ns_cbranch_vccz L_MOK")
    budget_loop("L_MPOLL")
    k("L_MOK:")
    for r in range(4):
        unpack(8, 9, MV + 8 + r)
        k(f"v_add_f32 v8, 1.0, v8\nv_add_f32 v9, 1.0, v9\nv_cvt_pk_bf16_f32 v{MV+8+r}, v8, v9")
    k(f"""
ds_write_b128 v6, {V(MV+16)} offset:{L_MOD}
ds_write_b128 v6, {V(MV)} offset:{L_MOD+896}
ds_write_b128 v6, {V(MV+8)} offset:{L_MOD+2*896}
ds_write_b128 v6, {V(MV+4)} offset:{L_MOD+3*896}
v_lshrrev_b32 v7, 1, v{vL}
v_cmp_eq_u32 vcc, s{sJ}, v7
v_and_b32 v7, 1, v{vL}
v_lshlrev_b32 v7, 4, v7
s_and_b64 exec, exec, vcc
ds_write_b128 v7, {V(MV+12)} offset:{L_GB}
s_mov_b64 exec, -1
L_NOMOD:
""")
    lds_wait(F_WOR, 4, vZ, 6)
    k("s_setprio 1")
    srd(SRD_A, P_W1, 448 * 3584); srd(SRD_B, P_W3, 448 * 3584); srd(SRD_C, P_W2, 1792 * 896)
    k(f"""
v_mul_u32_u24 v6, 37, v{vL}
v_lshrrev_b32 v6, 8, v6                    ; l/7 (l<64)
v_mul_u32_u24 v7, 7, v6
v_sub_u32 v7, v{vL}, v7                    ; l%7
v_mul_u32_u24 v6, 3584, v6
v_lshl_add_u32 v6, v7, 4, v6
v_lshlrev_b32 v7, 4, v{vL}
s_lshl_b32 s{sT2}, s{sKVH}, 2
s_add_u32 s{sT2}, s{sT2}, s{sSP}           ; f
s_mul_i32 s{sT0}, s{sT2}, 112
s_mul_i32 s{sT1}, s{sW}, {14*8*3584}
s_add_u32 s{sT0}, s{sT0}, s{sT1}
s_mul_i32 s{sT1}, s{sW}, {14*896}
s_add_u32 s{sT1}, s{sT1}, {L_W1}
s_mov_b32 exec_hi, 0x00ffffff
""")
    for it in range(14):
        k(f"s_mov_b32 m0, s{sT1}\nbuffer_load_dwordx4 v6, {S(SRD_A)}, s{sT0} offen {NTW} lds")
        k(f"s_add_u32 s{sT3}, s{sT1}, {L_W3-L_W1}\ns_mov_b32 m0, s{sT3}\nbuffer_load_dwordx4 v6, {S(SRD_B)}, s{sT0} offen {NTW} lds")
        if it < 13: k(f"s_add_u32 s{sT0}, s{sT0}, {8*3584}\ns_add_u32 s{sT1}, s{sT1}, 896")
    k(f"""
s_mul_i32 s{sT0}, s{sT2}, 56
s_mul_i32 s{sT1}, s{sW}, 14
s_add_u32 s{sT0}, s{sT0}, s{sT1}
s_mul_i32 s{sT0}, s{sT0}, 896
s_mul_i32 s{sT1}, s{sT1}, 928
s_add_u32 s{sT1}, s{sT1}, {L_W2}
""")
    for it in range(14):
        k(f"s_mov_b32 m0, s{sT1}\nbuffer_load_dwordx4 v7, {S(SRD_C)}, s{sT0} offen {NTW} lds")
        if it < 13: k(f"s_add_u32 s{sT0}, s{sT0}, 896\ns_add_u32 s{sT1}, s{sT1}, 928")
    k("s_mov_b64 exec, -1")
    stamp(7)
    k(f"""
v_lshlrev_b32 v6, 4, v{vG}                 ; o fragment address: g*16 bytes (4 floats)
s_mul_i32 s{sT0}, s{sB}, 57344
s_mul_i32 s{sT1}, s{sJ}, 1792
s_add_u32 s{sT0}, s{sT0}, s{sT1}
s_mul_i32 s{sT1}, s{sW}, 448
s_add_u32 s{sT0}, s{sT0}, s{sT1}
s_add_u32 s{sT0}, s{sT0}, {WS_PA}
v_lshlrev_b32 v7, 2, v{vL}
s_waitcnt vmcnt(0) lgkmcnt(0)
s_setprio 3
""")
    stamp(8)
    k("s_barrier            ; B1")
    OF, OA, WACC = 128, 160, 176
    for T in range(4):
        k(f"ds_read_b128 {V(OF+8*T)}, v6 offset:{L_OACC+T*128}\nds_read_b128 {V(OF+8*T+4)}, v6 offset:{L_OACC+T*128+64}")
    for T in range(4):
        k(f"s_waitcnt lgkmcnt({6-2*T})")
        for q in range(4): k(f"v_cvt_pk_bf16_f32 v{OA+4*T+q}, v{OF+8*T+2*q}, v{OF+8*T+2*q+1}")
        for nb in range(7):
            c = "0" if T == 0 else V(WACC + 4 * nb)
            k(f"{MF} {V(WACC+4*nb)}, {V(OA+4*T)}, {V(WOF+(T*7+nb)*4)}, {c}")
    k(f"""
v_cndmask_b32 v8, v{WACC}, v{WACC+4}, s[{sM1}:{sM1+1}]
v_cndmask_b32 v8, v8, v{WACC+8}, s[{sM2}:{sM2+1}]
v_cndmask_b32 v8, v8, v{WACC+12}, s[{sM3}:{sM3+1}]
v_min_u32 v8, -2, v8
buffer_store_dword v8, v7, {S(SRD_WS)}, s{sT0} offen sc1
v_cndmask_b32 v9, v{WACC+16}, v{WACC+20}, s[{sM1}:{sM1+1}]
v_cndmask_b32 v9, v9, v{WACC+24}, s[{sM2}:{sM2+1}]
v_min_u32 v9, -2, v9
s_mov_b32 exec_hi, 0x0000ffff
buffer_store_dword v9, v7, {S(SRD_WS)}, s{sT0} offen offset:256 sc1
s_mov_b64 exec, -1
""")
    stamp(9)
    k("s_branch L_TAIL")

    k("L_VROLE:")
    k("s_setprio 3")
    k(f"""
s_mov_b32 s{sPEND}, s{sT0}
v_lshlrev_b32 v5, 6, s{sW}
v_add_u32 v5, v5, v{vL}                    ; tv 0..255
v_lshlrev_b32 v6, 4, v5                    ; tv*16
v_mov_b32 v8, 0
v_mov_b32 v9, 0
v_mov_b32 v10, 0
v_mov_b32 v11, 0
v_cmp_gt_u32 vcc, 160, v5
s_and_b64 exec, exec, vcc
ds_write_b128 v6, v[8:11]
s_mov_b64 exec, -1
""")
    CV, XR, XC = 16, 24, 32
    k(f"s_cmp_ge_u32 s{sSIG}, 35\ns_cbranch_scc1 L_NOC")
    srd(SRD_A, P_C, 7168)
    k(f"""
s_mov_b32 s{sT1}, 4096
buffer_load_dwordx4 {V(CV)}, v6, {S(SRD_A)}, 0 offen
buffer_load_dwordx4 {V(CV+4)}, v6, {S(SRD_A)}, s{sT1} offen
""")
    k(f"s_cmp_ge_u32 s{sSIG}, 7\ns_cbranch_scc1 L_NOX")
    srd(SRD_B, P_X, 7168)
    k(f"""
v_lshlrev_b32 v7, 4, v{vL}
s_mul_i32 s{sT1}, s{sW}, 1792
buffer_load_dwordx4 {V(XR)}, v7, {S(SRD_B)}, s{sT1} offen
buffer_load_dwordx4 {V(XR+4)}, v7, {S(SRD_B)}, s{sT1} offen offset:896
v_and_b32 v7, 1, v{vG}
v_mul_u32_u24 v7, 3584, v7
v_lshl_add_u32 v7, v{vN}, 1, v7            ; (4*(gq&1))*896 + n*2
s_lshl_b32 s{sT1}, s{sSIG}, 7
s_lshl_b32 s{sT2}, s{sSP}, 5
s_add_u32 s{sT1}, s{sT1}, s{sT2}           ; col0*2
""")
    for r in range(4):
        k(f"buffer_load_ushort v{XC+r}, v7, {S(SRD_B)}, s{sT1} offen offset:{r*896}")
    k("L_NOX:")
    k(f"s_cmp_lg_u32 s{sW}, 0\ns_cbranch_scc1 L_NOC")
    srd(SRD_C, P_WM, 448 * 5376)
    k(f"""
v_lshrrev_b32 v7, 1, v{vL}
v_mul_u32_u24 v7, 5376, v7
v_and_b32 v12, 1, v{vL}
v_lshl_add_u32 v7, v12, 4, v7
s_add_u32 s{sT1}, s{sSIG}, 7
s_cmp_lt_u32 s{sSIG}, 7
s_cselect_b32 s{sT1}, s{sSIG}, s{sT1}
s_lshl_b32 s{sT1}, s{sT1}, 7
s_lshl_b32 s{sT2}, s{sSP}, 5
s_add_u32 s{sT1}, s{sT1}, s{sT2}
s_mov_b32 s{sT2}, s{sT1}
""")
    for t in range(14):
        k(f"s_mov_b32 m0, {L_WM0+t*1024}\nbuffer_load_dwordx4 v7, {S(SRD_C)}, s{sT2} offen {NTW} lds")
        if t < 13: k(f"s_add_u32 s{sT2}, s{sT2}, {32*5376}")
    k(f"s_cmp_ge_u32 s{sSIG}, 7\ns_cbranch_scc1 L_NOC")
    k(f"s_add_u32 s{sT2}, s{sT1}, 896")
    for t in range(14):
        k(f"s_mov_b32 m0, {L_WM1+t*1024}\nbuffer_load_dwordx4 v7, {S(SRD_C)}, s{sT2} offen {NTW} lds")
        if t < 13: k(f"s_add_u32 s{sT2}, s{sT2}, {32*5376}")
    k("L_NOC:")
    k(f"s_cmp_lg_u32 s{sW}, 1\ns_cbranch_scc1 L_NOWQ")
    srd(SRD_C, P_WQ, 448 * 8192)
    k(f"""
v_lshrrev_b32 v7, 1, v{vL}
v_lshlrev_b32 v7, 13, v7
v_and_b32 v12, 1, v{vL}
v_lshl_add_u32 v7, v12, 4, v7
s_lshr_b32 s{sT1}, s2, 3
s_lshl_b32 s{sT1}, s{sT1}, 5
s_lshl_b32 s{sT2}, s{sKVH}, 10
s_add_u32 s{sT2}, s{sT2}, s{sT1}
""")
    for t in range(14):
        k(f"s_mov_b32 m0, {L_WQ+t*1024}\nbuffer_load_dwordx4 v7, {S(SRD_C)}, s{sT2} offen {NTW} lds")
        if t < 13: k(f"s_add_u32 s{sT2}, s{sT2}, {32*8192}")
    k("L_NOWQ:")
    k(f"s_cmp_lg_u32 s{sB}, 7\ns_cbranch_scc1 L_NOCLR")
    k(f"""
v_mov_b32 v8, -1
v_mov_b32 v9, -1
v_mov_b32 v10, -1
v_mov_b32 v11, -1
s_mul_i32 s{sT1}, s{sJ}, 40960
s_add_u32 s{sT1}, s{sT1}, {WS_CLR}
""")
    for i in range(10):
        k(f"buffer_store_dwordx4 v[8:11], v6, {S(SRD_WS)}, s{sT1} offen sc1")
        if i < 9: k(f"s_add_u32 s{sT1}, s{sT1}, 4096")
    k("L_NOCLR:")
    k("s_waitcnt lgkmcnt(0)\ns_barrier           ; B0")
    srd(SRD_A, P_DBG, 256)
    k(f"s_cmp_lg_u32 s{sB}, 7\ns_cbranch_scc1 L_NOCLR2")
    k(f"""
s_waitcnt vmcnt(0)
s_mov_b64 exec, 1
ds_add_rtn_u32 v7, v{vZ}, v{vONE} offset:{L_FLAG+F_CLR}
s_waitcnt lgkmcnt(0)
v_readfirstlane_b32 s{sT1}, v7
s_cmp_lg_u32 s{sT1}, 3
s_cbranch_scc1 L_NOCLR3
s_add_u32 s{sT1}, s{sJ}, 32
buffer_store_byte v{vONE}, v{vZ}, {S(SRD_A)}, s{sT1} offen sc1
L_NOCLR3:
s_mov_b64 exec, -1
L_NOCLR2:
""")
    k(f"s_cmp_ge_u32 s{sSIG}, 35\ns_cbranch_scc1 L_NOSILU")
    k("s_waitcnt vmcnt(0)" if not o.get("fine") else "s_waitcnt vmcnt(0)")
    k(f"s_mov_b32 s{sT3}, {f32(-LOG2E)}")
    for half in range(2):
        for r in range(4):
            src = CV + 4 * half + r
            unpack(8, 9, src)
            k(f"""
v_mul_f32 v10, s{sT3}, v8
v_mul_f32 v11, s{sT3}, v9
v_exp_f32 v10, v10
v_exp_f32 v11, v11
v_add_f32 v10, 1.0, v10
v_add_f32 v11, 1.0, v11
v_rcp_f32 v10, v10
v_rcp_f32 v11, v11
v_mul_f32 v8, v8, v10
v_mul_f32 v9, v9, v11
v_cvt_pk_bf16_f32 v{src}, v8, v9
""")
        k(f"""
v_add_u32 v8, {256*half}, v5
v_mul_u32_u24 v9, 1171, v8
v_lshrrev_b32 v9, 16, v9
v_mul_u32_u24 v10, 56, v9
v_sub_u32 v10, v8, v10
v_lshl_add_u32 v10, v10, 3, v9
v_lshlrev_b32 v10, 4, v10
v_add_u32 v10, {L_SC}, v10
""")
        if half: k("v_cmp_gt_u32 vcc, 448, v8\ns_and_b64 exec, exec, vcc")
        k(f"ds_write_b128 v10, {V(CV+4*half)}")
        if half: k("s_mov_b64 exec, -1")
    k(f"s_cmp_ge_u32 s{sSIG}, 7\ns_cbranch_scc1 L_NOLN")
    XF = 40
    k(f"v_cmp_gt_u32 vcc, 56, v{vL}")
    for rr in range(2):
        for r in range(4):
            k(f"v_cndmask_b32 v{XR+4*rr+r}, 0, v{XR+4*rr+r}, vcc")
            unpack(XF + 8 * rr + 2 * r, XF + 8 * rr + 2 * r + 1, XR + 4 * rr + r)
        k(f"v_add_f32 v{8+rr}, v{XF+8*rr}, v{XF+8*rr+1}")
        for r in range(2, 8): k(f"v_add_f32 v{8+rr}, v{8+rr}, v{XF+8*rr+r}")
    wave_red2("add", 8, sT1, 9, sT2)
    k(f"v_mov_b32 v12, {f32(1.0/448)}\nv_mul_f32 v10, s{sT1}, v12\nv_mul_f32 v11, s{sT2}, v12     ; means")
    for rr in range(2):
        for r in range(8):
            x = XF + 8 * rr + r
            k(f"v_sub_f32 v{x}, v{x}, v{10+rr}")
            if r == 0: k(f"v_mul_f32 v{8+rr}, v{x}, v{x}")
            else: k(f"v_fmac_f32 v{8+rr}, v{x}, v{x}")
        k(f"v_cndmask_b32 v{8+rr}, 0, v{8+rr}, vcc")
    wave_red2("add", 8, sT1, 9, sT2)
    k(f"v_mul_f32 v8, s{sT1}, v12\nv_mul_f32 v9, s{sT2}, v12       ; vars")
    round2(10, 11, 13); round2(8, 9, 13)
    k(f"v_add_f32 v8, {f32(1e-5)}, v8\nv_add_f32 v9, {f32(1e-5)}, v9")
    round2(8, 9, 13)
    k("v_sqrt_f32 v8, v8\nv_sqrt_f32 v9, v9")
    round2(8, 9, 13)
    k(f"""
v_rcp_f32 v8, v8
v_rcp_f32 v9, v9
v_lshlrev_b32 v13, 3, s{sW}
s_mov_b64 exec, 1
ds_write_b64 v13, v[10:11] offset:{L_H2}
ds_write_b64 v13, v[8:9] offset:{L_H2+32}
s_mov_b64 exec, -1
L_NOLN:
s_waitcnt lgkmcnt(0)
""")
    lds_signal(F_SC, vZ, vONE)
    k("L_NOSILU:")
    stamp(1)
    k(f"s_cmp_eq_u32 s{sW}, 1\ns_cbranch_scc1 L_STAGE2")
    k(f"s_cmp_lg_u32 s{sW}, 0\ns_cbranch_scc1 L_VSTREAM")
    k(f"s_cmp_lt_u32 s{sSIG}, 35\ns_cbranch_scc1 L_STAGE1")
    lds_signal(F_EARLY, vZ, vONE)
    k("s_branch L_VSTREAM")
    k("L_STAGE1:")
    AF, BF0, BF1, D0, D1 = 48, 104, 160, 216, 220
    k(f"""
v_lshlrev_b32 v7, 8, v{vG}
v_lshl_add_u32 v7, v{vN}, 3, v7            ; g*256 + (lane&15)*8
v_add_u32 v12, {L_WM1}, v7
v_add_u32 v7, {L_WM0}, v7
""")
    for t in range(14):
        k(f"ds_read_b64_tr_b16 {V(BF0+4*t,2)}, v7 offset:{t*1024}\nds_read_b64_tr_b16 {V(BF0+4*t+2,2)}, v7 offset:{t*1024+128}")
        if t in (6, 13): k("s_waitcnt lgkmcnt(0)")
    k(f"s_cmp_ge_u32 s{sSIG}, 7\ns_cbranch_scc1 L_S1A")
    for t in range(14):
        k(f"ds_read_b64_tr_b16 {V(BF1+4*t,2)}, v12 offset:{t*1024}\nds_read_b64_tr_b16 {V(BF1+4*t+2,2)}, v12 offset:{t*1024+128}")
        if t in (6, 13): k("s_waitcnt lgkmcnt(0)")
    k("L_S1A:")
    lds_wait(F_SC, 4, vZ, 13, sleep=0)
    k(f"""
v_and_b32 v13, 7, v{vL}
v_lshlrev_b32 v13, 4, v13
v_lshl_add_u32 v13, v{vG}, 7, v13          ; g*128 + (m&7)*16
v_add_u32 v13, {L_SC}, v13
""")
    for t in range(14): k(f"ds_read_b128 {V(AF+4*t)}, v13 offset:{t*512}")
    k(f"""
v_and_b32 v14, 1, v{vG}
v_lshlrev_b32 v14, 4, v14
ds_read_b128 v[224:227], v14 offset:{L_H2}
s_waitcnt lgkmcnt(0)
ds_read_b128 v[228:231], v14 offset:{L_H2+32}
s_waitcnt lgkmcnt(0)
""")
    lds_signal(F_EARLY, vZ, vONE)
    for t in range(14):
        k(f"{MF} {V(D0)}, {V(AF+4*t)}, {V(BF0+4*t)}, {'0' if t == 0 else V(D0)}")
    k(f"s_cmp_ge_u32 s{sSIG}, 7\ns_cbranch_scc1 L_S1MOD")
    for t in range(14):
        k(f"{MF} {V(D1)}, {V(AF+4*t)}, {V(BF1+4*t)}, {'0' if t == 0 else V(D1)}")
    for r in range(4):
        k(f"v_lshlrev_b32 v{XC+r}, 16, v{XC+r}\nv_sub_f32 v{XC+r}, v{XC+r}, v{224+r}")
    round2(XC, XC + 1, 13); round2(XC + 2, XC + 3, 13)
    for r in range(4): k(f"v_mul_f32 v{XC+r}, v{XC+r}, v{228+r}")
    round2(XC, XC + 1, 13); round2(XC + 2, XC + 3, 13)
    round2(D0, D0 + 1, 13); round2(D0 + 2, D0 + 3, 13)
    round2(D1, D1 + 1, 13); round2(D1 + 2, D1 + 3, 13)
    for r in range(4): k(f"v_add_f32 v{D1+r}, 1.0, v{D1+r}")
    round2(D1, D1 + 1, 13); round2(D1 + 2, D1 + 3, 13)
    for r in range(4): k(f"v_mul_f32 v{D1+r}, v{D1+r}, v{XC+r}")
    round2(D1, D1 + 1, 13); round2(D1 + 2, D1 + 3, 13)
    for r in range(4): k(f"v_add_f32 v{D0+r}, v{D0+r}, v{D1+r}")
    def pack_pairs(D):
        for r in range(4): k(f"v_mov_b32_dpp v{8+r}, v{D+r} quad_perm:[1,1,3,3] row_mask:0xf bank_mask:0xf")
        for r in range(4): k(f"v_cvt_pk_bf16_f32 v{8+r}, v{D+r}, v{8+r}\nv_min_u32 v{8+r}, -2, v{8+r}")
    pack_pairs(D0)
    k(f"""
v_lshrrev_b32 v13, 3, v{vN}
v_lshlrev_b32 v13, 7, v13
v_lshl_add_u32 v13, v{vG}, 6, v13
v_and_b32 v14, 7, v{vN}
v_lshl_add_u32 v13, v14, 1, v13
s_lshl_b32 s{sT1}, s{sSIG}, 10
s_lshl_b32 s{sT2}, s{sSP}, 8
s_add_u32 s{sT1}, s{sT1}, s{sT2}           ; (col0/8)*128
s_mov_b32 exec_lo, 0x55555555
s_mov_b32 exec_hi, 0
""")
    for r in range(4): k(f"buffer_store_dword v{8+r}, v13, {S(SRD_WS)}, s{sT1} offen offset:{WS_H+r*16} sc1")
    k(f"""
s_waitcnt vmcnt(0)
s_mov_b64 exec, 1
s_lshl_b32 s{sT1}, s{sSIG}, 2
s_add_u32 s{sT1}, s{sT1}, s{sSP}
buffer_store_byte v{vONE}, v{vZ}, {S(SRD_A)}, s{sT1} offen sc1
s_mov_b64 exec, -1
""")
    stamp(2)
    k("s_branch L_VSTREAM")
    k("L_S1MOD:")
    pack_pairs(D0)
    k(f"""
v_lshlrev_b32 v13, 14, v{vG}
v_lshl_add_u32 v13, v{vN}, 1, v13
s_sub_u32 s{sT1}, s{sSIG}, 7
s_lshl_b32 s{sT1}, s{sT1}, 7
s_lshl_b32 s{sT2}, s{sSP}, 5
s_add_u32 s{sT1}, s{sT1}, s{sT2}
s_add_u32 s{sT1}, s{sT1}, {WS_M}
""")
    lds_wait(F_GO, 1, vZ, 14, sleep=2)
    k("s_mov_b32 exec_lo, 0x55555555\ns_mov_b32 exec_hi, 0")
    for r in range(4):
        k(f"buffer_store_dword v{8+r}, v13, {S(SRD_WS)}, s{sT1} offen sc1")
        if r < 3: k(f"s_add_u32 s{sT1}, s{sT1}, 4096")
    k("s_mov_b64 exec, -1")
    stamp(2)
    k("s_branch L_VSTREAM")
    k("L_STAGE2:")
    k(f"""
s_waitcnt vmcnt(0)
v_lshlrev_b32 v7, 8, v{vG}
v_lshl_add_u32 v7, v{vN}, 3, v7
v_add_u32 v7, {L_WQ}, v7
""")
    for t in range(14):
        k(f"ds_read_b64_tr_b16 {V(BF0+4*t,2)}, v7 offset:{t*1024}\nds_read_b64_tr_b16 {V(BF0+4*t+2,2)}, v7 offset:{t*1024+128}")
        if t in (6, 13): k("s_waitcnt lgkmcnt(0)")
    lds_signal(F_EARLY, vZ, vONE)
    k(f"""
v_lshlrev_b32 v7, 2, v{vL}
v_and_b32 v13, 7, v{vL}
v_lshlrev_b32 v13, 4, v13
v_lshl_add_u32 v13, v{vG}, 7, v13
s_mov_b32 s{sT1}, 0x01010101
s_mov_b32 exec_lo, 0x0000ff7f
s_mov_b32 exec_hi, 0
L_FPOLL:
buffer_load_dword v12, v7, {S(SRD_A)}, 0 offen sc1
s_waitcnt vmcnt(0)
v_cmp_ne_u32 vcc, s{sT1}, v12
s_cbranch_vccz L_FOK
s_sleep 2
""")
    budget_loop("L_FPOLL")
    k("L_FOK:\ns_mov_b64 exec, -1")
    k(f"s_mov_b32 s{sT1}, 4096")
    for t in range(14):
        if t < 8: k(f"buffer_load_dwordx4 {V(AF+4*t)}, v13, {S(SRD_WS)}, 0 offen offset:{WS_H+t*512} sc1")
        else: k(f"buffer_load_dwordx4 {V(AF+4*t)}, v13, {S(SRD_WS)}, s{sT1} offen offset:{WS_H+t*512-4096} sc1")
    lds_signal(F_GO, vZ, vONE)
    stamp(2)
    for t in range(14):
        k(f"s_waitcnt vmcnt({13-t})")
        k(f"{MF} {V(D0)}, {V(AF+4*t)}, {V(BF0+4*t)}, {'0' if t == 0 else V(D0)}")
    pack_pairs(D0)
    k(f"""
v_lshlrev_b32 v13, 12, v{vG}
v_lshl_add_u32 v13, v{vN}, 1, v13
s_lshr_b32 s{sT1}, s2, 3
s_lshl_b32 s{sT1}, s{sT1}, 5
s_lshl_b32 s{sT2}, s{sKVH}, 13
s_add_u32 s{sT1}, s{sT1}, s{sT2}
s_add_u32 s{sT1}, s{sT1}, {WS_Q}
s_mov_b32 exec_lo, 0x55555555
s_mov_b32 exec_hi, 0
""")
    for r in range(4): k(f"buffer_store_dword v{8+r}, v13, {S(SRD_WS)}, s{sT1} offen offset:{r*1024} sc1")
    k("s_mov_b64 exec, -1")
    stamp(3)
    k("L_VSTREAM:")
    VB, TT, VACC, PF = 16, 144, 176, 208
    k("s_setprio 0")
    srd(SRD_B, P_V, 0x8000000)
    k(f"""
v_lshrrev_b32 v5, 3, v{vL}
v_lshlrev_b32 v5, 9, v5
v_and_b32 v6, 7, v{vL}
v_lshl_add_u32 v5, v6, 4, v5               ; (l>>3)*512 + (l&7)*16
s_lshl_b32 s{sT0}, s{sSP}, 7
s_add_u32 s{sT0}, s{sT0}, s{sPEND}
s_lshl_b32 s{sT1}, s{sW}, 17
s_add_u32 s{sT0}, s{sT0}, s{sT1}
""")
    for li in range(32):
        k(f"buffer_load_dwordx4 {V(VB+4*li)}, v5, {S(SRD_B)}, s{sT0} offen nt")
        if li < 31: k(f"s_add_u32 s{sT0}, s{sT0}, 4096")
    stamp(4)
    k("s_setprio 2")
    k(f"v_lshlrev_b32 v7, 2, s{sW}")
    lds_wait(F_P, 1, 7, 8)
    k(f"""
v_and_b32 v7, 1, v{vN}
v_lshlrev_b32 v7, 1, v7
v_bfe_u32 v8, v{vN}, 2, 1
v_add_u32 v7, v7, v8                       ; h*2+u'
v_lshl_add_u32 v7, v7, 2, v{vG}
v_lshlrev_b32 v7, 4, v7
s_lshl_b32 s{sT1}, s{sW}, 10
v_add_u32 v7, s{sT1}, v7
s_mov_b32 s{sT2}, 0x05040100
s_mov_b32 s{sT3}, 0x07060302
v_lshlrev_b32 v6, 5, v6                    ; c*32 bytes
v_lshrrev_b32 v8, 5, v{vL}
v_lshl_add_u32 v6, v8, 4, v6               ; + (gq>>1)*16
""")
    for T in range(4): k(f"ds_read_b128 {V(PF+4*T)}, v7 offset:{L_P+T*256}")
    k("s_waitcnt lgkmcnt(0)")
    stamp(5)
    for T in range(4):
        for a in range(4):
            li = 8 * T + 2 * a
            k(f"s_waitcnt vmcnt({30-li})")
            for e in range(4):
                X, Y = VB + 4 * li + e, VB + 4 * (li + 1) + e
                k(f"v_perm_b32 v{TT+(2*e)*4+a}, v{Y}, v{X}, s{sT2}\nv_perm_b32 v{TT+(2*e+1)*4+a}, v{Y}, v{X}, s{sT3}")
        for d in range(8):
            k(f"{MF} {V(VACC+4*d)}, {V(PF+4*T)}, {V(TT+4*d)}, {'0' if T == 0 else V(VACC+4*d)}")
    stamp(6)
    for dd in range(4):
        for h in range(2):
            k(f"v_cndmask_b32 v{8+dd*2+h}, v{VACC+4*dd+h}, v{VACC+4*(dd+4)+h}, s[{sMH}:{sMH+1}]")
    k("s_mov_b32 exec_lo, 0xff0000ff\ns_mov_b32 exec_hi, 0xff0000ff")
    for dd in range(4):
        for h in range(2):
            k(f"ds_add_f32 v6, v{8+dd*2+h} offset:{L_OACC+h*256+dd*4}")
    k("s_mov_b64 exec, -1")
    k(f"""
v_bfe_u32 v6, v{vL}, 2, 2
v_lshl_add_u32 v6, v{vG}, 2, v6
v_mul_u32_u24 v5, 928, v6
v_and_b32 v7, 3, v{vL}
v_lshl_add_u32 v5, v7, 3, v5               ; row*928 + c*8
s_waitcnt lgkmcnt(0)
""")
    stamp(8)
    k("s_barrier            ; B1")

    k("L_TAIL:")
    F13, F2, GA, MU, HA = 128, 184, 16, 48, 48
    k(f"""
v_lshlrev_b32 v6, 4, v{vL}
s_mul_i32 s{sT0}, s{sB}, 57344
s_mul_i32 s{sT1}, s{sWAVE}, 7168
s_add_u32 s{sT0}, s{sT0}, s{sT1}
s_add_u32 s{sT0}, s{sT0}, {WS_PA}
s_add_u32 s{sT1}, s{sT0}, 3584
s_mov_b32 s{sPEND}, 15
s_cmp_eq_u32 s{sWAVE}, 7
s_cbranch_scc1 L_NOFRAG
v_bfe_u32 v7, v{vL}, 2, 2
v_lshl_add_u32 v7, v{vG}, 2, v7
v_mul_u32_u24 v7, 112, v7                  ; (4g+r)*112
v_and_b32 v8, 1, v{vL}
v_lshl_add_u32 v7, v8, 3, v7
v_bfe_u32 v8, v{vL}, 1, 1
v_mul_u32_u24 v8, {L_W3-L_W1}, v8
v_add_u32 v7, v7, v8
s_lshl_b32 s{sT2}, s{sWAVE}, 4
s_add_u32 s{sT2}, s{sT2}, {L_W1}
v_add_u32 v7, s{sT2}, v7
""")
    for t in range(14):
        k(f"ds_read_b64_tr_b16 {V(F13+4*t,2)}, v7 offset:{t*3584}\nds_read_b64_tr_b16 {V(F13+4*t+2,2)}, v7 offset:{t*3584+1792}")
        if t in (6, 13): k("s_waitcnt lgkmcnt(0)")
    k(f"""
s_lshl_b32 s{sT2}, s{sWAVE}, 7
s_add_u32 s{sT2}, s{sT2}, {L_W2}
v_add_u32 v7, s{sT2}, v5
v_subrev_u32 v8, {8*928}, v7
v_cndmask_b32 v8, v7, v8, s[{sMH}:{sMH+1}]
""")
    for T in range(2):
        for q in range(4):
            r = F2 + (T * 4 + q) * 4
            k(f"ds_read_b64_tr_b16 {V(r,2)}, v7 offset:{T*29696+q*32}")
            k(f"ds_read_b64_tr_b16 {V(r+2,2)}, v{8 if T else 7} offset:{T*29696+q*32+14848}")
        k("s_waitcnt lgkmcnt(0)")
    k("L_NOFRAG:")
    k("s_mov_b32 exec_hi, 0x00ffffff")
    for q in range(4): k(f"ds_read_b128 {V(104+4*q)}, v6 offset:{L_MOD+q*896}")
    k("s_waitcnt lgkmcnt(0)")
    for q in range(4):
        for r in range(4): unpack(MU + 8 * q + 2 * r, MU + 8 * q + 2 * r + 1, 104 + 4 * q + r)
    stamp(10)
    k("L_GPOLL:")
    for pp in range(4):
        L = k.newlabel("LG")
        so = sT0 if pp < 2 else sT1
        k(f"s_bitcmp1_b32 s{sPEND}, {pp}\ns_cbranch_scc0 {L}")
        k(f"buffer_load_dwordx4 {V(GA+8*pp)}, v6, {S(SRD_WS)}, s{so} offen offset:{(pp&1)*1792} sc1")
        k(f"buffer_load_dwordx4 {V(GA+8*pp+4)}, v6, {S(SRD_WS)}, s{so} offen offset:{(pp&1)*1792+896} sc1")
        k(f"{L}:")
    k("s_waitcnt vmcnt(0)")
    k(f"s_mov_b32 s{sPEND}, 0")
    for pp in range(4):
        g0 = GA + 8 * pp
        k(f"""
v_max3_u32 v7, v{g0}, v{g0+1}, v{g0+2}
v_max3_u32 v8, v{g0+3}, v{g0+4}, v{g0+5}
v_max3_u32 v7, v7, v{g0+6}, v{g0+7}
v_max_u32 v7, v7, v8
v_cmp_eq_u32 vcc, -1, v7
s_cmp_lg_u64 vcc, 0
s_cselect_b32 s{sT2}, {1<<pp}, 0
s_or_b32 s{sPEND}, s{sPEND}, s{sT2}
""")
    k(f"s_cmp_eq_u32 s{sPEND}, 0\ns_cbranch_scc1 L_GOK")
    budget_loop("L_GPOLL")
    k("L_GOK:")
    stamp(11)
    for r in range(8):
        k(f"v_add_f32 v{GA+r}, v{GA+r}, v{GA+8+r}\nv_add_f32 v{GA+16+r}, v{GA+16+r}, v{GA+24+r}")
    k(f"v_lshlrev_b32 v7, 2, v{vL}")
    for r in range(8):
        k(f"v_add_f32 v{GA+r}, v{GA+r}, v{GA+16+r}")
        hf, e = r >> 2, r & 3
        k(f"ds_add_f32 v7, v{GA+r} offset:{L_YACC+(e*112+hf*56)*4}")
    k(f"v_lshlrev_b32 v7, 3, v{vL}\nv_add_u32 v7, {L_YACC}, v7")
    k("s_waitcnt lgkmcnt(0)\ns_barrier            ; B2")
    Y = 16
    k(f"ds_read2_b64 {V(32)}, v7 offset0:0 offset1:56\nds_read2_b64 {V(36)}, v7 offset0:112 offset1:168\ns_waitcnt lgkmcnt(0)")
    src = [32, 34, 36, 38, 33, 35, 37, 39]
    for p in range(4):
        k(f"v_cvt_pk_bf16_f32 v8, v{src[2*p]}, v{src[2*p+1]}")
        unpack(Y + 2 * p, Y + 2 * p + 1, 8)
    for c in range(8): k(f"v_mul_f32 v{Y+c}, v{Y+c}, v{MU+8+c}")
    for p in range(4): round2(Y + 2 * p, Y + 2 * p + 1, 8)
    for c in range(8): k(f"v_add_f32 v{Y+c}, v{Y+c}, v{MU+c}")
    for p in range(4):
        k(f"v_cvt_pk_bf16_f32 v{24+p}, v{Y+2*p}, v{Y+2*p+1}")
        unpack(Y + 2 * p, Y + 2 * p + 1, 24 + p)
    k(f"ds_write_b128 v6, v[24:27] offset:{L_X1}")
    k("s_mov_b64 exec, -1\nv_mov_b32 v8, 0\nv_mov_b32 v9, 0\ns_mov_b32 exec_hi, 0x00ffffff")
    k(f"v_add_f32 v8, v{Y}, v{Y+1}")
    for c in range(2, 8): k(f"v_add_f32 v8, v8, v{Y+c}")
    k("s_mov_b64 exec, -1")
    wave_red("add", 8, sT2)
    k(f"v_mov_b32 v12, {f32(1.0/448)}\nv_mul_f32 v10, s{sT2}, v12\ns_mov_b32 exec_hi, 0x00ffffff")
    for c in range(8):
        k(f"v_sub_f32 v11, v{Y+c}, v10")
        k("v_mul_f32 v9, v11, v11" if c == 0 else "v_fmac_f32 v9, v11, v11")
    k("s_mov_b64 exec, -1")
    wave_red("add", 9, sT2)
    k(f"v_mul_f32 v11, s{sT2}, v12")
    round2(10, 11, 8)
    k(f"v_add_f32 v11, {f32(1e-5)}, v11\nv_cvt_pk_bf16_f32 v8, v11, v11\nv_lshlrev_b32 v11, 16, v8\nv_sqrt_f32 v11, v11")
    k("v_cvt_pk_bf16_f32 v8, v11, v11\nv_lshlrev_b32 v11, 16, v8\nv_rcp_f32 v11, v11")
    for c in range(8): k(f"v_sub_f32 v{Y+c}, v{Y+c}, v10")
    for p in range(4): round2(Y + 2 * p, Y + 2 * p + 1, 8)
    for c in range(8): k(f"v_mul_f32 v{Y+c}, v{Y+c}, v11")
    for p in range(4): round2(Y + 2 * p, Y + 2 * p + 1, 8)
    for c in range(8): k(f"v_mul_f32 v{Y+c}, v{Y+c}, v{MU+16+c}")
    for p in range(4): round2(Y + 2 * p, Y + 2 * p + 1, 8)
    for c in range(8): k(f"v_add_f32 v{Y+c}, v{Y+c}, v{MU+24+c}")
    for p in range(4): k(f"v_cvt_pk_bf16_f32 v{28+p}, v{Y+2*p}, v{Y+2*p+1}")
    k(f"""
s_mov_b32 exec_hi, 0x00ffffff
ds_write_b128 v6, v[28:31] offset:{L_H2}
s_mov_b64 exec, -1
v_lshlrev_b32 v7, 3, v{vG}
v_add_u32 v9, {L_G}, v7
v_add_u32 v7, {L_H2}, v7
s_waitcnt lgkmcnt(0)
s_cmp_eq_u32 s{sWAVE}, 7
s_cbranch_scc1 L_W7
""")
    stamp(12)
    for t in range(14): k(f"ds_read2_b64 {V(HA+4*t)}, v7 offset0:{8*t} offset1:{8*t+4}")
    for t in range(14):
        k(f"s_waitcnt lgkmcnt({13-t})")
        k(f"{MF} v[16:19], {V(HA+4*t)}, {V(F13+4*t)}, {'0' if t == 0 else 'v[16:19]'}")
    k(f"""
s_mov_b32 s{sT3}, {f32(-LOG2E)}
s_lshl_b32 s{sT2}, s{sWAVE}, 4
v_lshlrev_b32 v12, 1, v{vL}
v_add_u32 v12, s{sT2}, v12
v_cvt_pk_bf16_f32 v8, v16, v16
v_lshlrev_b32 v8, 16, v8
v_mul_f32 v10, s{sT3}, v8
v_exp_f32 v10, v10
v_mov_b32_dpp v11, v8 row_ror:8 row_mask:0xf bank_mask:0xf
v_add_f32 v10, 1.0, v10
v_rcp_f32 v10, v10
v_mul_f32 v8, v8, v10
v_cvt_pk_bf16_f32 v8, v8, v8
v_lshlrev_b32 v8, 16, v8
v_mul_f32 v8, v8, v11
v_cvt_pk_bf16_f32 v8, v8, v8
s_mov_b64 exec, 0xff
ds_write_b16 v12, v8 offset:{L_G}
s_mov_b64 exec, -1
s_mul_i32 s{sT0}, s{sB}, 57344
s_mul_i32 s{sT1}, s{sJ}, 1792
s_add_u32 s{sT0}, s{sT0}, s{sT1}
s_lshl_b32 s{sT1}, s{sWAVE}, 8
s_add_u32 s{sT0}, s{sT0}, s{sT1}
s_add_u32 s{sT0}, s{sT0}, {WS_PB}
v_lshlrev_b32 v7, 2, v{vL}
s_waitcnt lgkmcnt(0)
s_barrier            ; B3
ds_read2_b64 v[20:23], v9 offset0:0 offset1:4
ds_read2_b64 v[24:27], v9 offset0:8 offset1:12
""")
    for T in range(2):
        k(f"s_waitcnt lgkmcnt({1-T})")
        for q in range(4):
            k(f"{MF} {V(32+4*q)}, {V(20+4*T)}, {V(F2+(T*4+q)*4)}, {'0' if T == 0 else V(32+4*q)}")
    k(f"""
v_cndmask_b32 v8, v32, v36, s[{sM1}:{sM1+1}]
v_cndmask_b32 v8, v8, v40, s[{sM2}:{sM2+1}]
v_cndmask_b32 v8, v8, v44, s[{sM3}:{sM3+1}]
v_min_u32 v8, -2, v8
buffer_store_dword v8, v7, {S(SRD_WS)}, s{sT0} offen sc1
""")
    stamp(13)
    k("s_branch L_FIN")
    k("L_W7:")
    srd(SRD_A, P_OUT, 7168)
    k(f"""
v_lshrrev_b32 v7, 2, v{vL}
v_mul_u32_u24 v7, 1792, v7
v_and_b32 v8, 3, v{vL}
v_lshl_add_u32 v7, v8, 4, v7               ; p*1792 + q4*16
s_mul_i32 s{sT0}, s{sB}, 57344
s_lshl_b32 s{sT1}, s{sJ}, 6
s_add_u32 s{sT0}, s{sT0}, s{sT1}
s_add_u32 s{sT0}, s{sT0}, {WS_PB}
s_add_u32 s{sT1}, s{sT0}, {16*1792}
v_and_b32 v9, 1, v{vG}
v_lshlrev_b32 v9, 1, v9
v_lshrrev_b32 v10, 1, v{vG}
v_add_u32 v9, v9, v10
v_lshl_add_u32 v9, v8, 2, v9
v_lshlrev_b32 v9, 1, v9
s_lshl_b32 s{sT2}, s{sJ}, 5
v_add_u32 v10, s{sT2}, v9
ds_read_u16 v11, v9 offset:{L_GB}
ds_read_u16 v12, v10 offset:{L_X1}
s_mul_i32 s{sT3}, s{sB}, 896
s_waitcnt lgkmcnt(0)
s_barrier            ; B3
s_cmp_ge_u32 s{sJ}, 28
s_cbranch_scc1 L_FIN
v_lshlrev_b32 v11, 16, v11
v_lshlrev_b32 v12, 16, v12
L_BPOLL:
buffer_load_dwordx4 v[16:19], v7, {S(SRD_WS)}, s{sT0} offen sc1
buffer_load_dwordx4 v[20:23], v7, {S(SRD_WS)}, s{sT1} offen sc1
s_waitcnt vmcnt(0)
v_max3_u32 v13, v16, v17, v18
v_max3_u32 v14, v19, v20, v21
v_max3_u32 v13, v13, v22, v23
v_max_u32 v13, v13, v14
v_cmp_eq_u32 vcc, -1, v13
s_cbranch_vccz L_BOK
""")
    budget_loop("L_BPOLL")
    k("L_BOK:")
    stamp(14)
    k(f"""
v_add_f32 v16, v16, v20
v_add_f32 v17, v17, v21
v_add_f32 v18, v18, v22
v_add_f32 v19, v19, v23
v_permlane32_swap_b32 v16, v17
v_permlane32_swap_b32 v18, v19
v_add_f32 v16, v16, v17
v_add_f32 v18, v18, v19
v_permlane16_swap_b32 v16, v18
v_add_f32 v16, v16, v18
v_add_f32_dpp v16, v16, v16 row_ror:4 row_mask:0xf bank_mask:0xf
v_add_f32_dpp v16, v16, v16 row_ror:8 row_mask:0xf bank_mask:0xf
v_cvt_pk_bf16_f32 v16, v16, v16
v_lshlrev_b32 v16, 16, v16
v_mul_f32 v16, v16, v11
v_cvt_pk_bf16_f32 v16, v16, v16
v_lshlrev_b32 v16, 16, v16
v_add_f32 v16, v16, v12
v_cvt_pk_bf16_f32 v16, v16, v16
s_mov_b32 exec_lo, 0x000f000f
s_mov_b32 exec_hi, 0x000f000f
buffer_store_short v16, v10, {S(SRD_A)}, s{sT3} offen
s_mov_b64 exec, -1
""")
    stamp(15)
    k("L_FIN:")
    if debug:
        k("v_mov_b32 v8, 0")
        for i in range(16): k(f"v_writelane_b32 v8, s{sSTAMP+2*i}, {i}")
        k(f"v_writelane_b32 v8, s{sBUD}, 16")
        k(f"""
s_lshl_b32 s{sT0}, s2, 3
s_add_u32 s{sT0}, s{sT0}, s{sWAVE}
s_lshl_b32 s{sT0}, s{sT0}, 7
s_add_u32 s{sT0}, s{sT0}, {WS_DBG}
v_lshlrev_b32 v7, 2, v{vL}
s_mov_b32 exec_hi, 0
buffer_store_dword v8, v7, {S(SRD_WS)}, s{sT0} offen
""")
    k("L_END:\ns_endpgm")
    kt = kernel_text(KNAME + "_kernel", k.text(), 256)
    return file_text([f"; @launch grid=(256,1,1) block=(512,1,1) lds={LDS_BYTES}"], [kt])

if __name__ == "__main__":
    open("k_dbg.s", "w").write(gen(debug=True))
    open("k_rel.s", "w").write(gen(debug=False))
```

```python
import re

TRANS = ("v_exp_f32", "v_log_f32", "v_rcp_f32", "v_rsq_f32", "v_sqrt_f32", "v_sin_f32", "v_cos_f32")
_REG = re.compile(r"^(-|\|)?(abs\()?([vsa])(\d+|\[(\d+):(\d+)\])\)?\|?$")

def regs_of(tok):
    tok = tok.strip()
    if tok in ("vcc",): return {"vcc"}
    if tok in ("vcc_lo", "vcc_hi"): return {"vcc"}
    if tok in ("exec", "exec_lo", "exec_hi"): return {"exec"}
    if tok == "m0": return {"m0"}
    m = _REG.match(tok)
    if not m: return set()
    c = m.group(3)
    if m.group(5) is not None:
        return {f"{c}{i}" for i in range(int(m.group(5)), int(m.group(6)) + 1)}
    return {f"{c}{m.group(4)}"}

class Ins:
    __slots__ = ("text", "op", "cls", "w", "r", "ws", "dpp", "ops", "cregs", "abregs", "lds", "wide_store", "lanesel")
    def __init__(self, text):
        self.text = text
        t = text.split(";")[0].strip()
        parts = t.split(None, 1)
        op = parts[0]
        rest = parts[1] if len(parts) > 1 else ""
        rest = re.sub(r"quad_perm:\[[^\]]*\]", "quad_perm:X", rest)
        rest = re.sub(r"hwreg\([^)]*\)", "hwregX", rest)
        rest = re.sub(r"(neg_lo|neg_hi|op_sel|op_sel_hi):\[[^\]]*\]", "modX", rest)
        for suf in ("_e32", "_e64", "_dpp", "_sdwa"):
            if op.endswith(suf): op = op[:-len(suf)]
        self.op = op
        toks = [x.strip() for x in rest.split(",")] if rest else []
        mods = ""
        if toks:
            last = toks[-1].split(None, 1)
            toks[-1] = last[0]
            mods = last[1] if len(last) > 1 else ""
        self.ops = toks
        self.dpp = bool(re.search(r"row_|quad_perm|wave_", rest))
        self.ws = 1
        self.w = set(); self.r = set(); self.cregs = set(); self.abregs = set()
        self.lds = False; self.wide_store = set(); self.lanesel = set()
        R = [regs_of(x) for x in toks]
        if op == "s_nop":
            self.cls = "salu"; self.ws = int(toks[0], 0) + 1
        elif op.startswith("v_mfma"):
            self.cls = "mfma"; self.w = R[0]; self.abregs = R[1] | R[2]; self.cregs = R[3]; self.r = R[1] | R[2] | R[3]
        elif op.startswith("v_"):
            self.cls = "valu"
            if op.startswith("v_cmp"):
                self.w = R[0]; self.r = set().union(*R[1:])
            elif op in ("v_add_co_u32", "v_sub_co_u32", "v_addc_co_u32", "v_subb_co_u32"):
                self.w = R[0] | R[1]; self.r = set().union(*R[2:])
            elif op.startswith("v_permlane") and "swap" in op:
                self.w = R[0] | R[1]; self.r = R[0] | R[1]
            else:
                self.w = R[0]; self.r = set().union(*R[1:]) if len(R) > 1 else set()
                if op in ("v_fmac_f32", "v_dot2c_f32_bf16", "v_writelane_b32") or self.dpp: self.r |= R[0]
                if op in ("v_readlane_b32", "v_writelane_b32"): self.lanesel = R[2]
        elif op.startswith("buffer_") or op.startswith("global_"):
            self.cls = "vmem"
            self.lds = bool(re.search(r"\blds\b", mods)) or "_lds_" in op
            if op in ("buffer_wbl2", "buffer_inv"): pass
            elif self.lds: self.r = set().union(*R) | {"m0"}
            elif "_load" in op: self.w = R[0]; self.r = set().union(*R[1:])
            else:
                self.r = set().union(*R)
                if "x4" in op or "x3" in op:
                    self.wide_store = R[0] if op.startswith("buffer_") else R[1]
                if "atomic" in op and "sc0" in mods: self.w = R[0]
        elif op.startswith("ds_"):
            self.cls = "ds"
            if op.startswith("ds_read") or "permute" in op or "swizzle" in op or "rtn" in op:
                self.w = R[0]; self.r = set().union(*R[1:])
            else:
                self.r = set().union(*R)
        elif op.startswith("s_load") or op.startswith("s_atomic") or op.startswith("s_buffer_load") or op.startswith("s_mem"):
            self.cls = "smem"; self.w = R[0]; self.r = set().union(*R[1:]) if len(R) > 1 else set()
        elif op.startswith("s_"):
            self.cls = "salu"
            if op.startswith("s_cmp") or op.startswith("s_cbranch") or op in ("s_branch", "s_waitcnt", "s_barrier", "s_sleep", "s_setprio", "s_endpgm", "s_bitcmp1_b32", "s_bitcmp0_b32"):
                self.r = set().union(*R) if R else set()
            else:
                self.w = R[0] if R else set(); self.r = set().union(*R[1:]) if len(R) > 1 else set()
                if "saveexec" in op: self.w |= {"exec"}
        else:
            raise ValueError("unknown instr: " + text)
        if self.cls == "valu" and op == "v_cndmask_b32" and len(toks) == 3: self.r |= {"vcc"}

def need(p, c):
    n = 0
    pv = {x for x in p.w if x[0] in "va" and x != "vcc"}
    ps = {x for x in p.w if x[0] == "s" or x == "vcc"}
    if p.cls == "valu":
        if c.cls == "mfma" and pv & c.r: n = max(n, 2)
        if c.cls == "valu":
            if ps & c.r: n = max(n, 2)
            if ps & c.lanesel: n = max(n, 4)
            if c.dpp and pv & c.r: n = max(n, 2)
            if c.op in ("v_readlane_b32", "v_readfirstlane_b32") and pv & c.r: n = max(n, 1)
            if c.op.startswith("v_permlane") and pv & c.r: n = max(n, 2)
            if p.op in TRANS and pv & c.r: n = max(n, 1)
        if c.cls == "vmem" and ps & c.r: n = max(n, 5)
        if c.cls in ("salu", "smem") and ps & c.r: n = max(n, 1)
        if p.op in TRANS and c.cls in ("vmem", "ds") and pv & c.r: n = max(n, 1)
    if p.op.startswith("v_dot") and c.cls in ("valu", "mfma", "vmem", "ds") and pv & (c.r | c.w):
        if not (c.op == p.op and not (pv & (regs_of(c.ops[1]) | regs_of(c.ops[2])))): n = max(n, 3)
    if p.cls == "mfma":
        big = "32x32" in p.op
        if c.cls == "mfma":
            if p.w & c.abregs: n = max(n, 12 if big else 8)
            if p.w & c.cregs and p.w != c.cregs: n = max(n, 10 if big else 6)
            if p.w & c.w and p.w != c.cregs: n = max(n, 10 if big else 6)
        elif c.cls in ("valu", "vmem", "ds"):
            if p.w & (c.r | c.w): n = max(n, 12 if big else 8)
            if c.cls == "valu" and p.cregs & c.w: n = max(n, 7 if big else 3)
    if p.cls == "salu" and "m0" in p.w and c.cls == "vmem" and c.lds: n = max(n, 1)
    if p.wide_store and p.wide_store & c.w: n = max(n, 2)
    return n

class K:
    def __init__(self):
        self.out = []
        self.hist = [[]]
        self.pending = {}
        self.labels = {}
        self.uid = 0
    def _req(self, hist, c):
        d = 0; n = 0
        for p in reversed(hist):
            n = max(n, need(p, c) - d)
            d += p.ws
            if d >= 13: break
        return n
    def _push(self, ins):
        self.out.append(("i", ins))
        for h in self.hist:
            h.append(ins)
            if len(h) > 14: del h[0]
        u = []
        for h in self.hist:
            if not any(len(h) == len(g) and all(a is b for a, b in zip(h, g)) for g in u): u.append(h)
        self.hist = u
    def nop(self, n):
        while n > 0:
            k = min(n, 16)
            self._push(Ins(f"s_nop {k-1}")); n -= k
    def i(self, text):
        for line in text.strip("\n").split("\n"):
            s = line.strip()
            if not s or s.startswith(";"):
                if s: self.out.append(("t", "    " + s))
                continue
            if s.endswith(":"):
                self.label(s[:-1]); continue
            if s.startswith("."):
                self.out.append(("t", s)); continue
            c = Ins(s)
            n = max([self._req(h, c) for h in self.hist] + [0])
            if n > 0: self.nop(n)
            if c.op.startswith("s_cbranch") or c.op == "s_branch":
                tgt = c.ops[0]
                if tgt in self.labels:
                    extra = 0
                    for h in self.hist:
                        hh = list(h) + [c]
                        idx = self.labels[tgt]; d = 0
                        while idx < len(self.out) and d < 13:
                            k, o = self.out[idx]; idx += 1
                            if k != "i": continue
                            extra = max(extra, self._req(hh, o))
                            hh.append(o); d += o.ws
                    if extra > 0: self.nop(extra)
                    self._push(c)
                else:
                    self._push(c)
                    self.pending.setdefault(tgt, []).extend([list(h) for h in self.hist])
                if c.op == "s_branch": self.hist = []
            else:
                self._push(c)
                if c.op == "s_endpgm": self.hist = []
    __call__ = i
    def label(self, name):
        assert name not in self.labels, name
        self.labels[name] = len(self.out)
        self.out.append(("l", name))
        self.hist = self.hist + self.pending.pop(name, [])
        if not self.hist: self.hist = [[]]
    def newlabel(self, p="L"):
        self.uid += 1
        return f"{p}_{self.uid}"
    def text(self):
        assert not self.pending, self.pending.keys()
        r = []
        for k, o in self.out:
            if k == "i": r.append("    " + o.text)
            elif k == "l": r.append(o + ":")
            else: r.append(o)
        return "\n".join(r) + "\n"
```

```python
import sys, struct
from emit import K
from asmlib import KNAME, kernel_text, file_text

WS_MU = 0x0000
WS_M = 0x4000
WS_ML = 0x50000
WS_CNT = 0x51000
WS_X1 = 0xE000
WS_Q = 0x10000
WS_O = 0x20000
WS_PA = 0xA0000
WS_PB = 0xC0000
WS_DBG = 0x200000
WS_BYTES = 0x20000000
D_GA, D_GO2, D_GB, D_MODE, D_GM = 0, 4, 8, 12, 48
D_GQ, D_CM, D_XC, D_CB, D_CC = 128, 144, 148, 152, 156
AL_QF, AL_T, AL_G, AL_P, AL_N = 0, 4, 8, 12, 16
AL_Q = 64
AL_O = 2048
L_SC = 0
L_H = 7168
L_OA = L_H
L_G = L_H + 8256
L_T = 16640
L_B = 20224
L_A = L_B + 59392 + 16
L_MM = L_A + 59392
LDS_BYTES = 153600
assert L_MM + 14336 <= LDS_BYTES and L_MM % 16 == 0
LOG2E = 1.4426950408889634
def f32(x): return "0x%08x" % struct.unpack("<I", struct.pack("<f", x))[0]

P_X, P_K, P_V, P_WQ, P_WO, P_W1, P_W3, P_W2, P_C, P_WM, P_OUT, P_DBG, P_WS = 4, 6, 8, 10, 12, 16, 18, 20, 22, 24, 26, 28, 30
SRD_WS = 32
sID, sSP, sB, sKVH, sBUD = 36, 37, 38, 39, 40
sT0, sT1, sT2, sT3, sT4, sT5 = 41, 42, 43, 44, 45, 46
sMODE = 47
SRD_A, SRD_B, SRD_C = 48, 52, 56
sMN, sMH = 60, 62
sX0 = 64
sY0, sY1 = 66, 67
sCC = 68
sNT = 69
sW = 3
sSTAMP = 70
BUDGET = 400000
NVGPR = 168

def gen(debug=False, opts=None):
    o = dict(nt_w="nt", first=4, qsleep=20, qdelay=127, fsleep=4, b1sleep=2, b2sleep=0, asleep2=0)
    if opts: o.update(opts)
    NTW = o["nt_w"]
    k = K()
    def srd(dst, ptr, nbytes):
        k(f"s_mov_b32 s{dst}, s{ptr}\ns_and_b32 s{dst+1}, s{ptr+1}, 0xffff\ns_mov_b32 s{dst+2}, {nbytes}\ns_mov_b32 s{dst+3}, 0x20000")
    def S(r): return f"s[{r}:{r+3}]"
    def V(r, n=4): return f"v[{r}:{r+n-1}]"
    def stamp(i):
        if debug: k(f"s_memrealtime s[{sSTAMP+2*i}:{sSTAMP+2*i+1}]\ns_waitcnt lgkmcnt(0)")
    def stamp_init():
        if debug:
            for i in range(16): k(f"s_mov_b32 s{sSTAMP+2*i}, 0")
        stamp(0)
    def budget_loop(L):
        k(f"s_add_u32 s{sBUD}, s{sBUD}, 1\ns_cmp_lt_u32 s{sBUD}, {BUDGET}\ns_cbranch_scc1 {L}")
    def wave_red(op, v, sdst):
        ins = {"add": "v_add_f32_dpp", "max": "v_max_f32_dpp"}[op]
        bc = " bound_ctrl:0" if op == "add" else ""
        for sh in (1, 2, 4, 8):
            k(f"{ins} v{v}, v{v}, v{v} row_shr:{sh} row_mask:0xf bank_mask:0xf{bc}")
        k(f"{ins} v{v}, v{v}, v{v} row_bcast:15 row_mask:0xa bank_mask:0xf")
        k(f"{ins} v{v}, v{v}, v{v} row_bcast:31 row_mask:0xc bank_mask:0xf")
        k(f"v_readlane_b32 s{sdst}, v{v}, 63")
    def xg(op, v, t):
        ins = {"add": "v_add_f32", "max": "v_max_f32"}[op]
        k(f"v_mov_b32 v{t}, v{v}\nv_permlane32_swap_b32 v{t}, v{v}\n{ins} v{v}, v{v}, v{t}")
        k(f"v_mov_b32 v{t}, v{v}\nv_permlane16_swap_b32 v{t}, v{v}\n{ins} v{v}, v{v}, v{t}")
    def fold4(*bases):
        for a in bases: k(f"v_permlane32_swap_b32 v{a}, v{a+1}\nv_permlane32_swap_b32 v{a+2}, v{a+3}")
        for a in bases: k(f"v_add_f32 v{a}, v{a}, v{a+1}\nv_add_f32 v{a+2}, v{a+2}, v{a+3}")
        for a in bases: k(f"v_permlane16_swap_b32 v{a}, v{a+2}")
        for a in bases: k(f"v_add_f32 v{a}, v{a}, v{a+2}")
    def unpack(dlo, dhi, src):
        k(f"v_lshlrev_b32 v{dlo}, 16, v{src}\nv_and_b32 v{dhi}, 0xffff0000, v{src}")
    def round2(a, b, t):
        k(f"v_cvt_pk_bf16_f32 v{t}, v{a}, v{b}"); unpack(a, b, t)
    def round1(a):
        k(f"v_cvt_pk_bf16_f32 v{a}, v{a}, v{a}\nv_lshlrev_b32 v{a}, 16, v{a}")
    def sent(regs, t):
        regs = list(regs)
        if len(regs) == 1: k(f"v_cmp_eq_u32 vcc, -1, v{regs[0]}"); return
        if len(regs) == 2: k(f"v_max_u32 v{t}, v{regs[0]}, v{regs[1]}"); rest = []
        else: k(f"v_max3_u32 v{t}, v{regs[0]}, v{regs[1]}, v{regs[2]}"); rest = regs[3:]
        while len(rest) >= 2: k(f"v_max3_u32 v{t}, v{t}, v{rest[0]}, v{rest[1]}"); rest = rest[2:]
        if rest: k(f"v_max_u32 v{t}, v{t}, v{rest[0]}")
        k(f"v_cmp_eq_u32 vcc, -1, v{t}")
    def neg1(a=8):
        for r in range(4): k(f"v_mov_b32 v{a+r}, -1")
    def lstore(lines):
        L1, L2 = k.newlabel("LS"), k.newlabel("LS")
        k(f"s_cmp_eq_u32 s{sMODE}, 1\ns_cbranch_scc0 {L1}")
        for l in lines: k(l)
        k(f"{L2}:")
        ool.append(f"{L1}:\n" + "\n".join(l + " sc1" for l in lines) + f"\ns_nop 1\ns_branch {L2}")
    ool = []
    def retry(loop, extra=""):
        L, C = k.newlabel("LR"), k.newlabel("LC")
        k(f"s_cbranch_vccnz {L}\n{C}:")
        ool.append(f"{L}:\n{extra}\ns_add_u32 s{sBUD}, s{sBUD}, 1\ns_cmp_lt_u32 s{sBUD}, {BUDGET}\ns_cbranch_scc1 {loop}\ns_branch {C}")
    MF = "v_mfma_f32_16x16x32_bf16"
    vL, vG, vN, vZ, vONE = 0, 1, 2, 3, 4

    k(f"""
s_cmp_ge_u32 s2, 256
s_cbranch_scc1 L_END
s_load_dwordx16 s[4:19], s[0:1], 0
s_load_dwordx8 s[20:27], s[0:1], 64
s_load_dwordx4 s[28:31], s[0:1], 96
v_lshrrev_b32 v1, 6, v0
v_readfirstlane_b32 s{sW}, v1
v_and_b32 v{vL}, 63, v0
s_and_b32 s{sT0}, s2, 7
s_lshr_b32 s{sID}, s2, 3
s_mov_b32 s{sBUD}, 0
v_lshrrev_b32 v{vG}, 4, v{vL}
v_and_b32 v{vN}, 15, v{vL}
v_mov_b32 v{vZ}, 0
v_mov_b32 v{vONE}, 1
s_mov_b32 s{sCC}, {f32(0.0625*LOG2E)}
s_cmp_eq_u32 s{sT0}, 0
s_cbranch_scc1 L_TAILWG
s_mul_i32 s{sID}, s{sID}, 7
s_add_u32 s{sID}, s{sID}, s{sT0}
s_sub_u32 s{sID}, s{sID}, 1
s_cmp_lt_u32 s{sID}, 32
s_cbranch_scc1 L_CHAIN
s_sub_u32 s{sT0}, s{sID}, 32
s_mul_i32 s{sT1}, s{sT0}, 781
s_lshr_b32 s{sT1}, s{sT1}, 14              ; a/21
s_mul_i32 s{sT2}, s{sT1}, 21
s_sub_u32 s{sT2}, s{sT0}, s{sT2}           ; a%21
s_mul_i32 s{sSP}, s{sT2}, 37
s_lshr_b32 s{sSP}, s{sSP}, 8               ; r
s_mul_i32 s{sT3}, s{sSP}, 5
s_sub_u32 s{sT3}, s{sT2}, s{sT3}           ; c + 2r
s_sub_u32 s{sT4}, s{sT3}, 7
s_cmp_ge_u32 s{sT3}, 7
s_cselect_b32 s{sT3}, s{sT4}, s{sT3}
s_mul_i32 s{sID}, s{sT1}, 7
s_add_u32 s{sID}, s{sID}, s{sT3}
s_cmp_ge_u32 s{sT0}, 189
s_cselect_b32 s{sID}, 63, s{sID}
s_cselect_b32 s{sSP}, s{sT2}, s{sSP}
""")
    KB, VB, QF, SA = 16, 80, 144, 160
    k(f"""
s_lshl_b32 s{sT0}, s{sSP}, 3
s_add_u32 s{sT0}, s{sT0}, s{sW}
s_lshl_b32 s{sT0}, s{sT0}, 14
s_lshl_b32 s{sY0}, s{sID}, 21
s_add_u32 s{sY0}, s{sY0}, {3072*512}
s_add_u32 s{sT0}, s{sT0}, s{sY0}
s_add_u32 s{sT1}, s{sT0}, 8192
v_lshlrev_b32 v5, 9, v{vN}
v_lshl_add_u32 v5, v{vG}, 4, v5            ; K: n*512 + g*16
v_lshlrev_b32 v6, 11, v{vG}
v_lshl_add_u32 v6, v{vN}, 4, v6            ; V: g*2048 + n*16
v_mov_b32 v8, 0
v_mov_b32 v9, 0
v_mov_b32 v10, 0
v_mov_b32 v11, 0
ds_write_b128 v{vZ}, v[8:11]
ds_write_b128 v{vZ}, v[8:11] offset:16
s_waitcnt lgkmcnt(0)
""")
    stamp_init()
    srd(SRD_A, P_K, 0x8000000)
    def kv_loads(dyn):
        n = 0
        seq = [("K", tl, i) for tl in range(2) for i in range(8)] + [("V", i, hf) for i in range(8) for hf in range(2)]
        for kind, a_, b_ in seq:
            if kind == "K":
                k(f"buffer_load_dwordx4 {V(KB+(a_*8+b_)*4)}, v5, {S(SRD_A)}, s{sT0+a_} offen offset:{b_*64} nt")
            else:
                k(f"buffer_load_dwordx4 {V(VB+(a_*2+b_)*4)}, v6, {S(SRD_B)}, s{sT0+(a_>>2)} offen offset:{(a_&3)*512+b_*256} nt")
            n += 1
            if not dyn and n == o["first"]:
                k("s_barrier"); srd(SRD_B, P_V, 0x8000000)
            if not dyn and n == o.get("trig0", 26):
                k(f"s_cmp_lg_u32 s{sW}, 4\ns_cbranch_scc1 L_NT0\nds_write_b32 v{vZ}, v{vONE} offset:{AL_N}\nL_NT0:")
            if not dyn and n == o.get("trigq", 32):
                k(f"s_cmp_lg_u32 s{sW}, 5\ns_cbranch_scc1 L_NTQ\nds_write_b32 v{vZ}, v{vONE} offset:{AL_P}\nL_NTQ:")
            if dyn and n == o.get("trig1", 12):
                k(f"ds_write_b32 v7, v{vONE} offset:{AL_N+4}")
    k(f"s_cmp_ge_u32 s{sW}, 8\ns_cbranch_scc1 L_DYN")
    kv_loads(False)
    k("L_KVD:")
    stamp(1)
    srd(SRD_WS, P_WS, WS_BYTES)
    k(f"""
v_lshrrev_b32 v7, 3, v{vN}
v_lshlrev_b32 v7, 9, v7
v_lshl_add_u32 v7, v{vG}, 4, v7
v_and_b32 v12, 1, v{vL}
v_cmp_eq_u32 vcc, 1, v12
v_mov_b32 v13, 0xffff
v_mov_b32 v14, 0xffff0000
v_cndmask_b32 v13, v13, v14, vcc
v_bfe_u32 v12, v{vL}, 1, 2
""")
    for r in range(4): k(f"v_cmp_eq_u32 vcc, {r}, v12\nv_cndmask_b32 v{8+r}, 0, v13, vcc")
    k(f"""
{"s_branch L_AQD" if o.get("x_fakeq") else ""}
s_cmp_ge_u32 s{sW}, 4
s_cbranch_scc1 L_AQW
s_lshl_b32 s{sT2}, s{sID}, 10
s_lshl_b32 s{sT3}, s{sW}, 8
s_add_u32 s{sT2}, s{sT2}, s{sT3}
s_add_u32 s{sT2}, s{sT2}, {WS_Q}
s_add_u32 s{sX0}, s{P_WS}, s{sT2}
s_addc_u32 s{sX0+1}, s{P_WS+1}, 0
s_cmp_eq_u32 s{sW}, 0
s_cbranch_scc1 L_AG0
L_AGL:
ds_read_b32 v12, v{vZ} offset:{AL_G}
s_waitcnt lgkmcnt(0)
v_readfirstlane_b32 s{sT4}, v12
s_cmp_lg_u32 s{sT4}, 0
s_cbranch_scc1 L_AP0
s_sleep 2
""")
    budget_loop("L_AGL")
    k(f"""
s_branch L_AP
L_AG0:
s_and_b32 s{sT3}, s2, 1
s_lshl_b32 s{sT3}, s{sT3}, 6
s_add_u32 s{sT3}, s{sT3}, {D_GQ}
L_AG:
s_load_dword s{sT4}, s[{P_DBG}:{P_DBG+1}], s{sT3} glc
s_waitcnt lgkmcnt(0)
s_cmp_lg_u32 s{sT4}, 0
s_cbranch_scc1 L_AG1
s_sleep 32
""")
    budget_loop("L_AG")
    k(f"""
L_AG1:
ds_write_b32 v{vZ}, v{vONE} offset:{AL_G}
L_AP0:
s_sleep 4
ds_read_b32 v12, v{vZ} offset:{AL_P}
s_waitcnt lgkmcnt(0)
v_readfirstlane_b32 s{sT4}, v12
s_cmp_lg_u32 s{sT4}, 0
s_cbranch_scc1 L_AP
""")
    budget_loop("L_AP0")
    k(f"""
L_AP:
s_load_dwordx16 s[4:19], s[{sX0}:{sX0+1}], 0 glc
s_load_dwordx16 s[48:63], s[{sX0}:{sX0+1}], 64 glc
s_load_dwordx16 s[84:99], s[{sX0}:{sX0+1}], 128 glc
s_load_dwordx8 s[20:27], s[{sX0}:{sX0+1}], 192 glc
s_load_dwordx8 s[76:83], s[{sX0}:{sX0+1}], 224 glc
s_waitcnt lgkmcnt(0)
s_max_u32 s{sT4}, s63, s83
s_cmp_lg_u32 s{sT4}, -1
s_cbranch_scc1 L_AF
L_AR:
s_sleep {o.get("qsleep", 10)}
""")
    budget_loop("L_AP")
    k("L_AF:")
    src = list(range(4, 20)) + list(range(48, 64)) + list(range(84, 100)) + list(range(20, 28)) + list(range(76, 84))
    for i, r in enumerate(src): k(f"v_writelane_b32 v12, s{r}, {i}")
    k(f"v_cmp_eq_u32 vcc, -1, v12\ns_cbranch_vccz L_AW\ns_cmp_lt_u32 s{sBUD}, {BUDGET}\ns_cbranch_scc1 L_AR")
    if debug:
        pass
    k(f"""
L_AW:
s_lshl_b32 s{sT3}, s{sW}, 8
v_lshlrev_b32 v13, 2, v{vL}
v_add_u32 v13, s{sT3}, v13
ds_write_b32 v13, v12 offset:{AL_Q}
s_waitcnt lgkmcnt(0)
s_mov_b64 exec, 1
ds_add_u32 v{vZ}, v{vONE} offset:{AL_QF}
s_mov_b64 exec, -1
L_AQW:
ds_read_b32 v12, v{vZ} offset:{AL_QF}
s_waitcnt lgkmcnt(0)
v_readfirstlane_b32 s{sT4}, v12
s_cmp_ge_u32 s{sT4}, 4
s_cbranch_scc1 L_AQD
s_sleep 2
""")
    budget_loop("L_AQW")
    k("L_AQD:")
    if debug:
        for i in range(3, 16): k(f"s_mov_b32 s{sSTAMP+2*i}, 0")
    stamp(2)
    for i in range(4): k(f"ds_read_b128 {V(QF+4*i)}, v7 offset:{AL_Q+i*64}")
    k("s_waitcnt vmcnt(16)")
    for i in range(8):
        k(f"s_waitcnt lgkmcnt({min(3, 7-i)})")
        for tl in range(2):
            k(f"{MF} {V(SA+4*tl)}, {V(KB+(tl*8+i)*4)}, {V(QF+4*(i&3))}, {'0' if i == 0 else V(SA+4*tl)}")
        if i < 4: k(f"ds_read_b128 {V(QF+4*i)}, v7 offset:{AL_Q+(i+4)*64}")
    PD, AS, OAC, vM, vLs = 16, 24, 40, 48, 49
    for p in range(4): round2(SA + 2 * p, SA + 2 * p + 1, 12)
    k(f"""
v_max3_f32 v12, v{SA}, v{SA+1}, v{SA+2}
v_max3_f32 v13, v{SA+3}, v{SA+4}, v{SA+5}
v_max3_f32 v12, v12, v{SA+6}, v{SA+7}
v_max_f32 v12, v12, v13
""")
    xg("max", 12, 14)
    for i in range(8):
        k(f"v_sub_f32 v{SA+i}, v{SA+i}, v12\nv_mul_f32 v{SA+i}, s{sCC}, v{SA+i}\nv_exp_f32 v{SA+i}, v{SA+i}")
    for i in range(8): k(f"v_cvt_pk_bf16_f32 v{PD+i}, v{SA+i}, v{SA+i}")
    k(f"v_add_f32 v13, v{SA}, v{SA+1}")
    for i in range(2, 8): k(f"v_add_f32 v13, v13, v{SA+i}")
    xg("add", 13, 14)
    k(f"s_mov_b32 s{sMODE}, 0\nL_ADR:")
    k(f"""
v_readlane_b32 s{sT0}, v12, 0
v_readlane_b32 s{sT1}, v12, 8
v_readlane_b32 s{sT2}, v13, 0
v_readlane_b32 s{sT3}, v13, 8
v_mov_b32 v{vM}, s{sT0}
v_mov_b32 v{vLs}, s{sT2}
s_mov_b32 exec_lo, 0
v_mov_b32 v{vM}, s{sT1}
v_mov_b32 v{vLs}, s{sT3}
s_mov_b64 exec, -1
v_lshlrev_b32 v15, 4, v{vL}
v_lshlrev_b32 v14, 3, v{vL}
s_and_b32 s{sKVH}, s{sID}, 7
s_lshr_b32 s{sB}, s{sID}, 3
v_lshrrev_b32 v5, 5, v{vL}
v_lshlrev_b32 v6, 3, v5                    ; ML: h*8
s_mul_i32 s{sY0}, s{sB}, 3
s_add_u32 s{sY0}, s{sY0}, s{sSP}
s_lshl_b32 s{sY0}, s{sY0}, 10
s_mul_i32 s{sT2}, s{sKVH}, 24576
s_add_u32 s{sY0}, s{sY0}, s{sT2}
s_add_u32 s{sY0}, s{sY0}, {WS_O}
s_lshl_b32 s{sT0}, s{sB}, 2
s_add_u32 s{sT0}, s{sT0}, s{sSP}
s_lshl_b32 s{sT5}, s{sT0}, 4
s_lshl_b32 s{sT2}, s{sKVH}, 9
s_add_u32 s{sT5}, s{sT5}, s{sT2}
s_add_u32 s{sT5}, s{sT5}, {WS_ML}
s_mov_b32 s{sNT}, 12
s_max_u32 s{sT4}, s{sMODE}, 1
s_cmp_lg_u32 s{sMODE}, 0
s_cbranch_scc1 L_MG
""")
    stamp(3)
    for i in range(8):
        a = AS + 4 * (i & 3)
        for r in range(4): k(f"v_and_b32 v{a+r}, v{PD+i}, v{8+r}")
        for hf in range(2):
            k(f"s_waitcnt vmcnt({15-(2*i+hf)})")
            k(f"{MF} {V(OAC+4*hf)}, {V(a)}, {V(VB+(i*2+hf)*4)}, {'0' if i == 0 else V(OAC+4*hf)}")
    stamp(4)
    k(f"""
s_setprio 3
L_MG:
s_mov_b64 exec, 1
ds_wrxchg_rtn_b32 v12, v{vZ}, v{vZ} offset:{AL_T}
s_mov_b64 exec, -1
s_waitcnt lgkmcnt(0)
v_readfirstlane_b32 s{sT0}, v12
s_cmp_eq_u32 s{sT0}, 0
s_cbranch_scc1 L_MLEAVE
s_and_b32 s{sT1}, s{sT0}, 0xffff
s_lshr_b32 s{sT0}, s{sT0}, 16
s_add_u32 s{sT4}, s{sT4}, s{sT0}
v_add_u32 v12, s{sT1}, v14
v_add_u32 v13, s{sT1}, v15
ds_read_b64 v[60:61], v12 offset:2048
ds_read_b128 v[52:55], v13
ds_read_b128 v[56:59], v13 offset:1024
s_waitcnt lgkmcnt(2)
v_max_f32 v62, v{vM}, v60
v_sub_f32 v63, v{vM}, v62
v_sub_f32 v60, v60, v62
v_mul_f32 v63, s{sCC}, v63
v_mul_f32 v60, s{sCC}, v60
v_exp_f32 v63, v63
v_exp_f32 v60, v60
v_mov_b32 v{vM}, v62
v_mul_f32 v{vLs}, v{vLs}, v63
v_fmac_f32 v{vLs}, v61, v60
""")
    for r in range(8): k(f"v_mul_f32 v{OAC+r}, v{OAC+r}, v63")
    k("s_waitcnt lgkmcnt(0)")
    for r in range(8): k(f"v_fmac_f32 v{OAC+r}, v{52+r}, v60")
    k(f"""
s_cmp_ge_u32 s{sT4}, s{sNT}
s_cbranch_scc1 L_MPUB
""")
    budget_loop("L_MG")
    k(f"""
s_branch L_FIN
L_MLEAVE:
s_mul_i32 s{sT1}, s{sW}, 2560
s_add_u32 s{sT1}, s{sT1}, {AL_O}
v_add_u32 v12, s{sT1}, v14
v_add_u32 v13, s{sT1}, v15
ds_write_b128 v13, {V(OAC)}
ds_write_b128 v13, {V(OAC+4)} offset:1024
ds_write_b64 v12, v[{vM}:{vLs}] offset:2048
s_lshl_b32 s{sT0}, s{sT4}, 16
s_or_b32 s{sT0}, s{sT0}, s{sT1}
v_mov_b32 v13, s{sT0}
s_waitcnt lgkmcnt(0)
s_mov_b64 exec, 1
ds_cmpst_rtn_b32 v12, v{vZ}, v{vZ}, v13 offset:{AL_T}
s_mov_b64 exec, -1
s_waitcnt lgkmcnt(0)
v_readfirstlane_b32 s{sT0}, v12
s_cmp_eq_u32 s{sT0}, 0
s_cbranch_scc1 L_FIN
""")
    budget_loop("L_MG")
    k("s_branch L_FIN")
    k("L_MPUB:")
    k(f"v_rcp_f32 v62, v{vLs}")
    for r in range(8): k(f"v_mul_f32 v{OAC+r}, v{OAC+r}, v62")
    for p in range(4): k(f"v_cvt_pk_bf16_f32 v{52+p}, v{OAC+2*p}, v{OAC+2*p+1}\nv_min_u32 v{52+p}, -2, v{52+p}")
    k(f"""
buffer_store_dwordx4 v[52:55], v15, {S(SRD_WS)}, s{sY0} offen sc1
v_min_u32 v{vM}, -2, v{vM}
v_min_u32 v{vLs}, -2, v{vLs}
s_mov_b32 exec_lo, 1
s_mov_b32 exec_hi, 1
buffer_store_dwordx2 v[{vM}:{vLs}], v6, {S(SRD_WS)}, s{sT5} offen sc1
""")
    stamp(5)
    k("s_branch L_FIN")
    k(f"""
L_DYN:
s_barrier
s_sub_u32 s{sT2}, s{sW}, 8
s_lshl_b32 s{sT2}, s{sT2}, 2
v_mov_b32 v7, s{sT2}
s_lshl_b32 s{sT2}, s{sID}, 7
s_add_u32 s{sT2}, s{sT2}, {WS_CNT}
s_add_u32 s{sX0}, s{P_WS}, s{sT2}
s_addc_u32 s{sX0+1}, s{P_WS+1}, 0
""")
    srd(SRD_B, P_V, 0x8000000)
    k(f"""
L_DW:
s_sleep 2
ds_read_b32 v12, v7 offset:{AL_N}
ds_read_b32 v13, v{vZ} offset:{AL_G}
s_waitcnt lgkmcnt(0)
v_readfirstlane_b32 s{sT4}, v12
v_readfirstlane_b32 s{sT5}, v13
s_cmp_eq_u32 s{sT4}, 2
s_cbranch_scc1 L_END
s_and_b32 s{sT4}, s{sT4}, s{sT5}
s_cbranch_scc1 L_DC
""")
    budget_loop("L_DW")
    k(f"""
s_endpgm
L_DC:
s_mov_b32 s{sT4}, 1
s_atomic_add s{sT4}, s[{sX0}:{sX0+1}], 0 glc
s_waitcnt lgkmcnt(0)
s_add_u32 s{sT4}, s{sT4}, 1
s_cmp_ge_u32 s{sT4}, 8
s_cbranch_scc1 L_DF
s_add_u32 s{sT0}, s{sT4}, 24
s_lshl_b32 s{sT0}, s{sT0}, 14
s_add_u32 s{sT0}, s{sT0}, s{sY0}
s_add_u32 s{sT1}, s{sT0}, 8192
""")
    kv_loads(True)
    k(f"""
s_branch L_KVD
L_DF:
v_mov_b32 v8, 2
v_mov_b32 v9, 2
v_mov_b32 v10, 2
v_mov_b32 v11, 2
ds_write_b128 v{vZ}, v[8:11] offset:{AL_N}
""")
    srd(SRD_WS, P_WS, WS_BYTES)
    for r in range(8): k(f"v_mov_b32 v{OAC+r}, 0")
    k(f"v_mov_b32 v12, 0xff800000\nv_mov_b32 v13, 0\ns_sub_u32 s{sSP+0}, s{sSP}, 0\ns_sub_u32 s{sMODE}, 12, s{sW}\ns_branch L_ADR")

    vSW, vTR, vRW, vL16, vBA = 5, 6, 7, 15, 14
    def svc_setup():
        k("s_waitcnt lgkmcnt(0)")
        stamp_init()
        srd(SRD_WS, P_WS, WS_BYTES); srd(SRD_B, P_DBG, 256)
        k(f"""
v_cmp_lt_u32 s[{sMN}:{sMN+1}], 7, v{vN}
v_lshlrev_b32 v{vL16}, 4, v{vL}
v_bfe_u32 v8, v{vL}, 1, 2
v_bfe_u32 v9, v{vL}, 4, 2
v_xor_b32 v8, v8, v9
v_lshlrev_b32 v8, 5, v8
v_and_b32 v9, 1, v{vL}
v_lshl_add_u32 v{vSW}, v9, 4, v8
s_and_b32 s{sT5}, s{sW}, 3
""")
    def svc_setup2():
        k(f"""
v_bfe_u32 v8, v{vL}, 2, 2
v_lshl_add_u32 v{vTR}, v{vG}, 2, v8        ; 4g + r
v_mul_u32_u24 v{vRW}, 928, v{vTR}
v_and_b32 v8, 3, v{vL}
v_lshl_add_u32 v{vRW}, v8, 4, v{vRW}
v_and_b32 v{vBA}, 7, v{vN}
v_lshlrev_b32 v{vBA}, 4, v{vBA}
v_lshl_add_u32 v{vBA}, v{vG}, 7, v{vBA}
""")
    def code_prefetch(tag, sidx):
        k(f"""
s_getpc_b64 s[{sX0}:{sX0+1}]
L_PC{tag}:
s_sub_u32 s{sX0}, s{sX0}, L_PC{tag}-{KNAME}_kernel
s_subb_u32 s{sX0+1}, s{sX0+1}, 0
v_lshlrev_b32 v12, 7, v{vL}
s_lshl_b32 s{sT0}, s{sidx}, 13
v_add_u32 v12, s{sT0}, v12
v_cmp_gt_u32 vcc, L_CODE_END-{KNAME}_kernel, v12
s_and_b64 exec, exec, vcc
s_cbranch_execz L_NOPF{tag}
global_load_dword v13, v12, s[{sX0}:{sX0+1}]
L_NOPF{tag}:
s_mov_b64 exec, -1
""")
    def dma_tile(srdreg, pitch, scol, buf):
        k(f"""
v_lshrrev_b32 v8, 3, v{vL}
v_mul_u32_u24 v8, {pitch}, v8
v_add_u32 v8, v8, v{vSW}
s_mul_i32 s{sT2}, s{sW}, {56*pitch}
s_add_u32 s{sT2}, s{sT2}, s{scol}
s_mul_i32 s{sT3}, s{sW}, 7168
s_add_u32 s{sT3}, s{sT3}, {buf}
""")
        for i in range(7):
            k(f"s_mov_b32 m0, s{sT3}\nbuffer_load_dwordx4 v8, {S(srdreg)}, s{sT2} offen {NTW} lds")
            if i < 6: k(f"s_add_u32 s{sT2}, s{sT2}, {8*pitch}\ns_add_u32 s{sT3}, s{sT3}, 1024")
    def dma_rows(srdreg, srow, buf):
        k(f"""
s_lshl_b32 s{sT2}, s{sW}, 3
s_mul_i32 s{sT3}, s{sT2}, 928
s_add_u32 s{sT3}, s{sT3}, {buf}
s_add_u32 s{sT2}, s{sT2}, s{srow}
s_mul_i32 s{sT2}, s{sT2}, 896
s_mov_b32 exec_hi, 0x00ffffff
""")
        for i in range(8):
            k(f"s_mov_b32 m0, s{sT3}\nbuffer_load_dwordx4 v{vL16}, {S(srdreg)}, s{sT2} offen {NTW} lds")
            if i < 7: k(f"s_add_u32 s{sT2}, s{sT2}, 896\ns_add_u32 s{sT3}, s{sT3}, 928")
        k("s_mov_b64 exec, -1")
    def frag_tile(dst, vaddr):
        for t in range(14):
            k(f"ds_read_b64_tr_b16 {V(dst+4*t,2)}, v{vaddr} offset:{t*4096}\nds_read_b64_tr_b16 {V(dst+4*t+2,2)}, v{vaddr} offset:{t*4096+2048}")
            if t in (6, 13): k("s_waitcnt lgkmcnt(0)")
    def tile_addr(dst, sq, sbuf):
        k(f"""
v_lshrrev_b32 v8, 1, v{vTR}
v_and_b32 v8, 3, v8
v_xor_b32 v8, s{sq}, v8
v_lshlrev_b32 v8, 5, v8
v_lshl_add_u32 v8, v{vTR}, 7, v8
v_and_b32 v9, 3, v{vL}
v_lshl_add_u32 v8, v9, 3, v8
v_add_u32 v{dst}, {sbuf}, v8
""")
    def frag_rows(dst, buf):
        L = k.newlabel("LFR")
        k(f"s_cmp_ge_u32 s{sW}, 7\ns_cbranch_scc1 {L}")
        k(f"s_lshl_b32 s{sT2}, s{sW}, 7\ns_add_u32 s{sT2}, s{sT2}, {buf}\nv_add_u32 v8, s{sT2}, v{vRW}")
        for T in range(2):
            for q in range(4):
                r = dst + (T * 4 + q) * 4
                qo = (q >> 1) * 64 + (q & 1) * 8
                k(f"ds_read_b64_tr_b16 {V(r,2)}, v8 offset:{T*29696+qo}\nds_read_b64_tr_b16 {V(r+2,2)}, v8 offset:{T*29696+qo+14848}")
            k("s_waitcnt lgkmcnt(0)")
        k(f"{L}:")
    def poll_flag(off, name, sleep=2):
        k(f"""
s_mov_b64 exec, 1
{name}:
buffer_load_dword v9, v{vZ}, {S(SRD_B)}, 0 offen offset:{off} sc1
s_waitcnt vmcnt(0)
v_cmp_eq_u32 vcc, 0, v9
s_cbranch_vccz {name}D
s_sleep {sleep}
""")
        budget_loop(name)
        k(f"{name}D:\ns_mov_b64 exec, -1")
    def ln_stats(X, vmean, vrden):
        k(f"v_add_f32 v8, v{X}, v{X+1}\nv_add_f32 v9, v{X+2}, v{X+3}\nv_add_f32 v12, v{X+4}, v{X+5}\nv_add_f32 v13, v{X+6}, v{X+7}")
        k("v_add_f32 v8, v8, v9\nv_add_f32 v12, v12, v13\nv_add_f32 v8, v8, v12")
        wave_red("add", 8, sT2)
        k(f"v_mov_b32 v12, {f32(1.0/448)}\nv_mul_f32 v{vmean}, s{sT2}, v12")
        for c in range(8):
            k(f"v_sub_f32 v9, v{X+c}, v{vmean}")
            k("v_mul_f32 v8, v9, v9" if c == 0 else "v_fmac_f32 v8, v9, v9")
        k("v_cndmask_b32 v8, 0, v8, vcc")
        wave_red("add", 8, sT2)
        k(f"v_mul_f32 v{vrden}, s{sT2}, v12")
        round2(vmean, vrden, 8)
        k(f"v_add_f32 v{vrden}, {f32(1e-5)}, v{vrden}"); round1(vrden)
        k(f"v_sqrt_f32 v{vrden}, v{vrden}"); round1(vrden)
        k(f"v_rcp_f32 v{vrden}, v{vrden}")
    def chunk_dst(dst):
        k(f"""
v_lshrrev_b32 v11, 2, v{vL}
v_lshlrev_b32 v11, 9, v11
v_and_b32 v12, 1, v{vL}
v_lshl_add_u32 v11, v12, 8, v11
v_bfe_u32 v12, v{vL}, 1, 1
v_lshl_add_u32 v11, v12, 3, v11
s_lshl_b32 s{sT1}, s{sW}, 4
v_add_u32 v{dst}, s{sT1}, v11
""")
    def counter_go(off_c, last, off_go, name):
        k(f"""
s_mov_b64 exec, 1
v_mov_b32 v9, 1
buffer_atomic_add v9, v{vZ}, {S(SRD_B)}, 0 offen offset:{off_c} sc0 sc1
s_waitcnt vmcnt(0)
v_readfirstlane_b32 s{sT1}, v9
s_cmp_lg_u32 s{sT1}, {last}
s_cbranch_scc1 {name}
buffer_store_dword v{vONE}, v{vZ}, {S(SRD_B)}, 0 offen offset:{off_go} sc1
{name}:
s_mov_b64 exec, -1
""")

    WF, AF, D0 = 48, 104, 160
    CV, XR, LNV, SAv, CAv = 16, 20, 24, 28, 32
    k("L_CHAIN:")
    svc_setup()
    svc_setup2()
    def tile_mfma(lbase):
        for t in range(14): k(f"ds_read_b128 {V(AF+4*t)}, v{vBA} offset:{lbase+t*512}")
        k(f"""
v_and_b32 v8, 7, v{vN}
v_mul_u32_u24 v8, 144, v8
v_lshl_add_u32 v8, v{vG}, 3, v8
s_lshr_b32 s{sT2}, s{sW}, 2
s_mul_i32 s{sT2}, s{sT2}, 1152
s_lshl_b32 s{sT3}, s{sT5}, 5
s_add_u32 s{sT2}, s{sT2}, s{sT3}
v_add_u32 v8, s{sT2}, v8
""")
        for t in range(14):
            k(f"s_waitcnt lgkmcnt({13-t})")
            k(f"{MF} {V(D0)}, {V(WF+4*t)}, {V(AF+4*t)}, {'0' if t == 0 else V(D0)}")
        k(f"""
v_cvt_pk_bf16_f32 v10, v{D0}, v{D0+1}
v_cvt_pk_bf16_f32 v11, v{D0+2}, v{D0+3}
v_min_u32 v10, -2, v10
v_min_u32 v11, -2, v11
ds_write_b64 v8, v[10:11] offset:{L_T}
s_waitcnt lgkmcnt(0)
""")
    def stage_pub(pitch_shift, soff):
        k(f"""
v_lshrrev_b32 v12, 3, v{vL}
v_mul_u32_u24 v13, 144, v12
v_and_b32 v9, 7, v{vL}
v_lshl_add_u32 v13, v9, 4, v13
s_lshr_b32 s{sT2}, s{sW}, 2
s_mul_i32 s{sT3}, s{sT2}, 1152
v_add_u32 v13, s{sT3}, v13
v_lshlrev_b32 v12, {pitch_shift}, v12
v_lshl_add_u32 v12, v9, 4, v12
ds_read_b128 v[8:11], v13 offset:{L_T}
s_lshl_b32 s{sT2}, s{sT2}, 7
s_add_u32 s{sT2}, s{sT2}, s{soff}
s_waitcnt lgkmcnt(0)
buffer_store_dwordx4 v[8:11], v12, {S(SRD_WS)}, s{sT2} offen sc1
""")

    def spoll(off, name):
        k(f"""
{name}:
s_load_dword s{sT1}, s[{P_DBG}:{P_DBG+1}], {off} glc
s_waitcnt lgkmcnt(0)
s_cmp_lg_u32 s{sT1}, 0
s_cbranch_scc1 {name}D
s_sleep 6
""")
        budget_loop(name)
        k(f"{name}D:")
    k(f"""
s_mul_i32 s{sY0}, s{sID}, 384
s_sub_u32 s{sY0}, s{sY0}, {28*128}         ; first tile column bytes: (14+3(k-14))*128 for k<28
s_lshl_b32 s{sT1}, s{sID}, 8               ;                          (56+2(k-28))*128 for k>=28
s_cmp_ge_u32 s{sID}, 28
s_cselect_b32 s{sY0}, s{sT1}, s{sY0}
s_lshl_b32 s{sY1}, s{sID}, 7
s_cmp_lt_u32 s{sW}, 8
s_cbranch_scc1 L_C8
""")
    srd(SRD_A, P_X, 7168)
    k(f"""
s_setprio 3
s_mul_i32 s{sT1}, s{sT5}, 1792
buffer_load_dwordx4 v[16:19], v{vL16}, {S(SRD_A)}, s{sT1} offen
buffer_load_dwordx4 v[20:23], v{vL16}, {S(SRD_A)}, s{sT1} offen offset:896
""")
    neg1()
    k(f"s_cmp_ge_u32 s{sID}, 7\ns_cbranch_scc1 L_CNP")
    code_prefetch("C", sT5)
    k(f"""
L_CNP:
s_cmp_lt_u32 s{sID}, 14
s_cbranch_scc1 L_CX
s_cmp_eq_u32 s{sW}, 9
s_cbranch_scc1 L_CLQ
s_cmp_lg_u32 s{sW}, 8
s_cbranch_scc1 L_CX
s_cmp_lg_u32 s{sID}, 28
s_cbranch_scc1 L_CX
s_mov_b32 s{sT0}, {WS_MU}
L_CLM:
""")
    for i in range(4): k(f"buffer_store_dwordx4 v[8:11], v{vL16}, {S(SRD_WS)}, s{sT0} offen offset:{i*1024} sc1")
    k(f"""
s_add_u32 s{sT0}, s{sT0}, 4096
s_cmp_lt_u32 s{sT0}, {WS_MU+16384}
s_cbranch_scc1 L_CLM
s_waitcnt vmcnt(0)
s_mov_b64 exec, 1
buffer_store_dword v{vONE}, v{vZ}, {S(SRD_B)}, 0 offen offset:{D_GA} sc1
s_mov_b64 exec, -1
s_branch L_CX
L_CLQ:
s_sub_u32 s{sT0}, s{sID}, 14
s_mul_i32 s{sT0}, s{sT0}, 15360
s_add_u32 s{sT0}, s{sT0}, {WS_Q}
""")
    for i in range(15):
        k(f"buffer_store_dwordx4 v[8:11], v{vL16}, {S(SRD_WS)}, s{sT0} offen offset:{(i&3)*1024} sc1")
        if i & 3 == 3: k(f"s_add_u32 s{sT0}, s{sT0}, 4096")
    k(f"""
s_mov_b32 s{sT1}, 1
s_waitcnt vmcnt(0)
s_atomic_add s{sT1}, s[{P_DBG}:{P_DBG+1}], {D_CC} glc
s_waitcnt lgkmcnt(0)
s_cmp_lg_u32 s{sT1}, 17
s_cbranch_scc1 L_CX
s_mov_b64 exec, 1
buffer_store_dword v{vONE}, v{vZ}, {S(SRD_B)}, 0 offen offset:{D_GQ} sc1
buffer_store_dword v{vONE}, v{vZ}, {S(SRD_B)}, 0 offen offset:{D_GQ+64} sc1
buffer_store_dword v{vONE}, v{vZ}, {S(SRD_B)}, 0 offen offset:{D_GB} sc1
s_mov_b64 exec, -1
L_CX:
s_waitcnt vmcnt(0)
v_cmp_gt_u32 vcc, 56, v{vL}
""")
    for rr in range(2):
        for r in range(4):
            k(f"v_cndmask_b32 v{16+4*rr+r}, 0, v{16+4*rr+r}, vcc")
            unpack(36 + 2 * r, 37 + 2 * r, 16 + 4 * rr + r)
        ln_stats(36, 10, 11)
        for c in range(8): k(f"v_sub_f32 v{36+c}, v{36+c}, v10")
        for p in range(4): round2(36 + 2 * p, 37 + 2 * p, 8)
        for p in range(4):
            k(f"v_mul_f32 v{36+2*p}, v{36+2*p}, v11\nv_mul_f32 v{37+2*p}, v{37+2*p}, v11\nv_cvt_pk_bf16_f32 v{16+4*rr+p}, v{36+2*p}, v{37+2*p}")
    k(f"""
s_cmp_ge_u32 s{sID}, 14
s_cbranch_scc1 L_SGQ
s_cmp_lg_u32 s{sW}, 8
s_cbranch_scc1 L_SGAD
s_branch L_SGA
L_SGQ:
s_sleep 48
""")
    spoll(D_GA, "L_SGA")
    stamp(1)
    k(f"""
s_cmp_ge_u32 s{sID}, 14
s_cbranch_scc1 L_HN
s_barrier            ; c1
s_barrier            ; u1
s_barrier            ; u2
L_HN:
v_lshrrev_b32 v11, 2, v{vL}
v_lshlrev_b32 v11, 9, v11
v_and_b32 v12, 1, v{vL}
v_lshl_add_u32 v11, v12, 8, v11
v_bfe_u32 v12, v{vL}, 1, 1
v_lshl_add_u32 v11, v12, 3, v11
s_lshl_b32 s{sT1}, s{sT5}, 5
v_add_u32 v13, s{sT1}, v11
s_lshl_b32 s{sT0}, s{sT5}, 12
s_add_u32 s{sT0}, s{sT0}, {WS_MU}
s_mov_b32 exec_hi, 0x00ffffff
L_MU:
""")
    for rr in range(2):
        k(f"buffer_load_dwordx4 {V(24+8*rr)}, v{vL16}, {S(SRD_WS)}, s{sT0} offen offset:{rr*2048} sc1")
        k(f"buffer_load_dwordx4 {V(28+8*rr)}, v{vL16}, {S(SRD_WS)}, s{sT0} offen offset:{rr*2048+896} sc1")
    k("s_waitcnt vmcnt(0)")
    sent(range(24, 40), 8)
    retry("L_MU", "s_mov_b64 exec, vcc\ns_sleep 4")
    k("s_mov_b32 exec_lo, -1\ns_mov_b32 exec_hi, 0x00ffffff")
    stamp(4)
    for rr in range(2):
        for p in range(4):
            unpack(8, 9, 28 + 8 * rr + p)
            k("v_add_f32 v8, 1.0, v8\nv_add_f32 v9, 1.0, v9")
            round2(8, 9, 10)
            unpack(10, 11, 16 + 4 * rr + p)
            k("v_mul_f32 v8, v8, v10\nv_mul_f32 v9, v9, v11")
            round2(8, 9, 10)
            unpack(10, 11, 24 + 8 * rr + p)
            k(f"v_add_f32 v8, v8, v10\nv_add_f32 v9, v9, v11\nv_cvt_pk_bf16_f32 v{24+8*rr+p}, v8, v9")
        k(f"ds_write_b64 v13, {V(24+8*rr,2)} offset:{L_H+16*rr}\nds_write_b64 v13, {V(26+8*rr,2)} offset:{L_H+128+16*rr}")
    k("s_mov_b64 exec, -1")
    k(f"s_cmp_lg_u32 s{sW}, 8\ns_cbranch_scc1 L_SGBD")
    spoll(D_GB, "L_SGB")
    k(f"""
s_waitcnt lgkmcnt(0)
s_cmp_lt_u32 s{sID}, 14
s_cbranch_scc1 L_HM
s_barrier            ; c1
s_barrier            ; q1
L_HM:
s_barrier            ; c2
s_cmp_ge_u32 s{sID}, 28
s_cbranch_scc1 L_FIN
""")
    tile_addr(10, sT5, L_A)
    frag_tile(WF, 10)
    tile_mfma(L_H)
    k(f"""
s_barrier            ; c3
s_cmp_lg_u32 s{sW}, 8
s_cbranch_scc1 L_FIN
s_sub_u32 s{sT1}, s{sY1}, 256
s_cmp_lt_u32 s{sID}, 14
s_cselect_b32 s{sT1}, s{sT1}, s{sY0}
s_add_u32 s{sT1}, s{sT1}, {WS_Q}
""")
    stage_pub(13, sT1)
    stamp(6)
    k("s_branch L_FIN")
    k("L_C8:")
    srd(SRD_A, P_C, 7168)
    k(f"s_lshl_b32 s{sT1}, s{sW}, 10\nbuffer_load_dwordx4 {V(CV)}, v{vL16}, {S(SRD_A)}, s{sT1} offen")
    srd(SRD_C, P_WQ, 448 * 8192); srd(SRD_A, P_WM, 448 * 5376)
    k(f"s_cmp_ge_u32 s{sID}, 14\ns_cbranch_scc1 L_R1Q")
    dma_tile(SRD_A, 5376, sY1, L_A)
    k("s_branch L_R1D\nL_R1Q:")
    k(f"""
v_lshrrev_b32 v8, 3, v{vL}
v_lshlrev_b32 v8, 13, v8
v_add_u32 v8, v8, v{vSW}
v_add_u32 v9, 128, v8
s_mul_i32 s{sT2}, s{sW}, {56*8192}
s_add_u32 s{sT2}, s{sT2}, s{sY0}
s_mul_i32 s{sT3}, s{sW}, 7168
s_add_u32 s{sT1}, s{sT3}, {L_B}
s_add_u32 s{sT3}, s{sT3}, {L_A}
""")
    for i in range(7):
        k(f"s_mov_b32 m0, s{sT3}\nbuffer_load_dwordx4 v8, {S(SRD_C)}, s{sT2} offen {NTW} lds")
        k(f"s_mov_b32 m0, s{sT1}\nbuffer_load_dwordx4 v9, {S(SRD_C)}, s{sT2} offen {NTW} lds")
        L = k.newlabel("LT3")
        k(f"s_cmp_ge_u32 s{sID}, 28\ns_cbranch_scc1 {L}")
        k(f"buffer_load_dwordx4 {V(AF+4*i)}, v8, {S(SRD_C)}, s{sT2} offen offset:256 {NTW}\n{L}:")
        if i < 6: k(f"s_add_u32 s{sT2}, s{sT2}, {8*8192}\ns_add_u32 s{sT3}, s{sT3}, 1024\ns_add_u32 s{sT1}, s{sT1}, 1024")
    k("L_R1D:")
    k("s_waitcnt vmcnt(7)")
    stamp(1)
    k(f"s_cmp_eq_u32 s{sW}, 7\ns_cbranch_scc1 L_NOSILU")
    k(f"s_mov_b32 s{sT3}, {f32(-LOG2E)}")
    for r in range(4):
        unpack(8, 9, CV + r)
        k(f"""
v_mul_f32 v10, s{sT3}, abs(v8)
v_mul_f32 v11, s{sT3}, abs(v9)
v_exp_f32 v10, v10
v_exp_f32 v11, v11
v_add_f32 v12, 1.0, v10
v_add_f32 v13, 1.0, v11
v_rcp_f32 v12, v12
v_rcp_f32 v13, v13
v_mul_f32 v10, v10, v12                    ; sigmoid(-|x|)
v_mul_f32 v11, v11, v13
v_max_f32 v12, 0, v8
v_max_f32 v13, 0, v9
v_fma_f32 v8, -abs(v8), v10, v12
v_fma_f32 v9, -abs(v9), v11, v13
v_cvt_pk_bf16_f32 v{CV+r}, v8, v9
""")
    k(f"""
s_lshl_b32 s{sT1}, s{sW}, 6
v_add_u32 v8, s{sT1}, v{vL}
v_mul_u32_u24 v9, 1171, v8
v_lshrrev_b32 v9, 16, v9                   ; m
v_mul_u32_u24 v10, 56, v9
v_sub_u32 v10, v8, v10                     ; cc
v_lshrrev_b32 v11, 2, v10
v_lshlrev_b32 v11, 9, v11
v_lshl_add_u32 v11, v9, 4, v11
v_and_b32 v12, 1, v10
v_lshl_add_u32 v11, v12, 8, v11
v_bfe_u32 v12, v10, 1, 1
v_lshl_add_u32 v11, v12, 3, v11
ds_write_b64 v11, {V(CV,2)} offset:{L_SC}
ds_write_b64 v11, {V(CV+2,2)} offset:{L_SC+128}
L_NOSILU:
""")
    k("s_waitcnt vmcnt(0) lgkmcnt(0)\ns_barrier            ; c1")
    stamp(2)
    def frag_ab():
        k(f"s_mov_b32 s{sT1}, {L_B}\ns_cmp_lt_u32 s{sW}, 4\ns_cselect_b32 s{sT1}, {L_A}, s{sT1}")
        tile_addr(10, sT5, f"s{sT1}")
        frag_tile(WF, 10)
    k(f"s_cmp_ge_u32 s{sID}, 14\ns_cbranch_scc1 L_CQ")
    k(f"s_cmp_ge_u32 s{sW}, 4\ns_cbranch_scc1 L_U1")
    frag_ab()
    tile_mfma(L_SC)
    k("L_U1:\ns_barrier            ; u1")
    k(f"s_cmp_lg_u32 s{sW}, 0\ns_cbranch_scc1 L_U2")
    k(f"s_add_u32 s{sT1}, s{sY1}, {WS_MU}")
    stage_pub(11, sT1)
    stamp(3)
    k("L_U2:\ns_barrier            ; u2")
    dma_tile(SRD_C, 8192, sY1, L_A)
    k("s_waitcnt vmcnt(0)\ns_barrier            ; c2\ns_barrier            ; c3\ns_branch L_CLZ")
    k("L_CQ:")
    frag_ab()
    k(f"s_barrier            ; q1\ns_mul_i32 s{sT2}, s{sW}, 7168\ns_add_u32 s{sT2}, s{sT2}, {L_A}\nv_add_u32 v8, s{sT2}, v{vL16}")
    for i in range(7): k(f"ds_write_b128 v8, {V(AF+4*i)} offset:{i*1024}")
    k("s_waitcnt lgkmcnt(0)\ns_barrier            ; c2")
    tile_mfma(L_H)
    k("s_barrier            ; c3")
    k(f"s_cmp_lg_u32 s{sT5}, 0\ns_cbranch_scc1 L_CQ2")
    k(f"s_add_u32 s{sT1}, s{sY0}, {WS_Q}")
    stage_pub(13, sT1)
    stamp(5)
    k(f"L_CQ2:\ns_cmp_ge_u32 s{sID}, 28\ns_cbranch_scc1 L_FIN")
    k("L_CLZ:\ns_barrier            ; c7")
    k(f"s_add_u32 s{sT1}, s{sY1}, {14*128}")
    dma_tile(SRD_A, 5376, sT1, L_B)
    k("s_waitcnt vmcnt(0)\ns_barrier            ; c8")
    k(f"s_cmp_lt_u32 s{sW}, 4\ns_cbranch_scc1 L_FIN")
    frag_ab()
    tile_mfma(L_SC)
    k("s_barrier            ; c9")
    k(f"s_cmp_lg_u32 s{sW}, 4\ns_cbranch_scc1 L_FIN")
    k(f"s_add_u32 s{sT1}, s{sY1}, {WS_M-128}")
    stage_pub(12, sT1)
    k("s_waitcnt vmcnt(0)")
    counter_go(D_CM, 27, D_GM, "L_CG1")
    stamp(7)
    k("s_branch L_FIN")

    FW, F2, F13 = 16, 80, 16
    k("L_TAILWG:")
    if o.get("x_notw"): k("s_endpgm")
    svc_setup()
    k(f"s_mov_b32 s{sMODE}, 0\ns_cmp_lt_u32 s{sW}, 8\ns_cbranch_scc1 L_T8")
    neg1()
    k(f"""
s_sub_u32 s{sT5}, s{sW}, 8
s_cmp_lg_u32 s{sW}, 10
s_cbranch_scc1 L_TC3
s_setprio 3
s_getreg_b32 s{sT1}, hwreg(HW_REG_XCC_ID, 0, 4)
s_mul_i32 s{sT2}, s{sT1}, s{sT1}
s_lshl_b32 s{sT2}, s{sT2}, 16
s_lshl_b32 s{sT1}, s{sT1}, 6
s_add_u32 s{sT2}, s{sT2}, s{sT1}
s_add_u32 s{sT2}, s{sT2}, 1                ; 1 | x<<6 | x^2<<16
v_mov_b32 v12, s{sT2}
s_mov_b64 exec, 1
buffer_atomic_add v12, v{vZ}, {S(SRD_B)}, 0 offen offset:{D_XC} sc0 sc1
s_waitcnt vmcnt(0)
v_readfirstlane_b32 s{sT1}, v12
s_add_u32 s{sT1}, s{sT1}, s{sT2}
s_and_b32 s{sT2}, s{sT1}, 63
s_cmp_lg_u32 s{sT2}, 32
s_cbranch_scc1 L_TC5
s_bfe_u32 s{sT2}, s{sT1}, 0xa0006
s_mul_i32 s{sT2}, s{sT2}, s{sT2}
s_lshr_b32 s{sT1}, s{sT1}, 16
s_lshl_b32 s{sT1}, s{sT1}, 5
s_cmp_eq_u32 s{sT1}, s{sT2}
s_cselect_b32 s{sT1}, {2 if o.get("slow") else 1}, 2
v_mov_b32 v12, s{sT1}
buffer_store_dword v12, v{vZ}, {S(SRD_B)}, 0 offen offset:{D_MODE} sc1
L_TC5:
s_mov_b64 exec, -1
s_setprio 0
L_TC3:
s_cmp_lg_u32 s{sID}, 31
s_cbranch_scc1 L_T9
""")
    code_prefetch("T", sT5)
    k(f"""
s_branch L_T9
L_T8:
""")
    srd(SRD_C, P_WO, 4096 * 896)
    k(f"""
v_mul_u32_u24 v8, 37, v{vL}
v_lshrrev_b32 v8, 9, v8                    ; l/14
v_mul_u32_u24 v9, 14, v8
v_sub_u32 v9, v{vL}, v9
v_mul_u32_u24 v8, 896, v8
v_lshl_add_u32 v8, v9, 4, v8
s_lshr_b32 s{sT1}, s{sID}, 2
s_lshl_b32 s{sT1}, s{sT1}, 9
s_lshl_b32 s{sT2}, s{sW}, 5
s_add_u32 s{sT1}, s{sT1}, s{sT2}
s_mul_i32 s{sT1}, s{sT1}, 896
s_and_b32 s{sT2}, s{sID}, 3
s_mul_i32 s{sT2}, s{sT2}, 224
s_add_u32 s{sT2}, s{sT2}, s{sT1}
s_mul_i32 s{sT3}, s{sW}, 7168
s_add_u32 s{sT3}, s{sT3}, {L_A}
s_mov_b32 exec_hi, 0x00ffffff
""")
    for i in range(16):
        k(f"s_mov_b32 m0, s{sT3}\nbuffer_load_dwordx4 v8, {S(SRD_C)}, s{sT2} offen {NTW} lds")
        if i == 7: k(f"s_add_u32 s{sT2}, s{sT2}, {(256-28)*896}\ns_sub_u32 s{sT3}, s{sT3}, {L_A-L_B+7*896}")
        elif i < 15: k(f"s_add_u32 s{sT2}, s{sT2}, {4*896}\ns_add_u32 s{sT3}, s{sT3}, 896")
    k("s_mov_b64 exec, -1")
    k("L_T9:")
    svc_setup2()
    isF = f"s_cmp_ge_u32 s{sID}, 28"
    def frag_wo(dst, buf):
        L = k.newlabel("LFW")
        k(f"s_cmp_ge_u32 s{sW}, 7\ns_cbranch_scc1 {L}")
        k(f"v_mul_u32_u24 v8, 224, v{vTR}\nv_and_b32 v9, 3, v{vL}\nv_lshl_add_u32 v8, v9, 3, v8")
        k(f"s_lshl_b32 s{sT2}, s{sW}, 5\ns_add_u32 s{sT2}, s{sT2}, {buf}\nv_add_u32 v8, s{sT2}, v8")
        for T in range(8):
            k(f"ds_read_b64_tr_b16 {V(dst+4*T,2)}, v8 offset:{T*7168}\nds_read_b64_tr_b16 {V(dst+4*T+2,2)}, v8 offset:{T*7168+3584}")
            if T in (3, 7): k("s_waitcnt lgkmcnt(0)")
        k(f"{L}:")
    def if_loader(fn):
        L = k.newlabel("LL")
        k(f"s_cmp_ge_u32 s{sW}, 8\ns_cbranch_scc1 {L}\n{isF}\ns_cbranch_scc1 {L}")
        fn()
        k(f"{L}:")
    k("s_waitcnt vmcnt(8)\ns_barrier            ; t1")
    stamp(1)
    frag_wo(FW, L_A)
    k("s_barrier            ; t2")
    def ld_w2():
        srd(SRD_A, P_W2, 1792 * 896)
        k(f"s_lshl_b32 s{sT1}, s{sID}, 6")
        dma_rows(SRD_A, sT1, L_A)
        k("s_waitcnt vmcnt(8)\ns_branch L_T10")
    if_loader(ld_w2)
    k("s_waitcnt vmcnt(0)\nL_T10:\ns_barrier            ; t3")
    stamp(2)
    frag_wo(FW + 32, L_B)
    k("s_barrier            ; t4")
    def ld_w1():
        srd(SRD_A, P_W1, 448 * 3584)
        k(f"s_lshl_b32 s{sT1}, s{sID}, 7")
        dma_tile(SRD_A, 3584, sT1, L_B)
        k("s_waitcnt vmcnt(7)\ns_branch L_T14")
    if_loader(ld_w1)
    k(f"s_cmp_lt_u32 s{sW}, 8\ns_cbranch_scc1 L_T11\ns_cmp_eq_u32 s{sW}, 11\ns_cbranch_scc1 L_T11")
    poll_flag(D_MODE, "L_PM", sleep=4)
    k(f"v_readfirstlane_b32 s{sMODE}, v9\n{isF}\ns_cbranch_scc1 L_T11")
    neg1()
    k(f"""
s_cmp_eq_u32 s{sW}, 10
s_cbranch_scc1 L_T12
s_mul_i32 s{sT0}, s{sID}, 4352
s_add_u32 s{sT0}, s{sT0}, {WS_PA}
s_add_u32 s{sT1}, s{sT0}, 8192
s_cmp_eq_u32 s{sW}, 8
s_cbranch_scc1 L_T13
s_mul_i32 s{sT0}, s{sID}, 8448
s_add_u32 s{sT0}, s{sT0}, {WS_PB}
s_add_u32 s{sT1}, s{sT0}, 12288
L_T13:
""")
    lstore([f"buffer_store_dwordx4 v[8:11], v{vL16}, {S(SRD_WS)}, s{sT0} offen offset:{i*1024}" for i in range(4)])
    k(f"""
s_add_u32 s{sT0}, s{sT0}, 4096
s_cmp_lt_u32 s{sT0}, s{sT1}
s_cbranch_scc1 L_T13
s_branch L_T11
L_T12:
s_cmp_ge_u32 s{sID}, 8
s_cbranch_scc1 L_T11
s_lshl_b32 s{sT0}, s{sID}, 10
s_add_u32 s{sT0}, s{sT0}, {WS_X1}
""")
    lstore([f"buffer_store_dwordx4 v[8:11], v{vL16}, {S(SRD_WS)}, s{sT0} offen"])
    k("L_T11:")
    k("s_waitcnt vmcnt(0)\nL_T14:\ns_barrier            ; t5")
    stamp(3)
    k(f"s_cmp_lg_u32 s{sW}, 8\ns_cbranch_scc1 L_T15")
    counter_go(D_CB, 31, D_GO2, "L_CG2")
    k("L_T15:")
    k(f"{isF}\ns_cbranch_scc1 L_T16")
    frag_rows(F2, L_A)
    k("L_T16:\ns_barrier            ; t6")
    def ld_w3():
        srd(SRD_A, P_W3, 448 * 3584)
        k(f"s_lshl_b32 s{sT1}, s{sID}, 7")
        dma_tile(SRD_A, 3584, sT1, L_A)
    if_loader(ld_w3)
    k(f"s_cmp_lg_u32 s{sW}, 8\ns_cbranch_scc1 L_T17")
    poll_flag(D_GO2, "L_G1", sleep=8)
    poll_flag(D_GB, "L_G1B", sleep=8)
    k(f"v_mov_b32 v9, s{sMODE}\nds_write_b32 v{vZ}, v9 offset:{L_T}")
    k("L_T17:\ns_waitcnt vmcnt(0) lgkmcnt(0)\ns_barrier            ; t7")
    stamp(4)
    if o.get("x_notail"): k("s_branch L_FIN")
    k(f"ds_read_b32 v9, v{vZ} offset:{L_T}\ns_waitcnt lgkmcnt(0)\nv_readfirstlane_b32 s{sMODE}, v9")
    srd(SRD_A, P_X, 7168); srd(SRD_C, P_OUT, 7168)
    k(f"v_lshlrev_b32 v13, 1, v{vL}\ns_mov_b32 s{sY0}, 0\ns_mov_b32 s{sY1}, 0\ns_mov_b32 s{sT4}, 0")
    MC, MS = 160, 164
    vGA, vGB, vXX, vX1 = 152, 154, 156, 158
    vOAW, vST = 152, 153
    k(f"""
v_mov_b32 v{vST}, 0
v_mov_b32 v12, 0
s_cmp_ge_u32 s{sW}, 8
s_cbranch_scc1 L_T21
v_lshrrev_b32 v8, 5, v{vL}
v_lshlrev_b32 v12, 3, v8                   ; ML: h*8
v_lshlrev_b32 v8, 12, v8                   ; 8h*512
v_lshrrev_b32 v9, 2, v{vN}
v_lshl_add_u32 v8, v9, 9, v8               ; (n>>2)*512
v_and_b32 v9, 1, v{vN}
v_lshl_add_u32 v8, v9, 8, v8               ; 2(n&1)*128
v_and_b32 v9, 1, v{vG}
v_lshl_add_u32 v8, v9, 7, v8               ; (gq&1)*128
v_bfe_u32 v9, v{vN}, 1, 1
v_lshl_add_u32 v8, v9, 3, v8               ; half*8
s_lshl_b32 s{sT1}, s{sW}, 4
v_add_u32 v{vOAW}, s{sT1}, v8
v_lshrrev_b32 v8, 1, v{vG}
v_mul_u32_u24 v8, 2176, v8
v_and_b32 v9, 1, v{vG}
v_lshl_add_u32 v8, v9, 10, v8
v_lshl_add_u32 v{vST}, v{vN}, 4, v8
s_lshr_b32 s{sKVH}, s{sID}, 2
s_mul_i32 s{sT0}, s{sKVH}, 24576
s_mul_i32 s{sT1}, s{sW}, 3072
s_add_u32 s{sT0}, s{sT0}, s{sT1}
s_add_u32 s{sT0}, s{sT0}, {WS_O}
s_lshl_b32 s{sT1}, s{sKVH}, 9
s_lshl_b32 s{sT2}, s{sW}, 6
s_add_u32 s{sT1}, s{sT1}, s{sT2}
s_add_u32 s{sT1}, s{sT1}, {WS_ML}
s_mov_b32 s{sNT}, 7
s_and_b32 s{sY0}, s{sID}, 3
s_mul_i32 s{sY0}, s{sY0}, 14
s_lshl_b32 s{sT2}, s{sW}, 1
s_add_u32 s{sY0}, s{sY0}, s{sT2}
s_mul_i32 s{sY0}, s{sY0}, 2176
s_lshl_b32 s{sT2}, s{sKVH}, 7
s_add_u32 s{sY0}, s{sY0}, s{sT2}
s_add_u32 s{sY0}, s{sY0}, {WS_PA}
""")
    OG = 112
    stamp(8)
    k("L_AL:")
    for sp in range(3):
        L = k.newlabel("LA"); g0 = OG + 6 * sp
        k(f"s_bitcmp1_b32 s{sNT}, {sp}\ns_cbranch_scc0 {L}")
        k(f"buffer_load_dwordx2 {V(g0+4,2)}, v12, {S(SRD_WS)}, s{sT1} offen offset:{sp*16} sc1")
        k(f"buffer_load_dwordx4 {V(g0)}, v{vL16}, {S(SRD_WS)}, s{sT0} offen offset:{sp*1024} sc1")
        k(f"{L}:")
    k(f"s_waitcnt vmcnt(0)")
    for sp in range(3):
        L = k.newlabel("LA"); g0 = OG + 6 * sp
        k(f"s_bitcmp1_b32 s{sNT}, {sp}\ns_cbranch_scc0 {L}")
        sent(range(g0, g0 + 6), 8)
        k(f"s_cbranch_vccnz {L}\ns_bitset0_b32 s{sNT}, {sp}\n{L}:")
    k(f"s_cmp_eq_u32 s{sNT}, 0\ns_cbranch_scc1 L_ALD\ns_sleep {o.get('asleep2', 1)}\ns_cmp_lg_u32 s{sNT}, 7\ns_cbranch_scc1 L_ALS\ns_sleep {o.get('asleep', 8)}\nL_ALS:")
    budget_loop("L_AL")
    k("L_ALD:\ns_setprio 3")
    stamp(9)
    def mm(sp): return OG + 6 * sp + 4
    AC = 132
    k(f"v_max3_f32 v8, v{mm(0)}, v{mm(1)}, v{mm(2)}")
    for sp in range(3): k(f"v_sub_f32 v{mm(sp)}, v{mm(sp)}, v8")
    for sp in range(3): k(f"v_mul_f32 v{mm(sp)}, s{sCC}, v{mm(sp)}")
    for sp in range(3): k(f"v_exp_f32 v{mm(sp)}, v{mm(sp)}")
    for r in range(4): unpack(AC + 2 * r, AC + 2 * r + 1, OG + r)
    for sp in range(3): k(f"v_mul_f32 v{mm(sp)}, v{mm(sp)}, v{mm(sp)+1}")
    k(f"v_add_f32 v8, v{mm(0)}, v{mm(1)}\nv_add_f32 v8, v8, v{mm(2)}\nv_rcp_f32 v8, v8")
    for r in range(4): unpack(AC + 8 + 2 * r, AC + 9 + 2 * r, OG + 6 + r)
    for sp in range(3): k(f"v_mul_f32 v{mm(sp)}, v{mm(sp)}, v8")
    for r in range(8): k(f"v_mul_f32 v{AC+r}, v{AC+r}, v{mm(0)}")
    for r in range(8): k(f"v_fmac_f32 v{AC+r}, v{AC+8+r}, v{mm(1)}")
    for r in range(4): unpack(AC + 8 + 2 * r, AC + 9 + 2 * r, OG + 12 + r)
    for r in range(8): k(f"v_fmac_f32 v{AC+r}, v{AC+8+r}, v{mm(2)}")
    for p in range(4): k(f"v_cvt_pk_bf16_f32 v{OG+12+p}, v{AC+2*p}, v{AC+2*p+1}")
    k(f"""
ds_write_b64 v{vOAW}, {V(OG+12,2)} offset:{L_OA}
ds_write_b64 v{vOAW}, {V(OG+14,2)} offset:{L_OA+2048}
s_waitcnt lgkmcnt(0)
s_branch L_TB1
L_T21:
""")
    def frag13():
        k(f"""
s_sub_u32 s{sT2}, s{sW}, 8
v_lshrrev_b32 v8, 1, v{vTR}
v_and_b32 v8, 3, v8
v_xor_b32 v8, s{sT2}, v8
v_lshlrev_b32 v8, 5, v8
v_lshl_add_u32 v8, v{vTR}, 7, v8
v_and_b32 v9, 1, v{vL}
v_lshl_add_u32 v8, v9, 3, v8
v_bfe_u32 v9, v{vL}, 1, 1
v_mul_u32_u24 v9, {L_A-L_B}, v9
v_add_u32 v8, v8, v9
v_add_u32 v10, {L_B}, v8
v_add_u32 v11, 16, v10
""")
        frag_tile(F13, 10); frag_tile(F13 + 56, 11)
    frag13()
    k(f"{isF}\ns_cbranch_scc1 L_T22\ns_cmp_eq_u32 s{sW}, 11\ns_cbranch_scc1 L_T22")
    k(f"""
s_mul_i32 s{sT0}, s{sID}, 8448
s_add_u32 s{sT0}, s{sT0}, {WS_PB}
s_mul_i32 s{sT1}, s{sID}, 4352
s_add_u32 s{sT1}, s{sT1}, {WS_PA}
s_cmp_eq_u32 s{sW}, 9
s_cselect_b32 s{sT0}, s{sT1}, s{sT0}
s_cmp_eq_u32 s{sW}, 10
s_cselect_b32 s{sT0}, {WS_X1}, s{sT0}
v_lshlrev_b32 v8, 7, v{vL}
buffer_load_dword v128, v8, {S(SRD_WS)}, s{sT0} offen sc1
""")
    poll_flag(D_GM, "L_PGMM", sleep=8)
    k(f"s_cmp_lg_u32 s{sW}, 10\ns_cbranch_scc1 L_T23")
    k(f"s_mov_b32 exec_hi, 0x00ffffff\ns_mov_b32 s{sT0}, {WS_M+896}\ns_mov_b32 s{sT1}, {WS_M+1792}")
    for bb in range(8):
        k(f"s_mov_b32 m0, {L_MM+7168+bb*896}\nbuffer_load_dwordx4 v{vL16}, {S(SRD_WS)}, s{sT0} offen sc1 lds")
        k(f"s_mov_b32 m0, {L_MM+bb*896}\nbuffer_load_dwordx4 v{vL16}, {S(SRD_WS)}, s{sT1} offen sc1 lds")
        if bb < 7: k(f"s_add_u32 s{sT0}, s{sT0}, 4096\ns_add_u32 s{sT1}, s{sT1}, 4096")
    k("s_waitcnt vmcnt(0)")
    k("s_mov_b64 exec, -1\ns_branch L_T22")
    k(f"""
L_T23:
s_lshl_b32 s{sT4}, s{sID}, 1
s_add_u32 s{sT4}, s{sT4}, s{sW}
s_sub_u32 s{sT4}, s{sT4}, 8                ; task
s_lshl_b32 s{sY0}, s{sT4}, 4
s_add_u32 s{sT1}, s{sY0}, {WS_M}
s_add_u32 s{sY1}, s{sY0}, {WS_X1}
v_and_b32 v8, 7, v{vL}
v_lshlrev_b32 v9, 2, v{vG}
v_lshl_add_u32 v10, v8, 12, v9             ; M : b*4096 + pair*4
v_lshl_add_u32 v12, v8, 10, v9             ; X1: b*1024 + pair*4
v_mul_u32_u24 v13, 896, v8
v_add_u32 v13, v13, v9
buffer_load_dword v{vGA}, v10, {S(SRD_WS)}, s{sT1} offen sc1
buffer_load_dword v{vGB}, v10, {S(SRD_WS)}, s{sT1} offen offset:2688 sc1
buffer_load_dword v{vXX}, v13, {S(SRD_A)}, s{sY0} offen
""")
    k("s_waitcnt vmcnt(0)")
    for r in (vGA, vGB, vXX): k(f"v_and_b32 v{r+1}, 0xffff0000, v{r}\nv_lshlrev_b32 v{r}, 16, v{r}")
    k("L_T22:\ns_setprio 3\nL_TB1:\ns_barrier            ; T1")
    k(f"s_cmp_ge_u32 s{sW}, 7\ns_cbranch_scc1 L_WOD")
    ACT = [112 + 4 * i for i in range(8)]
    for T in range(8): k(f"ds_read_b128 {V(ACT[T])}, v{vBA} offset:{L_OA+T*512}")
    for T in range(16):
        k(f"s_waitcnt lgkmcnt({min(7, 15-T)})")
        k(f"{MF} v[144:147], {V(FW+4*T)}, {V(ACT[T%8])}, {'0' if T == 0 else 'v[144:147]'}")
        if T < 8: k(f"ds_read_b128 {V(ACT[T])}, v{vBA} offset:{L_OA+(T+8)*512}")
    for r in range(4): k(f"v_min_u32 v{144+r}, -2, v{144+r}")
    k(f"s_andn2_b64 exec, exec, s[{sMN}:{sMN+1}]")
    lstore([f"buffer_store_dwordx4 v[144:147], v{vST}, {S(SRD_WS)}, s{sY0} offen"])
    k("s_mov_b64 exec, -1\nL_WOD:")
    stamp(10)
    k(f"{isF}\ns_cbranch_scc1 L_FIN")
    k(f"s_cmp_lt_u32 s{sW}, 8\ns_cbranch_scc1 L_B2S\ns_cmp_ge_u32 s{sW}, 10\ns_cbranch_scc1 L_TB3")
    k(f"""
L_B1S:
s_mul_i32 s{sT0}, s{sT4}, 2176
s_add_u32 s{sT0}, s{sT0}, {WS_PA}
s_setprio 0
s_sleep {o.get('b1sleep', 3)}
L_B1:
buffer_load_dwordx4 v[136:139], v{vL16}, {S(SRD_WS)}, s{sT0} offen sc1
buffer_load_dwordx4 v[140:143], v{vL16}, {S(SRD_WS)}, s{sT0} offen offset:1024 sc1
s_waitcnt vmcnt(0)
""")
    sent(range(136, 144), 8)
    retry("L_B1", "s_mov_b64 exec, vcc")
    k("s_setprio 3\ns_mov_b64 exec, -1")
    stamp(11)
    def fold8(a):
        for r in range(4): k(f"v_permlane32_swap_b32 v{a+r}, v{a+4+r}")
        k(f"v_pk_add_f32 {V(a,2)}, {V(a,2)}, {V(a+4,2)}\nv_pk_add_f32 {V(a+2,2)}, {V(a+2,2)}, {V(a+6,2)}")
        k(f"v_permlane16_swap_b32 v{a}, v{a+2}\nv_permlane16_swap_b32 v{a+1}, v{a+3}\nv_pk_add_f32 {V(a,2)}, {V(a,2)}, {V(a+2,2)}")
        k(f"v_add_f32_dpp v{a}, v{a}, v{a} row_ror:8 row_mask:0xf bank_mask:0xf\nv_add_f32_dpp v{a+1}, v{a+1}, v{a+1} row_ror:8 row_mask:0xf bank_mask:0xf")
    fold8(136)
    round2(136, 137, 8)
    k(f"v_pk_mul_f32 v[136:137], v[136:137], {V(vGA,2)}")
    round2(136, 137, 8)
    k(f"""
v_pk_add_f32 v[136:137], v[136:137], {V(vXX,2)}
v_cvt_pk_bf16_f32 v138, v136, v137
v_min_u32 v138, -2, v138
s_andn2_b64 exec, exec, s[{sMN}:{sMN+1}]
""")
    lstore([f"buffer_store_dword v138, v12, {S(SRD_WS)}, s{sY1} offen"])
    k("s_mov_b64 exec, -1")
    stamp(12)
    unpack(vX1, vX1 + 1, 138)
    k("s_branch L_TB3")
    Y = 128
    k("L_B2S:")
    chunk_dst(144)
    k(f"""
s_lshl_b32 s{sT0}, s{sW}, 10
s_add_u32 s{sT0}, s{sT0}, {WS_X1}
v_mov_b32 v136, 0
v_mov_b32 v137, 0
v_mov_b32 v138, 0
v_mov_b32 v139, 0
v_mov_b32 v145, 0x3f803f80
v_mov_b32 v146, {f32(1.0/448)}
s_mul_i32 s{sT3}, s{sW}, 896
s_add_u32 s{sT3}, s{sT3}, {L_MM}
v_add_u32 v8, s{sT3}, v{vL16}
ds_read_b128 {V(MC)}, v8
ds_read_b128 {V(MS)}, v8 offset:7168
s_waitcnt lgkmcnt(0)
""")
    CU_, SU_ = 16, 24
    for r in range(4):
        unpack(CU_ + 2 * r, CU_ + 2 * r + 1, MC + r)
        k(f"v_add_f32 v{CU_+2*r}, 1.0, v{CU_+2*r}\nv_add_f32 v{CU_+2*r+1}, 1.0, v{CU_+2*r+1}")
        round2(CU_ + 2 * r, CU_ + 2 * r + 1, 8)
        unpack(SU_ + 2 * r, SU_ + 2 * r + 1, MS + r)
    k(f"""
s_mov_b32 exec_hi, 0x00ffffff
s_setprio 0
L_B2:
buffer_load_dwordx4 v[136:139], v{vL16}, {S(SRD_WS)}, s{sT0} offen sc1
s_waitcnt vmcnt(0)
v_max3_u32 v8, v136, v137, v138
v_max_u32 v8, v8, v139
v_cmp_eq_u32 vcc, -1, v8
""")
    retry("L_B2", "s_mov_b64 exec, vcc")
    k("s_setprio 3\ns_mov_b64 exec, -1")
    stamp(13)
    k("v_dot2_f32_bf16 v8, v136, v145, 0\nv_dot2_f32_bf16 v9, v136, v136, 0")
    for r in range(1, 4): k(f"v_dot2_f32_bf16 v8, v{136+r}, v145, v8\nv_dot2_f32_bf16 v9, v{136+r}, v{136+r}, v9")
    unpack(Y, Y + 1, 136); unpack(Y + 2, Y + 3, 137)
    steps = [f"row_shr:{sh} row_mask:0xf bank_mask:0xf bound_ctrl:0" for sh in (1, 2, 4, 8)] + ["row_bcast:15 row_mask:0xa bank_mask:0xf", "row_bcast:31 row_mask:0xc bank_mask:0xf"]
    fill = [f"v_lshlrev_b32 v{Y+4}, 16, v138", f"v_and_b32 v{Y+5}, 0xffff0000, v138", f"v_lshlrev_b32 v{Y+6}, 16, v139", f"v_and_b32 v{Y+7}, 0xffff0000, v139"]
    for i, m in enumerate(steps):
        k(f"v_add_f32_dpp v8, v8, v8 {m}\nv_add_f32_dpp v9, v9, v9 {m}")
        if i < 4: k(fill[i])
    k(f"""
v_readlane_b32 s{sT1}, v8, 63
v_readlane_b32 s{sT2}, v9, 63
v_mul_f32 v10, s{sT1}, v146
v_mul_f32 v11, s{sT2}, v146
v_fma_f32 v11, -v10, v10, v11
v_max_f32 v11, 0, v11
""")
    round2(10, 11, 8)
    k(f"v_add_f32 v11, {f32(1e-5)}, v11")
    R = o.get("lnround", 0)
    seq = ["v_cvt_pk_bf16_f32 v11, v11, v11", "v_lshlrev_b32 v11, 16, v11", "v_sqrt_f32 v11, v11", "", "v_cvt_pk_bf16_f32 v11, v11, v11", "v_lshlrev_b32 v11, 16, v11", "v_rcp_f32 v11, v11", ""]
    for c in range(8):
        k(f"v_sub_f32 v{Y+c}, v{Y+c}, v10")
        if seq[c]: k(seq[c])
    if R:
        for p in range(4): round2(Y + 2 * p, Y + 2 * p + 1, 8)
    for c in range(8): k(f"v_mul_f32 v{Y+c}, v{Y+c}, v11")
    if R:
        for p in range(4): round2(Y + 2 * p, Y + 2 * p + 1, 8)
        for c in range(8): k(f"v_mul_f32 v{Y+c}, v{Y+c}, v{CU_+c}")
        for p in range(4): round2(Y + 2 * p, Y + 2 * p + 1, 8)
        for c in range(8): k(f"v_add_f32 v{Y+c}, v{Y+c}, v{SU_+c}")
    else:
        for c in range(8): k(f"v_fma_f32 v{Y+c}, v{Y+c}, v{CU_+c}, v{SU_+c}")
    for p in range(4): k(f"v_cvt_pk_bf16_f32 v{136+p}, v{Y+2*p}, v{Y+2*p+1}")
    k(f"""
s_mov_b32 exec_hi, 0x00ffffff
ds_write_b64 v144, v[136:137] offset:{L_SC}
ds_write_b64 v144, v[138:139] offset:{L_SC+128}
s_mov_b64 exec, -1
s_waitcnt lgkmcnt(0)
L_TB3:
s_barrier            ; T3
s_cmp_ge_u32 s{sW}, 8
s_cbranch_scc1 L_W13
s_cmp_eq_u32 s{sW}, 7
s_cbranch_scc1 L_FIN
v_and_b32 v9, 7, v{vN}
v_mul_u32_u24 v8, 136, v9
v_lshl_add_u32 v8, v{vG}, 3, v8
v_add_u32 v8, {L_G}, v8
v_lshrrev_b32 v10, 3, v{vN}
v_lshl_add_u32 v10, v10, 2, v{vG}
v_mul_u32_u24 v10, 4224, v10
v_lshl_add_u32 v9, v9, 4, v10
s_mul_i32 s{sT0}, s{sW}, {8*4224}
s_lshl_b32 s{sT1}, s{sID}, 7
s_add_u32 s{sT0}, s{sT0}, s{sT1}
s_add_u32 s{sT0}, s{sT0}, {WS_PB}
s_barrier            ; T4
ds_read2_b64 v[112:115], v8 offset0:0 offset1:4
ds_read2_b64 v[116:119], v8 offset0:8 offset1:12
""")
    for T in range(2):
        k(f"s_waitcnt lgkmcnt({1-T})")
        for q in range(4):
            k(f"{MF} {V(128+4*q)}, {V(F2+(T*4+q)*4)}, {V(112+4*T)}, {'0' if T == 0 else V(128+4*q)}")
    for q in range(4):
        k(f"v_cvt_pk_bf16_f32 v{144+2*q}, v{128+4*q}, v{129+4*q}\nv_cvt_pk_bf16_f32 v{145+2*q}, v{130+4*q}, v{131+4*q}")
    for r in range(4):
        k(f"v_cndmask_b32 v{144+r}, v{144+r}, v{148+r}, s[{sMN}:{sMN+1}]\nv_min_u32 v{144+r}, -2, v{144+r}")
    lstore([f"buffer_store_dwordx4 v[144:147], v9, {S(SRD_WS)}, s{sT0} offen"])
    stamp(14)
    k("s_branch L_FIN")
    k("L_W13:")
    stamp(7)
    HA = [128 + 4 * i for i in range(6)]
    A0, A1 = 160, 164
    for t in range(6): k(f"ds_read_b128 {V(HA[t])}, v{vBA} offset:{L_SC+t*512}")
    k(f"""
s_mov_b32 s{sT3}, {f32(-LOG2E)}
v_and_b32 v8, 7, v{vN}
v_mul_u32_u24 v8, 136, v8
v_and_b32 v9, 1, v{vG}
v_lshl_add_u32 v8, v9, 3, v8
v_lshrrev_b32 v9, 5, v{vL}
v_lshl_add_u32 v8, v9, 2, v8
v_lshrrev_b32 v9, 3, v{vN}
v_lshl_add_u32 v8, v9, 4, v8
s_sub_u32 s{sT1}, s{sW}, 8
s_lshl_b32 s{sT1}, s{sT1}, 5
v_add_u32 v8, s{sT1}, v8
""")
    for t in range(14):
        k(f"s_waitcnt lgkmcnt({min(5, 13-t)})")
        k(f"{MF} {V(A0)}, {V(F13+4*t)}, {V(HA[t%6])}, {'0' if t == 0 else V(A0)}")
        k(f"{MF} {V(A1)}, {V(F13+56+4*t)}, {V(HA[t%6])}, {'0' if t == 0 else V(A1)}")
        if t + 6 < 14: k(f"ds_read_b128 {V(HA[t%6])}, v{vBA} offset:{L_SC+(t+6)*512}")
    for r in range(4): k(f"v_cndmask_b32 v{A0+r}, v{A0+r}, v{A1+r}, s[{sMN}:{sMN+1}]")
    k(f"""
v_permlane32_swap_b32 v{A0}, v{A0+2}
v_permlane32_swap_b32 v{A0+1}, v{A0+3}
""")
    round2(A0, A0 + 1, 12)
    k(f"""
v_mul_f32 v10, s{sT3}, v{A0}
v_mul_f32 v11, s{sT3}, v{A0+1}
v_exp_f32 v10, v10
v_exp_f32 v11, v11
""")
    round2(A0 + 2, A0 + 3, 12)
    k(f"""
v_add_f32 v10, 1.0, v10
v_add_f32 v11, 1.0, v11
v_rcp_f32 v10, v10
v_rcp_f32 v11, v11
v_mul_f32 v{A0}, v{A0}, v10
v_mul_f32 v{A0+1}, v{A0+1}, v11
""")
    round2(A0, A0 + 1, 12)
    k(f"""
v_mul_f32 v{A0}, v{A0}, v{A0+2}
v_mul_f32 v{A0+1}, v{A0+1}, v{A0+3}
v_cvt_pk_bf16_f32 v10, v{A0}, v{A0+1}
ds_write_b32 v8, v10 offset:{L_G}
s_waitcnt lgkmcnt(0)
s_barrier            ; T4
""")
    stamp(14)
    k(f"s_cmp_ge_u32 s{sW}, 10\ns_cbranch_scc1 L_FIN")
    k(f"""
s_mul_i32 s{sT0}, s{sT4}, 4224
s_add_u32 s{sT0}, s{sT0}, {WS_PB}
v_mov_b32 v28, 0
v_mov_b32 v29, 0
v_mov_b32 v30, 0
v_mov_b32 v31, 0
s_setprio 0
s_sleep {o.get('fsleep', 2)}
L_FB:
s_mov_b64 s[{sX0}:{sX0+1}], exec
""")
    for i in range(3): k(f"buffer_load_dwordx4 {V(16+4*i)}, v{vL16}, {S(SRD_WS)}, s{sT0} offen offset:{i*1024} sc1")
    k(f"""
s_mov_b32 exec_hi, 0
s_cbranch_execz L_FB2
buffer_load_dwordx4 v[28:31], v{vL16}, {S(SRD_WS)}, s{sT0} offen offset:3072 sc1
L_FB2:
s_mov_b64 exec, s[{sX0}:{sX0+1}]
s_waitcnt vmcnt(0)
""")
    sent(range(16, 32), 8)
    retry("L_FB", "s_mov_b64 exec, vcc")
    k("s_mov_b64 exec, -1\ns_setprio 3")
    stamp(13)
    k("v_mov_b32 v8, 0x3f80\nv_mov_b32 v9, 0x3f800000")
    for i in range(4):
        for r in range(4):
            for h in range(2):
                d = 32 + 2 * r + h
                k(f"v_dot2_f32_bf16 v{d}, v{16+4*i+r}, v{8+h}, {'0' if i == 0 else 'v%d' % d}")
    k("s_nop 2")
    fold8(32)
    round2(32, 33, 8)
    k(f"v_pk_mul_f32 v[32:33], v[32:33], {V(vGB,2)}")
    round2(32, 33, 8)
    k(f"""
v_pk_add_f32 v[32:33], v[32:33], {V(vX1,2)}
v_cvt_pk_bf16_f32 v16, v32, v33
s_andn2_b64 exec, exec, s[{sMN}:{sMN+1}]
buffer_store_dword v16, v13, {S(SRD_C)}, s{sY0} offen
s_mov_b64 exec, -1
""")
    stamp(15)
    if o.get("probe"):
        k(f"s_cmp_lg_u32 s2, 0\ns_cbranch_scc1 L_FIN\ns_cmp_lg_u32 s{sW}, 8\ns_cbranch_scc1 L_FIN\nv_mov_b32 v8, 0")
        for j, i in enumerate([1, 2, 3, 4, 10, 12, 14, 15]):
            k(f"s_sub_u32 s{sT0}, s{sSTAMP+2*i}, s{sSTAMP}\nv_writelane_b32 v8, s{sT0}, {j}")
        k(f"v_lshlrev_b32 v7, 2, v0\ns_mov_b64 exec, 0xff\nbuffer_store_dword v8, v7, {S(SRD_B)}, 0 offen offset:16 sc1")
    k("L_FIN:")
    if debug:
        k("s_mov_b64 exec, -1\nv_mov_b32 v8, 0")
        for i in range(16): k(f"v_writelane_b32 v8, s{sSTAMP+2*i}, {i}")
        k(f"v_writelane_b32 v8, s{sBUD}, 16")
        k(f"""
s_mul_i32 s{sT0}, s2, 12
s_add_u32 s{sT0}, s{sT0}, s{sW}
s_lshl_b32 s{sT0}, s{sT0}, 7
s_add_u32 s{sT0}, s{sT0}, {WS_DBG}
v_lshlrev_b32 v7, 2, v0
s_mov_b32 exec_hi, 0
buffer_store_dword v8, v7, {S(SRD_WS)}, s{sT0} offen
""")
    k("L_END:\ns_endpgm")
    for blk in ool: k(blk)
    k("L_CODE_END:")
    kt = kernel_text(KNAME + "_kernel", k.text(), NVGPR)
    return file_text([f"; @launch grid=(256,1,1) block=(768,1,1) lds={LDS_BYTES}"], [kt])

if __name__ == "__main__":
    open("z_dbg.s", "w").write(gen(debug=True))
    open("z_rel.s", "w").write(gen(debug=False))
    for a in sys.argv[1:]:
        name, *kv = a.split(",")
        op = {x.split("=")[0]: (int(x.split("=")[1]) if x.split("=")[1].lstrip("-").isdigit() else x.split("=")[1]) for x in kv}
        open(name, "w").write(gen(debug="dbg" in name, opts=op))
```

```python
import sys, struct
from emit import K
from asmlib import KNAME, kernel_text, file_text

WS_MU = 0x0000
WS_M = 0x4000
WS_ML = 0x50000
WS_CNT = 0x51000
WS_X1 = 0xE000
WS_Q = 0x10000
WS_O = 0x20000
WS_PA = 0xA0000
WS_PB = 0xC0000
WS_DBG = 0x200000
WS_BYTES = 0x20000000
D_GA, D_GO2, D_GB, D_MODE, D_GM = 0, 4, 8, 12, 48
D_GQ, D_CM, D_XC, D_CB, D_CC = 128, 144, 148, 152, 156
AL_QF, AL_T, AL_G, AL_P, AL_N = 0, 4, 8, 12, 16
AL_Q = 64
AL_O = 2048
L_SC = 0
L_H = 7168
L_OA = L_H
L_G = L_H + 8256
L_T = 16640
L_B = 20224
L_A = L_B + 59392 + 16
L_MM = L_A + 59392
LDS_BYTES = 153600
assert L_MM + 14336 <= LDS_BYTES and L_MM % 16 == 0
LOG2E = 1.4426950408889634
def f32(x): return "0x%08x" % struct.unpack("<I", struct.pack("<f", x))[0]

P_X, P_K, P_V, P_WQ, P_WO, P_W1, P_W3, P_W2, P_C, P_WM, P_OUT, P_DBG, P_WS = 4, 6, 8, 10, 12, 16, 18, 20, 22, 24, 26, 28, 30
SRD_WS = 32
sID, sSP, sB, sKVH, sBUD = 36, 37, 38, 39, 40
sT0, sT1, sT2, sT3, sT4, sT5 = 41, 42, 43, 44, 45, 46
sMODE = 47
SRD_A, SRD_B, SRD_C = 48, 52, 56
sMN, sMH = 60, 62
sX0 = 64
sY0, sY1 = 66, 67
sCC = 68
sNT = 69
sW = 3
sSTAMP = 70
BUDGET = 400000
NVGPR = 168

def gen(debug=False, opts=None):
    o = dict(nt_w="nt", first=4, qsleep=20, qdelay=127, fsleep=4, b1sleep=2, b2sleep=0, asleep2=0)
    if opts: o.update(opts)
    NTW = o["nt_w"].replace("+", " ")
    k = K()
    def srd(dst, ptr, nbytes):
        k(f"s_mov_b32 s{dst}, s{ptr}\ns_and_b32 s{dst+1}, s{ptr+1}, 0xffff\ns_mov_b32 s{dst+2}, {nbytes}\ns_mov_b32 s{dst+3}, 0x20000")
    def S(r): return f"s[{r}:{r+3}]"
    def V(r, n=4): return f"v[{r}:{r+n-1}]"
    def stamp(i):
        if debug and (not o.get("lite") or i in (0, 5, 15)): k(f"s_memrealtime s[{sSTAMP+2*i}:{sSTAMP+2*i+1}]\ns_waitcnt lgkmcnt(0)")
    def stamp_init():
        if debug:
            for i in range(15 if o.get("st0") else 16): k(f"s_mov_b32 s{sSTAMP+2*i}, 0")
        stamp(0)
    def budget_loop(L):
        k(f"s_add_u32 s{sBUD}, s{sBUD}, 1\ns_cmp_lt_u32 s{sBUD}, {BUDGET}\ns_cbranch_scc1 {L}")
    def wave_red(op, v, sdst):
        ins = {"add": "v_add_f32_dpp", "max": "v_max_f32_dpp"}[op]
        bc = " bound_ctrl:0" if op == "add" else ""
        for sh in (1, 2, 4, 8):
            k(f"{ins} v{v}, v{v}, v{v} row_shr:{sh} row_mask:0xf bank_mask:0xf{bc}")
        k(f"{ins} v{v}, v{v}, v{v} row_bcast:15 row_mask:0xa bank_mask:0xf")
        k(f"{ins} v{v}, v{v}, v{v} row_bcast:31 row_mask:0xc bank_mask:0xf")
        k(f"v_readlane_b32 s{sdst}, v{v}, 63")
    def xg(op, v, t):
        ins = {"add": "v_add_f32", "max": "v_max_f32"}[op]
        k(f"v_mov_b32 v{t}, v{v}\nv_permlane32_swap_b32 v{t}, v{v}\n{ins} v{v}, v{v}, v{t}")
        k(f"v_mov_b32 v{t}, v{v}\nv_permlane16_swap_b32 v{t}, v{v}\n{ins} v{v}, v{v}, v{t}")
    def fold4(*bases):
        for a in bases: k(f"v_permlane32_swap_b32 v{a}, v{a+1}\nv_permlane32_swap_b32 v{a+2}, v{a+3}")
        for a in bases: k(f"v_add_f32 v{a}, v{a}, v{a+1}\nv_add_f32 v{a+2}, v{a+2}, v{a+3}")
        for a in bases: k(f"v_permlane16_swap_b32 v{a}, v{a+2}")
        for a in bases: k(f"v_add_f32 v{a}, v{a}, v{a+2}")
    def unpack(dlo, dhi, src):
        k(f"v_lshlrev_b32 v{dlo}, 16, v{src}\nv_and_b32 v{dhi}, 0xffff0000, v{src}")
    def round2(a, b, t):
        k(f"v_cvt_pk_bf16_f32 v{t}, v{a}, v{b}"); unpack(a, b, t)
    def round1(a):
        k(f"v_cvt_pk_bf16_f32 v{a}, v{a}, v{a}\nv_lshlrev_b32 v{a}, 16, v{a}")
    def sent(regs, t):
        regs = list(regs)
        if len(regs) == 1: k(f"v_cmp_eq_u32 vcc, -1, v{regs[0]}"); return
        if len(regs) == 2: k(f"v_max_u32 v{t}, v{regs[0]}, v{regs[1]}"); rest = []
        else: k(f"v_max3_u32 v{t}, v{regs[0]}, v{regs[1]}, v{regs[2]}"); rest = regs[3:]
        while len(rest) >= 2: k(f"v_max3_u32 v{t}, v{t}, v{rest[0]}, v{rest[1]}"); rest = rest[2:]
        if rest: k(f"v_max_u32 v{t}, v{t}, v{rest[0]}")
        k(f"v_cmp_eq_u32 vcc, -1, v{t}")
    def neg1(a=8):
        for r in range(4): k(f"v_mov_b32 v{a+r}, -1")
    def lstore(lines):
        L1, L2 = k.newlabel("LS"), k.newlabel("LS")
        k(f"s_cmp_eq_u32 s{sMODE}, 1\ns_cbranch_scc0 {L1}")
        for l in lines: k(l)
        k(f"{L2}:")
        ool.append(f"{L1}:\n" + "\n".join(l + " sc1" for l in lines) + f"\ns_nop 1\ns_branch {L2}")
    ool = []
    def retry(loop, extra=""):
        L, C = k.newlabel("LR"), k.newlabel("LC")
        k(f"s_cbranch_vccnz {L}\n{C}:")
        ool.append(f"{L}:\n{extra}\ns_add_u32 s{sBUD}, s{sBUD}, 1\ns_cmp_lt_u32 s{sBUD}, {BUDGET}\ns_cbranch_scc1 {loop}\ns_branch {C}")
    MF = "v_mfma_f32_16x16x32_bf16"
    vL, vG, vN, vZ, vONE = 0, 1, 2, 3, 4

    k(f"""
{"s_memrealtime s[100:101]" if o.get("st0") else ""}
s_cmp_ge_u32 s2, 256
s_cbranch_scc1 L_END
s_load_dwordx16 s[4:19], s[0:1], 0
s_load_dwordx8 s[20:27], s[0:1], 64
s_load_dwordx4 s[28:31], s[0:1], 96
v_lshrrev_b32 v1, 6, v0
v_readfirstlane_b32 s{sW}, v1
v_and_b32 v{vL}, 63, v0
s_and_b32 s{sT0}, s2, 7
s_lshr_b32 s{sID}, s2, 3
s_mov_b32 s{sBUD}, 0
v_lshrrev_b32 v{vG}, 4, v{vL}
v_and_b32 v{vN}, 15, v{vL}
v_mov_b32 v{vZ}, 0
v_mov_b32 v{vONE}, 1
s_mov_b32 s{sCC}, {f32(0.0625*LOG2E)}
s_cmp_eq_u32 s{sT0}, 0
s_cbranch_scc1 L_TAILWG
s_mul_i32 s{sID}, s{sID}, 7
s_add_u32 s{sID}, s{sID}, s{sT0}
s_sub_u32 s{sID}, s{sID}, 1
s_cmp_lt_u32 s{sID}, 32
s_cbranch_scc1 L_CHAIN
s_sub_u32 s{sT0}, s{sID}, 32
s_mul_i32 s{sT1}, s{sT0}, 781
s_lshr_b32 s{sT1}, s{sT1}, 14              ; a/21
s_mul_i32 s{sT2}, s{sT1}, 21
s_sub_u32 s{sT2}, s{sT0}, s{sT2}           ; a%21
s_mul_i32 s{sSP}, s{sT2}, 37
s_lshr_b32 s{sSP}, s{sSP}, 8               ; r
s_mul_i32 s{sT3}, s{sSP}, 5
s_sub_u32 s{sT3}, s{sT2}, s{sT3}           ; c + 2r
s_sub_u32 s{sT4}, s{sT3}, 7
s_cmp_ge_u32 s{sT3}, 7
s_cselect_b32 s{sT3}, s{sT4}, s{sT3}
s_mul_i32 s{sID}, s{sT1}, 7
s_add_u32 s{sID}, s{sID}, s{sT3}
s_cmp_ge_u32 s{sT0}, 189
s_cselect_b32 s{sID}, 63, s{sID}
s_cselect_b32 s{sSP}, s{sT2}, s{sSP}
""")
    KB, VB, QF, SA = 16, 80, 144, 160
    k(f"""
s_lshl_b32 s{sT0}, s{sSP}, 3
s_add_u32 s{sT0}, s{sT0}, s{sW}
s_lshl_b32 s{sT0}, s{sT0}, 14
s_lshl_b32 s{sY0}, s{sID}, 21
s_add_u32 s{sY0}, s{sY0}, {3072*512}
s_add_u32 s{sT0}, s{sT0}, s{sY0}
s_add_u32 s{sT1}, s{sT0}, 8192
v_lshlrev_b32 v5, 9, v{vN}
v_lshl_add_u32 v5, v{vG}, 4, v5            ; K: n*512 + g*16
v_lshlrev_b32 v6, 11, v{vG}
v_lshl_add_u32 v6, v{vN}, 4, v6            ; V: g*2048 + n*16
v_mov_b32 v8, 0
v_mov_b32 v9, 0
v_mov_b32 v10, 0
v_mov_b32 v11, 0
ds_write_b128 v{vZ}, v[8:11]
ds_write_b128 v{vZ}, v[8:11] offset:16
s_waitcnt lgkmcnt(0)
""")
    stamp_init()
    srd(SRD_A, P_K, 0x8000000)
    def kv_loads(dyn):
        n = 0
        seq = [("K", tl, i) for tl in range(2) for i in range(8)] + [("V", i, hf) for i in range(8) for hf in range(2)]
        for kind, a_, b_ in seq:
            if kind == "K":
                k(f"buffer_load_dwordx4 {V(KB+(a_*8+b_)*4)}, v5, {S(SRD_A)}, s{sT0+a_} offen offset:{b_*64} {o.get('kvpol', 'nt').replace('+', ' ')}")
            else:
                k(f"buffer_load_dwordx4 {V(VB+(a_*2+b_)*4)}, v6, {S(SRD_B)}, s{sT0+(a_>>2)} offen offset:{(a_&3)*512+b_*256} {o.get('kvpol', 'nt').replace('+', ' ')}")
            n += 1
            if not dyn and n == o["first"]:
                if o.get("st0"): k(f"s_memrealtime s[{sSTAMP+4}:{sSTAMP+5}]")
                k("s_barrier"); srd(SRD_B, P_V, 0x8000000)
            if not dyn and n == o.get("trig0", 26):
                k(f"s_cmp_lg_u32 s{sW}, 4\ns_cbranch_scc1 L_NT0\nds_write_b32 v{vZ}, v{vONE} offset:{AL_N}\nL_NT0:")
            if not dyn and n == o.get("trigq", 32):
                k(f"s_cmp_lg_u32 s{sW}, 5\ns_cbranch_scc1 L_NTQ\nds_write_b32 v{vZ}, v{vONE} offset:{AL_P}\nL_NTQ:")
            if dyn and n == o.get("trig1", 12):
                k(f"ds_write_b32 v7, v{vONE} offset:{AL_N+4}")
    k(f"s_cmp_ge_u32 s{sW}, 8\ns_cbranch_scc1 L_DYN")
    kv_loads(False)
    k("L_KVD:")
    stamp(1)
    srd(SRD_WS, P_WS, WS_BYTES)
    k(f"""
v_lshrrev_b32 v7, 3, v{vN}
v_lshlrev_b32 v7, 9, v7
v_lshl_add_u32 v7, v{vG}, 4, v7
v_and_b32 v12, 1, v{vL}
v_cmp_eq_u32 vcc, 1, v12
v_mov_b32 v13, 0xffff
v_mov_b32 v14, 0xffff0000
v_cndmask_b32 v13, v13, v14, vcc
v_bfe_u32 v12, v{vL}, 1, 2
""")
    for r in range(4): k(f"v_cmp_eq_u32 vcc, {r}, v12\nv_cndmask_b32 v{8+r}, 0, v13, vcc")
    k(f"""
{"s_branch L_AQD" if o.get("x_fakeq") else ""}
s_cmp_ge_u32 s{sW}, 4
s_cbranch_scc1 L_AQW
s_lshl_b32 s{sT2}, s{sID}, 10
s_lshl_b32 s{sT3}, s{sW}, 8
s_add_u32 s{sT2}, s{sT2}, s{sT3}
s_add_u32 s{sT2}, s{sT2}, {WS_Q}
s_add_u32 s{sX0}, s{P_WS}, s{sT2}
s_addc_u32 s{sX0+1}, s{P_WS+1}, 0
s_cmp_eq_u32 s{sW}, 0
s_cbranch_scc1 L_AG0
L_AGL:
ds_read_b32 v12, v{vZ} offset:{AL_G}
s_waitcnt lgkmcnt(0)
v_readfirstlane_b32 s{sT4}, v12
s_cmp_lg_u32 s{sT4}, 0
s_cbranch_scc1 L_AP0
s_sleep 2
""")
    budget_loop("L_AGL")
    k(f"""
s_branch L_AP
L_AG0:
s_and_b32 s{sT3}, s2, 1
s_lshl_b32 s{sT3}, s{sT3}, 6
s_add_u32 s{sT3}, s{sT3}, {D_GQ}
L_AG:
s_load_dword s{sT4}, s[{P_DBG}:{P_DBG+1}], s{sT3} glc
s_waitcnt lgkmcnt(0)
s_cmp_lg_u32 s{sT4}, 0
s_cbranch_scc1 L_AG1
s_sleep 32
""")
    budget_loop("L_AG")
    k(f"""
L_AG1:
ds_write_b32 v{vZ}, v{vONE} offset:{AL_G}
L_AP0:
s_sleep 4
ds_read_b32 v12, v{vZ} offset:{AL_P}
s_waitcnt lgkmcnt(0)
v_readfirstlane_b32 s{sT4}, v12
s_cmp_lg_u32 s{sT4}, 0
s_cbranch_scc1 L_AP
""")
    budget_loop("L_AP0")
    k(f"""
L_AP:
s_load_dwordx16 s[4:19], s[{sX0}:{sX0+1}], 0 glc
s_load_dwordx16 s[48:63], s[{sX0}:{sX0+1}], 64 glc
s_load_dwordx16 s[84:99], s[{sX0}:{sX0+1}], 128 glc
s_load_dwordx8 s[20:27], s[{sX0}:{sX0+1}], 192 glc
s_load_dwordx8 s[76:83], s[{sX0}:{sX0+1}], 224 glc
s_waitcnt lgkmcnt(0)
s_max_u32 s{sT4}, s63, s83
s_cmp_lg_u32 s{sT4}, -1
s_cbranch_scc1 L_AF
L_AR:
s_sleep {o.get("qsleep", 10)}
""")
    budget_loop("L_AP")
    k("L_AF:")
    src = list(range(4, 20)) + list(range(48, 64)) + list(range(84, 100)) + list(range(20, 28)) + list(range(76, 84))
    for i, r in enumerate(src): k(f"v_writelane_b32 v12, s{r}, {i}")
    k(f"v_cmp_eq_u32 vcc, -1, v12\ns_cbranch_vccz L_AW\ns_cmp_lt_u32 s{sBUD}, {BUDGET}\ns_cbranch_scc1 L_AR")
    if debug:
        pass
    k(f"""
L_AW:
s_lshl_b32 s{sT3}, s{sW}, 8
v_lshlrev_b32 v13, 2, v{vL}
v_add_u32 v13, s{sT3}, v13
ds_write_b32 v13, v12 offset:{AL_Q}
s_waitcnt lgkmcnt(0)
s_mov_b64 exec, 1
ds_add_u32 v{vZ}, v{vONE} offset:{AL_QF}
s_mov_b64 exec, -1
L_AQW:
ds_read_b32 v12, v{vZ} offset:{AL_QF}
s_waitcnt lgkmcnt(0)
v_readfirstlane_b32 s{sT4}, v12
s_cmp_ge_u32 s{sT4}, 4
s_cbranch_scc1 L_AQD
s_sleep 2
""")
    budget_loop("L_AQW")
    k("L_AQD:")
    if debug:
        for i in range(3, 15 if o.get("st0") else 16): k(f"s_mov_b32 s{sSTAMP+2*i}, 0")
    if not o.get("st0"): stamp(2)
    for i in range(4): k(f"ds_read_b128 {V(QF+4*i)}, v7 offset:{AL_Q+i*64}")
    PD, AS, OAC, vM, vLs = 16, 24, 40, 48, 49
    def adr():
        k(f"""
v_lshlrev_b32 v15, 4, v{vL}
v_lshlrev_b32 v14, 3, v{vL}
s_and_b32 s{sKVH}, s{sID}, 7
s_lshr_b32 s{sB}, s{sID}, 3
v_lshrrev_b32 v6, 5, v{vL}
v_lshlrev_b32 v6, 3, v6                    ; ML: h*8
s_mul_i32 s{sY0}, s{sB}, 3
s_add_u32 s{sY0}, s{sY0}, s{sSP}
s_lshl_b32 s{sY0}, s{sY0}, 10
s_mul_i32 s{sT2}, s{sKVH}, 24576
s_add_u32 s{sY0}, s{sY0}, s{sT2}
s_add_u32 s{sY0}, s{sY0}, {WS_O}
s_lshl_b32 s{sT0}, s{sB}, 2
s_add_u32 s{sT0}, s{sT0}, s{sSP}
s_lshl_b32 s{sT5}, s{sT0}, 4
s_lshl_b32 s{sT2}, s{sKVH}, 9
s_add_u32 s{sT5}, s{sT5}, s{sT2}
s_add_u32 s{sT5}, s{sT5}, {WS_ML}
s_mov_b32 s{sNT}, 12
""")
    adr()
    k(f"s_mov_b32 s{sT4}, 1")
    for n in range(16):
        tl, i = n >> 3, n & 7
        w = f"vmcnt({31-n}) " if True else ""
        k(f"s_waitcnt {w}lgkmcnt({min(3, 15-n)})")
        k(f"{MF} {V(SA+4*tl)}, {V(KB+n*4)}, {V(QF+4*(n&3))}, {'0' if i == 0 else V(SA+4*tl)}")
        if n < 12: k(f"ds_read_b128 {V(QF+4*(n&3))}, v7 offset:{AL_Q+((n+4)&7)*64}")
        if n == 11:
            round2(SA, SA + 1, 12); round2(SA + 2, SA + 3, 12)
            k(f"v_max3_f32 v13, v{SA}, v{SA+1}, v{SA+2}\nv_max_f32 v13, v13, v{SA+3}")
    round2(SA + 4, SA + 5, 12); round2(SA + 6, SA + 7, 12)
    k(f"v_max3_f32 v13, v13, v{SA+4}, v{SA+5}\nv_max3_f32 v12, v13, v{SA+6}, v{SA+7}")
    xg("max", 12, 5)
    for i in range(8): k(f"v_sub_f32 v{SA+i}, v{SA+i}, v12")
    for i in range(8): k(f"v_mul_f32 v{SA+i}, s{sCC}, v{SA+i}")
    for i in range(8): k(f"v_exp_f32 v{SA+i}, v{SA+i}")
    for i in range(8): k(f"v_cvt_pk_bf16_f32 v{PD+i}, v{SA+i}, v{SA+i}")
    stamp(3)
    for i in range(8):
        a = AS + 4 * (i & 3)
        for r in range(4): k(f"v_and_b32 v{a+r}, v{PD+i}, v{8+r}")
        for hf in range(2):
            k(f"s_waitcnt vmcnt({15-(2*i+hf)})")
            k(f"{MF} {V(OAC+4*hf)}, {V(a)}, {V(VB+(i*2+hf)*4)}, {'0' if i == 0 else V(OAC+4*hf)}")
        if i == 0: k(f"v_add_f32 v13, v{SA}, v{SA+1}\nv_add_f32 v5, v{SA+2}, v{SA+3}\nv_add_f32 v50, v{SA+4}, v{SA+5}\nv_add_f32 v51, v{SA+6}, v{SA+7}")
        if i == 1: k("v_add_f32 v13, v13, v5\nv_add_f32 v50, v50, v51\nv_add_f32 v13, v13, v50")
        if i == 2: xg("add", 13, 5)
        if i == 3:
            k(f"""
v_readlane_b32 s{sT0}, v12, 0
v_readlane_b32 s{sT1}, v12, 8
v_readlane_b32 s{sT2}, v13, 0
v_readlane_b32 s{sT3}, v13, 8
""")
        if i == 4:
            k(f"""
v_mov_b32 v{vM}, s{sT0}
v_mov_b32 v{vLs}, s{sT2}
s_mov_b32 exec_lo, 0
v_mov_b32 v{vM}, s{sT1}
v_mov_b32 v{vLs}, s{sT3}
s_mov_b64 exec, -1
""")
    stamp(4)
    k(f"""
s_setprio 3
L_MG:
s_mov_b64 exec, 1
ds_wrxchg_rtn_b32 v12, v{vZ}, v{vZ} offset:{AL_T}
s_mov_b64 exec, -1
s_waitcnt lgkmcnt(0)
v_readfirstlane_b32 s{sT0}, v12
s_cmp_eq_u32 s{sT0}, 0
s_cbranch_scc1 L_MLEAVE
s_and_b32 s{sT1}, s{sT0}, 0xffff
s_lshr_b32 s{sT0}, s{sT0}, 16
s_add_u32 s{sT4}, s{sT4}, s{sT0}
v_add_u32 v12, s{sT1}, v14
v_add_u32 v13, s{sT1}, v15
ds_read_b64 v[60:61], v12 offset:2048
ds_read_b128 v[52:55], v13
ds_read_b128 v[56:59], v13 offset:1024
s_waitcnt lgkmcnt(2)
v_max_f32 v62, v{vM}, v60
v_sub_f32 v63, v{vM}, v62
v_sub_f32 v60, v60, v62
v_mul_f32 v63, s{sCC}, v63
v_mul_f32 v60, s{sCC}, v60
v_exp_f32 v63, v63
v_exp_f32 v60, v60
v_mov_b32 v{vM}, v62
v_mul_f32 v{vLs}, v{vLs}, v63
v_fmac_f32 v{vLs}, v61, v60
""")
    for r in range(8): k(f"v_mul_f32 v{OAC+r}, v{OAC+r}, v63")
    k("s_waitcnt lgkmcnt(0)")
    for r in range(8): k(f"v_fmac_f32 v{OAC+r}, v{52+r}, v60")
    k(f"""
s_cmp_ge_u32 s{sT4}, s{sNT}
s_cbranch_scc1 L_MPUB
""")
    budget_loop("L_MG")
    k(f"""
s_branch L_FIN
L_MLEAVE:
s_mul_i32 s{sT1}, s{sW}, 2560
s_add_u32 s{sT1}, s{sT1}, {AL_O}
v_add_u32 v12, s{sT1}, v14
v_add_u32 v13, s{sT1}, v15
ds_write_b128 v13, {V(OAC)}
ds_write_b128 v13, {V(OAC+4)} offset:1024
ds_write_b64 v12, v[{vM}:{vLs}] offset:2048
s_lshl_b32 s{sT0}, s{sT4}, 16
s_or_b32 s{sT0}, s{sT0}, s{sT1}
v_mov_b32 v13, s{sT0}
s_waitcnt lgkmcnt(0)
s_mov_b64 exec, 1
ds_cmpst_rtn_b32 v12, v{vZ}, v{vZ}, v13 offset:{AL_T}
s_mov_b64 exec, -1
s_waitcnt lgkmcnt(0)
v_readfirstlane_b32 s{sT0}, v12
s_cmp_eq_u32 s{sT0}, 0
s_cbranch_scc1 L_FIN
""")
    budget_loop("L_MG")
    k("s_branch L_FIN")
    k("L_MPUB:")
    k(f"v_rcp_f32 v62, v{vLs}")
    for r in range(8): k(f"v_mul_f32 v{OAC+r}, v{OAC+r}, v62")
    for p in range(4): k(f"v_cvt_pk_bf16_f32 v{52+p}, v{OAC+2*p}, v{OAC+2*p+1}\nv_min_u32 v{52+p}, -2, v{52+p}")
    k(f"""
buffer_store_dwordx4 v[52:55], v15, {S(SRD_WS)}, s{sY0} offen sc1
v_min_u32 v{vM}, -2, v{vM}
v_min_u32 v{vLs}, -2, v{vLs}
s_mov_b32 exec_lo, 1
s_mov_b32 exec_hi, 1
buffer_store_dwordx2 v[{vM}:{vLs}], v6, {S(SRD_WS)}, s{sT5} offen sc1
""")
    stamp(5)
    k("s_branch L_FIN")
    k(f"""
L_DYN:
s_barrier
s_sub_u32 s{sT2}, s{sW}, 8
s_lshl_b32 s{sT2}, s{sT2}, 2
v_mov_b32 v7, s{sT2}
s_lshl_b32 s{sT2}, s{sID}, 7
s_add_u32 s{sT2}, s{sT2}, {WS_CNT}
s_add_u32 s{sX0}, s{P_WS}, s{sT2}
s_addc_u32 s{sX0+1}, s{P_WS+1}, 0
""")
    srd(SRD_B, P_V, 0x8000000)
    k(f"""
L_DW:
s_sleep 2
ds_read_b32 v12, v7 offset:{AL_N}
ds_read_b32 v13, v{vZ} offset:{AL_G}
s_waitcnt lgkmcnt(0)
v_readfirstlane_b32 s{sT4}, v12
v_readfirstlane_b32 s{sT5}, v13
s_cmp_eq_u32 s{sT4}, 2
s_cbranch_scc1 L_END
s_and_b32 s{sT4}, s{sT4}, s{sT5}
s_cbranch_scc1 L_DC
""")
    budget_loop("L_DW")
    k(f"""
s_endpgm
L_DC:
s_mov_b32 s{sT4}, 1
s_atomic_add s{sT4}, s[{sX0}:{sX0+1}], 0 glc
s_waitcnt lgkmcnt(0)
s_add_u32 s{sT4}, s{sT4}, 1
s_cmp_ge_u32 s{sT4}, 8
s_cbranch_scc1 L_DF
s_add_u32 s{sT0}, s{sT4}, 24
s_lshl_b32 s{sT0}, s{sT0}, 14
s_add_u32 s{sT0}, s{sT0}, s{sY0}
s_add_u32 s{sT1}, s{sT0}, 8192
""")
    kv_loads(True)
    k(f"""
s_branch L_KVD
L_DF:
v_mov_b32 v8, 2
v_mov_b32 v9, 2
v_mov_b32 v10, 2
v_mov_b32 v11, 2
ds_write_b128 v{vZ}, v[8:11] offset:{AL_N}
""")
    srd(SRD_WS, P_WS, WS_BYTES)
    for r in range(8): k(f"v_mov_b32 v{OAC+r}, 0")
    adr()
    k(f"v_mov_b32 v{vM}, 0xff800000\nv_mov_b32 v{vLs}, 0\ns_sub_u32 s{sT4}, 12, s{sW}\ns_branch L_MG")

    vSW, vTR, vRW, vL16, vBA = 5, 6, 7, 15, 14
    def svc_setup():
        k("s_waitcnt lgkmcnt(0)")
        stamp_init()
        srd(SRD_WS, P_WS, WS_BYTES); srd(SRD_B, P_DBG, 256)
        k(f"""
v_cmp_lt_u32 s[{sMN}:{sMN+1}], 7, v{vN}
v_lshlrev_b32 v{vL16}, 4, v{vL}
v_bfe_u32 v8, v{vL}, 1, 2
v_bfe_u32 v9, v{vL}, 4, 2
v_xor_b32 v8, v8, v9
v_lshlrev_b32 v8, 5, v8
v_and_b32 v9, 1, v{vL}
v_lshl_add_u32 v{vSW}, v9, 4, v8
s_and_b32 s{sT5}, s{sW}, 3
""")
    def svc_setup2():
        k(f"""
v_bfe_u32 v8, v{vL}, 2, 2
v_lshl_add_u32 v{vTR}, v{vG}, 2, v8        ; 4g + r
v_mul_u32_u24 v{vRW}, 928, v{vTR}
v_and_b32 v8, 3, v{vL}
v_lshl_add_u32 v{vRW}, v8, 4, v{vRW}
v_and_b32 v{vBA}, 7, v{vN}
v_lshlrev_b32 v{vBA}, 4, v{vBA}
v_lshl_add_u32 v{vBA}, v{vG}, 7, v{vBA}
""")
    def code_prefetch(tag, sidx):
        k(f"""
s_getpc_b64 s[{sX0}:{sX0+1}]
L_PC{tag}:
s_sub_u32 s{sX0}, s{sX0}, L_PC{tag}-{KNAME}_kernel
s_subb_u32 s{sX0+1}, s{sX0+1}, 0
v_lshlrev_b32 v12, 7, v{vL}
s_lshl_b32 s{sT0}, s{sidx}, 13
v_add_u32 v12, s{sT0}, v12
v_cmp_gt_u32 vcc, L_CODE_END-{KNAME}_kernel, v12
s_and_b64 exec, exec, vcc
s_cbranch_execz L_NOPF{tag}
global_load_dword v13, v12, s[{sX0}:{sX0+1}]
L_NOPF{tag}:
s_mov_b64 exec, -1
""")
    def dma_tile(srdreg, pitch, scol, buf):
        k(f"""
v_lshrrev_b32 v8, 3, v{vL}
v_mul_u32_u24 v8, {pitch}, v8
v_add_u32 v8, v8, v{vSW}
s_mul_i32 s{sT2}, s{sW}, {56*pitch}
s_add_u32 s{sT2}, s{sT2}, s{scol}
s_mul_i32 s{sT3}, s{sW}, 7168
s_add_u32 s{sT3}, s{sT3}, {buf}
""")
        for i in range(7):
            k(f"s_mov_b32 m0, s{sT3}\nbuffer_load_dwordx4 v8, {S(srdreg)}, s{sT2} offen {NTW} lds")
            if i < 6: k(f"s_add_u32 s{sT2}, s{sT2}, {8*pitch}\ns_add_u32 s{sT3}, s{sT3}, 1024")
    def dma_rows(srdreg, srow, buf):
        k(f"""
s_lshl_b32 s{sT2}, s{sW}, 3
s_mul_i32 s{sT3}, s{sT2}, 928
s_add_u32 s{sT3}, s{sT3}, {buf}
s_add_u32 s{sT2}, s{sT2}, s{srow}
s_mul_i32 s{sT2}, s{sT2}, 896
s_mov_b32 exec_hi, 0x00ffffff
""")
        for i in range(8):
            k(f"s_mov_b32 m0, s{sT3}\nbuffer_load_dwordx4 v{vL16}, {S(srdreg)}, s{sT2} offen {NTW} lds")
            if i < 7: k(f"s_add_u32 s{sT2}, s{sT2}, 896\ns_add_u32 s{sT3}, s{sT3}, 928")
        k("s_mov_b64 exec, -1")
    def frag_tile(dst, vaddr):
        for t in range(14):
            k(f"ds_read_b64_tr_b16 {V(dst+4*t,2)}, v{vaddr} offset:{t*4096}\nds_read_b64_tr_b16 {V(dst+4*t+2,2)}, v{vaddr} offset:{t*4096+2048}")
            if t in (6, 13): k("s_waitcnt lgkmcnt(0)")
    def tile_addr(dst, sq, sbuf):
        k(f"""
v_lshrrev_b32 v8, 1, v{vTR}
v_and_b32 v8, 3, v8
v_xor_b32 v8, s{sq}, v8
v_lshlrev_b32 v8, 5, v8
v_lshl_add_u32 v8, v{vTR}, 7, v8
v_and_b32 v9, 3, v{vL}
v_lshl_add_u32 v8, v9, 3, v8
v_add_u32 v{dst}, {sbuf}, v8
""")
    def frag_rows(dst, buf):
        L = k.newlabel("LFR")
        k(f"s_cmp_ge_u32 s{sW}, 7\ns_cbranch_scc1 {L}")
        k(f"s_lshl_b32 s{sT2}, s{sW}, 7\ns_add_u32 s{sT2}, s{sT2}, {buf}\nv_add_u32 v8, s{sT2}, v{vRW}")
        for T in range(2):
            for q in range(4):
                r = dst + (T * 4 + q) * 4
                qo = (q >> 1) * 64 + (q & 1) * 8
                k(f"ds_read_b64_tr_b16 {V(r,2)}, v8 offset:{T*29696+qo}\nds_read_b64_tr_b16 {V(r+2,2)}, v8 offset:{T*29696+qo+14848}")
            k("s_waitcnt lgkmcnt(0)")
        k(f"{L}:")
    def poll_flag(off, name, sleep=2):
        k(f"""
s_mov_b64 exec, 1
{name}:
buffer_load_dword v9, v{vZ}, {S(SRD_B)}, 0 offen offset:{off} sc1
s_waitcnt vmcnt(0)
v_cmp_eq_u32 vcc, 0, v9
s_cbranch_vccz {name}D
s_sleep {sleep}
""")
        budget_loop(name)
        k(f"{name}D:\ns_mov_b64 exec, -1")
    def ln_stats(X, vmean, vrden):
        k(f"v_add_f32 v8, v{X}, v{X+1}\nv_add_f32 v9, v{X+2}, v{X+3}\nv_add_f32 v12, v{X+4}, v{X+5}\nv_add_f32 v13, v{X+6}, v{X+7}")
        k("v_add_f32 v8, v8, v9\nv_add_f32 v12, v12, v13\nv_add_f32 v8, v8, v12")
        wave_red("add", 8, sT2)
        k(f"v_mov_b32 v12, {f32(1.0/448)}\nv_mul_f32 v{vmean}, s{sT2}, v12")
        for c in range(8):
            k(f"v_sub_f32 v9, v{X+c}, v{vmean}")
            k("v_mul_f32 v8, v9, v9" if c == 0 else "v_fmac_f32 v8, v9, v9")
        k("v_cndmask_b32 v8, 0, v8, vcc")
        wave_red("add", 8, sT2)
        k(f"v_mul_f32 v{vrden}, s{sT2}, v12")
        round2(vmean, vrden, 8)
        k(f"v_add_f32 v{vrden}, {f32(1e-5)}, v{vrden}"); round1(vrden)
        k(f"v_sqrt_f32 v{vrden}, v{vrden}"); round1(vrden)
        k(f"v_rcp_f32 v{vrden}, v{vrden}")
    def chunk_dst(dst):
        k(f"""
v_lshrrev_b32 v11, 2, v{vL}
v_lshlrev_b32 v11, 9, v11
v_and_b32 v12, 1, v{vL}
v_lshl_add_u32 v11, v12, 8, v11
v_bfe_u32 v12, v{vL}, 1, 1
v_lshl_add_u32 v11, v12, 3, v11
s_lshl_b32 s{sT1}, s{sW}, 4
v_add_u32 v{dst}, s{sT1}, v11
""")
    def counter_go(off_c, last, off_go, name):
        k(f"""
s_mov_b32 s{sT1}, 1
s_atomic_add s{sT1}, s[{P_DBG}:{P_DBG+1}], {off_c} glc
s_waitcnt lgkmcnt(0)
s_cmp_lg_u32 s{sT1}, {last}
s_cbranch_scc1 {name}
s_mov_b64 exec, 1
buffer_store_dword v{vONE}, v{vZ}, {S(SRD_B)}, 0 offen offset:{off_go} sc1
s_mov_b64 exec, -1
{name}:
""")

    WF, AF, D0 = 48, 104, 160
    CV, XR, LNV, SAv, CAv = 16, 20, 24, 28, 32
    k("L_CHAIN:")
    svc_setup()
    svc_setup2()
    def tile_mfma(lbase):
        for t in range(14): k(f"ds_read_b128 {V(AF+4*t)}, v{vBA} offset:{lbase+t*512}")
        k(f"""
v_and_b32 v8, 7, v{vN}
v_mul_u32_u24 v8, 144, v8
v_lshl_add_u32 v8, v{vG}, 3, v8
s_lshr_b32 s{sT2}, s{sW}, 2
s_mul_i32 s{sT2}, s{sT2}, 1152
s_lshl_b32 s{sT3}, s{sT5}, 5
s_add_u32 s{sT2}, s{sT2}, s{sT3}
v_add_u32 v8, s{sT2}, v8
""")
        for t in range(14):
            k(f"s_waitcnt lgkmcnt({13-t})")
            k(f"{MF} {V(D0)}, {V(WF+4*t)}, {V(AF+4*t)}, {'0' if t == 0 else V(D0)}")
        k(f"""
v_cvt_pk_bf16_f32 v10, v{D0}, v{D0+1}
v_cvt_pk_bf16_f32 v11, v{D0+2}, v{D0+3}
v_min_u32 v10, -2, v10
v_min_u32 v11, -2, v11
ds_write_b64 v8, v[10:11] offset:{L_T}
s_waitcnt lgkmcnt(0)
""")
    def stage_pub(pitch_shift, soff):
        k(f"""
v_lshrrev_b32 v12, 3, v{vL}
v_mul_u32_u24 v13, 144, v12
v_and_b32 v9, 7, v{vL}
v_lshl_add_u32 v13, v9, 4, v13
s_lshr_b32 s{sT2}, s{sW}, 2
s_mul_i32 s{sT3}, s{sT2}, 1152
v_add_u32 v13, s{sT3}, v13
v_lshlrev_b32 v12, {pitch_shift}, v12
v_lshl_add_u32 v12, v9, 4, v12
ds_read_b128 v[8:11], v13 offset:{L_T}
s_lshl_b32 s{sT2}, s{sT2}, 7
s_add_u32 s{sT2}, s{sT2}, s{soff}
s_waitcnt lgkmcnt(0)
buffer_store_dwordx4 v[8:11], v12, {S(SRD_WS)}, s{sT2} offen sc1
""")

    def spoll(off, name):
        k(f"""
{name}:
s_load_dword s{sT1}, s[{P_DBG}:{P_DBG+1}], {off} glc
s_waitcnt lgkmcnt(0)
s_cmp_lg_u32 s{sT1}, 0
s_cbranch_scc1 {name}D
s_sleep 6
""")
        budget_loop(name)
        k(f"{name}D:")
    k(f"""
s_mul_i32 s{sY0}, s{sID}, 384
s_sub_u32 s{sY0}, s{sY0}, {28*128}         ; first tile column bytes: (14+3(k-14))*128 for k<28
s_lshl_b32 s{sT1}, s{sID}, 8               ;                          (56+2(k-28))*128 for k>=28
s_cmp_ge_u32 s{sID}, 28
s_cselect_b32 s{sY0}, s{sT1}, s{sY0}
s_lshl_b32 s{sY1}, s{sID}, 7
s_cmp_lt_u32 s{sW}, 8
s_cbranch_scc1 L_C8
""")
    srd(SRD_A, P_X, 7168)
    k(f"""
s_setprio 3
s_mul_i32 s{sT1}, s{sT5}, 1792
buffer_load_dwordx4 v[16:19], v{vL16}, {S(SRD_A)}, s{sT1} offen
buffer_load_dwordx4 v[20:23], v{vL16}, {S(SRD_A)}, s{sT1} offen offset:896
""")
    neg1()
    k(f"s_cmp_ge_u32 s{sID}, 7\ns_cbranch_scc1 L_CNP")
    code_prefetch("C", sT5)
    k(f"""
L_CNP:
s_cmp_lt_u32 s{sID}, 14
s_cbranch_scc1 L_CX
s_cmp_eq_u32 s{sW}, 9
s_cbranch_scc1 L_CLQ
s_cmp_lg_u32 s{sW}, 8
s_cbranch_scc1 L_CX
s_cmp_lg_u32 s{sID}, 28
s_cbranch_scc1 L_CX
s_mov_b32 s{sT0}, {WS_MU}
L_CLM:
""")
    for i in range(4): k(f"buffer_store_dwordx4 v[8:11], v{vL16}, {S(SRD_WS)}, s{sT0} offen offset:{i*1024} sc1")
    k(f"""
s_add_u32 s{sT0}, s{sT0}, 4096
s_cmp_lt_u32 s{sT0}, {WS_MU+16384}
s_cbranch_scc1 L_CLM
s_waitcnt vmcnt(0)
s_mov_b64 exec, 1
buffer_store_dword v{vONE}, v{vZ}, {S(SRD_B)}, 0 offen offset:{D_GA} sc1
s_mov_b64 exec, -1
s_branch L_CX
L_CLQ:
s_sub_u32 s{sT0}, s{sID}, 14
s_mul_i32 s{sT0}, s{sT0}, 15360
s_add_u32 s{sT0}, s{sT0}, {WS_Q}
""")
    for i in range(15):
        k(f"buffer_store_dwordx4 v[8:11], v{vL16}, {S(SRD_WS)}, s{sT0} offen offset:{(i&3)*1024} sc1")
        if i & 3 == 3: k(f"s_add_u32 s{sT0}, s{sT0}, 4096")
    k(f"""
s_mov_b32 s{sT1}, 1
s_waitcnt vmcnt(0)
s_atomic_add s{sT1}, s[{P_DBG}:{P_DBG+1}], {D_CC} glc
s_waitcnt lgkmcnt(0)
s_cmp_lg_u32 s{sT1}, 17
s_cbranch_scc1 L_CX
s_mov_b64 exec, 1
buffer_store_dword v{vONE}, v{vZ}, {S(SRD_B)}, 0 offen offset:{D_GQ} sc1
buffer_store_dword v{vONE}, v{vZ}, {S(SRD_B)}, 0 offen offset:{D_GQ+64} sc1
buffer_store_dword v{vONE}, v{vZ}, {S(SRD_B)}, 0 offen offset:{D_GB} sc1
s_mov_b64 exec, -1
L_CX:
s_waitcnt vmcnt(0)
v_cmp_gt_u32 vcc, 56, v{vL}
""")
    for rr in range(2):
        for r in range(4):
            k(f"v_cndmask_b32 v{16+4*rr+r}, 0, v{16+4*rr+r}, vcc")
            unpack(36 + 2 * r, 37 + 2 * r, 16 + 4 * rr + r)
        ln_stats(36, 10, 11)
        for c in range(8): k(f"v_sub_f32 v{36+c}, v{36+c}, v10")
        for p in range(4): round2(36 + 2 * p, 37 + 2 * p, 8)
        for p in range(4):
            k(f"v_mul_f32 v{36+2*p}, v{36+2*p}, v11\nv_mul_f32 v{37+2*p}, v{37+2*p}, v11\nv_cvt_pk_bf16_f32 v{16+4*rr+p}, v{36+2*p}, v{37+2*p}")
    k(f"""
s_cmp_ge_u32 s{sID}, 14
s_cbranch_scc1 L_SGQ
s_cmp_lg_u32 s{sW}, 8
s_cbranch_scc1 L_SGAD
s_branch L_SGA
L_SGQ:
s_sleep 48
""")
    spoll(D_GA, "L_SGA")
    stamp(1)
    k(f"""
s_cmp_ge_u32 s{sID}, 14
s_cbranch_scc1 L_HN
s_barrier            ; c1
s_barrier            ; u1
s_barrier            ; u2
L_HN:
v_lshrrev_b32 v11, 2, v{vL}
v_lshlrev_b32 v11, 9, v11
v_and_b32 v12, 1, v{vL}
v_lshl_add_u32 v11, v12, 8, v11
v_bfe_u32 v12, v{vL}, 1, 1
v_lshl_add_u32 v11, v12, 3, v11
s_lshl_b32 s{sT1}, s{sT5}, 5
v_add_u32 v13, s{sT1}, v11
s_lshl_b32 s{sT0}, s{sT5}, 12
s_add_u32 s{sT0}, s{sT0}, {WS_MU}
s_mov_b32 exec_hi, 0x00ffffff
L_MU:
""")
    for rr in range(2):
        k(f"buffer_load_dwordx4 {V(24+8*rr)}, v{vL16}, {S(SRD_WS)}, s{sT0} offen offset:{rr*2048} sc1")
        k(f"buffer_load_dwordx4 {V(28+8*rr)}, v{vL16}, {S(SRD_WS)}, s{sT0} offen offset:{rr*2048+896} sc1")
    k("s_waitcnt vmcnt(0)")
    sent(range(24, 40), 8)
    retry("L_MU", "s_mov_b64 exec, vcc\ns_sleep 4")
    k("s_mov_b32 exec_lo, -1\ns_mov_b32 exec_hi, 0x00ffffff")
    stamp(4)
    for rr in range(2):
        for p in range(4):
            unpack(8, 9, 28 + 8 * rr + p)
            k("v_add_f32 v8, 1.0, v8\nv_add_f32 v9, 1.0, v9")
            round2(8, 9, 10)
            unpack(10, 11, 16 + 4 * rr + p)
            k("v_mul_f32 v8, v8, v10\nv_mul_f32 v9, v9, v11")
            round2(8, 9, 10)
            unpack(10, 11, 24 + 8 * rr + p)
            k(f"v_add_f32 v8, v8, v10\nv_add_f32 v9, v9, v11\nv_cvt_pk_bf16_f32 v{24+8*rr+p}, v8, v9")
        k(f"ds_write_b64 v13, {V(24+8*rr,2)} offset:{L_H+16*rr}\nds_write_b64 v13, {V(26+8*rr,2)} offset:{L_H+128+16*rr}")
    k("s_mov_b64 exec, -1")
    k(f"s_cmp_lg_u32 s{sW}, 8\ns_cbranch_scc1 L_SGBD")
    spoll(D_GB, "L_SGB")
    k(f"""
s_waitcnt lgkmcnt(0)
s_cmp_lt_u32 s{sID}, 14
s_cbranch_scc1 L_HM
s_barrier            ; c1
s_barrier            ; q1
L_HM:
s_barrier            ; c2
s_cmp_ge_u32 s{sID}, 28
s_cbranch_scc1 L_FIN
""")
    tile_addr(10, sT5, L_A)
    frag_tile(WF, 10)
    tile_mfma(L_H)
    k(f"""
s_barrier            ; c3
s_cmp_lg_u32 s{sW}, 8
s_cbranch_scc1 L_FIN
s_sub_u32 s{sT1}, s{sY1}, 256
s_cmp_lt_u32 s{sID}, 14
s_cselect_b32 s{sT1}, s{sT1}, s{sY0}
s_add_u32 s{sT1}, s{sT1}, {WS_Q}
""")
    stage_pub(13, sT1)
    k("s_barrier            ; c7")
    stamp(6)
    k("s_branch L_FIN")
    k("L_C8:")
    srd(SRD_A, P_C, 7168)
    k(f"s_lshl_b32 s{sT1}, s{sW}, 10\nbuffer_load_dwordx4 {V(CV)}, v{vL16}, {S(SRD_A)}, s{sT1} offen")
    srd(SRD_C, P_WQ, 448 * 8192); srd(SRD_A, P_WM, 448 * 5376)
    k(f"s_cmp_ge_u32 s{sID}, 14\ns_cbranch_scc1 L_R1Q")
    dma_tile(SRD_A, 5376, sY1, L_A)
    k("s_branch L_R1D\nL_R1Q:")
    k(f"""
v_lshrrev_b32 v8, 3, v{vL}
v_lshlrev_b32 v8, 13, v8
v_add_u32 v8, v8, v{vSW}
v_add_u32 v9, 128, v8
s_mul_i32 s{sT2}, s{sW}, {56*8192}
s_add_u32 s{sT2}, s{sT2}, s{sY0}
s_mul_i32 s{sT3}, s{sW}, 7168
s_add_u32 s{sT1}, s{sT3}, {L_B}
s_add_u32 s{sT3}, s{sT3}, {L_A}
""")
    for i in range(7):
        k(f"s_mov_b32 m0, s{sT3}\nbuffer_load_dwordx4 v8, {S(SRD_C)}, s{sT2} offen {NTW} lds")
        k(f"s_mov_b32 m0, s{sT1}\nbuffer_load_dwordx4 v9, {S(SRD_C)}, s{sT2} offen {NTW} lds")
        L = k.newlabel("LT3")
        k(f"s_cmp_ge_u32 s{sID}, 28\ns_cbranch_scc1 {L}")
        k(f"buffer_load_dwordx4 {V(AF+4*i)}, v8, {S(SRD_C)}, s{sT2} offen offset:256 {NTW}\n{L}:")
        if i < 6: k(f"s_add_u32 s{sT2}, s{sT2}, {8*8192}\ns_add_u32 s{sT3}, s{sT3}, 1024\ns_add_u32 s{sT1}, s{sT1}, 1024")
    k("L_R1D:")
    k("s_waitcnt vmcnt(7)")
    stamp(1)
    k(f"s_cmp_eq_u32 s{sW}, 7\ns_cbranch_scc1 L_NOSILU")
    k(f"s_mov_b32 s{sT3}, {f32(-LOG2E)}")
    for r in range(4):
        unpack(8, 9, CV + r)
        k(f"""
v_mul_f32 v10, s{sT3}, abs(v8)
v_mul_f32 v11, s{sT3}, abs(v9)
v_exp_f32 v10, v10
v_exp_f32 v11, v11
v_add_f32 v12, 1.0, v10
v_add_f32 v13, 1.0, v11
v_rcp_f32 v12, v12
v_rcp_f32 v13, v13
v_mul_f32 v10, v10, v12                    ; sigmoid(-|x|)
v_mul_f32 v11, v11, v13
v_max_f32 v12, 0, v8
v_max_f32 v13, 0, v9
v_fma_f32 v8, -abs(v8), v10, v12
v_fma_f32 v9, -abs(v9), v11, v13
v_cvt_pk_bf16_f32 v{CV+r}, v8, v9
""")
    k(f"""
s_lshl_b32 s{sT1}, s{sW}, 6
v_add_u32 v8, s{sT1}, v{vL}
v_mul_u32_u24 v9, 1171, v8
v_lshrrev_b32 v9, 16, v9                   ; m
v_mul_u32_u24 v10, 56, v9
v_sub_u32 v10, v8, v10                     ; cc
v_lshrrev_b32 v11, 2, v10
v_lshlrev_b32 v11, 9, v11
v_lshl_add_u32 v11, v9, 4, v11
v_and_b32 v12, 1, v10
v_lshl_add_u32 v11, v12, 8, v11
v_bfe_u32 v12, v10, 1, 1
v_lshl_add_u32 v11, v12, 3, v11
ds_write_b64 v11, {V(CV,2)} offset:{L_SC}
ds_write_b64 v11, {V(CV+2,2)} offset:{L_SC+128}
L_NOSILU:
""")
    k("s_waitcnt vmcnt(0) lgkmcnt(0)\ns_barrier            ; c1")
    stamp(2)
    def frag_ab():
        k(f"s_mov_b32 s{sT1}, {L_B}\ns_cmp_lt_u32 s{sW}, 4\ns_cselect_b32 s{sT1}, {L_A}, s{sT1}")
        tile_addr(10, sT5, f"s{sT1}")
        frag_tile(WF, 10)
    k(f"s_cmp_ge_u32 s{sID}, 14\ns_cbranch_scc1 L_CQ")
    k(f"s_cmp_ge_u32 s{sW}, 4\ns_cbranch_scc1 L_U1")
    frag_ab()
    tile_mfma(L_SC)
    k("L_U1:\ns_barrier            ; u1")
    k(f"s_cmp_lg_u32 s{sW}, 0\ns_cbranch_scc1 L_U2")
    k(f"s_add_u32 s{sT1}, s{sY1}, {WS_MU}")
    stage_pub(11, sT1)
    stamp(3)
    k("L_U2:\ns_barrier            ; u2")
    dma_tile(SRD_C, 8192, sY1, L_A)
    k("s_waitcnt vmcnt(0)\ns_barrier            ; c2\ns_barrier            ; c3\ns_branch L_CLZ")
    k("L_CQ:")
    frag_ab()
    k(f"s_barrier            ; q1\ns_mul_i32 s{sT2}, s{sW}, 7168\ns_add_u32 s{sT2}, s{sT2}, {L_A}\nv_add_u32 v8, s{sT2}, v{vL16}")
    for i in range(7): k(f"ds_write_b128 v8, {V(AF+4*i)} offset:{i*1024}")
    k("s_waitcnt lgkmcnt(0)\ns_barrier            ; c2")
    tile_mfma(L_H)
    k("s_barrier            ; c3")
    k(f"s_cmp_lg_u32 s{sT5}, 0\ns_cbranch_scc1 L_CQ2")
    k(f"s_add_u32 s{sT1}, s{sY0}, {WS_Q}")
    stage_pub(13, sT1)
    stamp(5)
    k(f"L_CQ2:\ns_cmp_ge_u32 s{sID}, 28\ns_cbranch_scc1 L_FIN")
    k("L_CLZ:\ns_barrier            ; c7")
    k(f"s_add_u32 s{sT1}, s{sY1}, {14*128}")
    dma_tile(SRD_A, 5376, sT1, L_B)
    k("s_waitcnt vmcnt(0)\ns_barrier            ; c8")
    k(f"s_cmp_lt_u32 s{sW}, 4\ns_cbranch_scc1 L_FIN")
    frag_ab()
    tile_mfma(L_SC)
    k("s_barrier            ; c9")
    k(f"s_cmp_lg_u32 s{sW}, 4\ns_cbranch_scc1 L_FIN")
    k(f"s_add_u32 s{sT1}, s{sY1}, {WS_M-128}")
    stage_pub(12, sT1)
    k("s_waitcnt vmcnt(0)")
    counter_go(D_CM, 27, D_GM, "L_CG1")
    stamp(7)
    k("s_branch L_FIN")

    FW, F2, F13 = 16, 80, 16
    k("L_TAILWG:")
    if o.get("x_notw"): k("s_endpgm")
    svc_setup()
    k(f"s_mov_b32 s{sMODE}, 0\ns_cmp_lt_u32 s{sW}, 8\ns_cbranch_scc1 L_T8")
    neg1()
    k(f"""
s_sub_u32 s{sT5}, s{sW}, 8
s_cmp_lg_u32 s{sW}, 10
s_cbranch_scc1 L_TC3
s_setprio 3
s_getreg_b32 s{sT1}, hwreg(HW_REG_XCC_ID, 0, 4)
s_mul_i32 s{sT2}, s{sT1}, s{sT1}
s_lshl_b32 s{sT2}, s{sT2}, 16
s_lshl_b32 s{sT1}, s{sT1}, 6
s_add_u32 s{sT2}, s{sT2}, s{sT1}
s_add_u32 s{sT2}, s{sT2}, 1                ; 1 | x<<6 | x^2<<16
v_mov_b32 v12, s{sT2}
s_mov_b64 exec, 1
buffer_atomic_add v12, v{vZ}, {S(SRD_B)}, 0 offen offset:{D_XC} sc0 sc1
s_waitcnt vmcnt(0)
v_readfirstlane_b32 s{sT1}, v12
s_add_u32 s{sT1}, s{sT1}, s{sT2}
s_and_b32 s{sT2}, s{sT1}, 63
s_cmp_lg_u32 s{sT2}, 32
s_cbranch_scc1 L_TC5
s_bfe_u32 s{sT2}, s{sT1}, 0xa0006
s_mul_i32 s{sT2}, s{sT2}, s{sT2}
s_lshr_b32 s{sT1}, s{sT1}, 16
s_lshl_b32 s{sT1}, s{sT1}, 5
s_cmp_eq_u32 s{sT1}, s{sT2}
s_cselect_b32 s{sT1}, {2 if o.get("slow") else 1}, 2
v_mov_b32 v12, s{sT1}
buffer_store_dword v12, v{vZ}, {S(SRD_B)}, 0 offen offset:{D_MODE} sc1
L_TC5:
s_mov_b64 exec, -1
s_setprio 0
L_TC3:
s_cmp_lg_u32 s{sID}, 31
s_cbranch_scc1 L_T9
""")
    code_prefetch("T", sT5)
    k(f"""
s_branch L_T9
L_T8:
""")
    srd(SRD_C, P_WO, 4096 * 896)
    k(f"""
v_mul_u32_u24 v8, 37, v{vL}
v_lshrrev_b32 v8, 9, v8                    ; l/14
v_mul_u32_u24 v9, 14, v8
v_sub_u32 v9, v{vL}, v9
v_mul_u32_u24 v8, 896, v8
v_lshl_add_u32 v8, v9, 4, v8
s_lshr_b32 s{sT1}, s{sID}, 2
s_lshl_b32 s{sT1}, s{sT1}, 9
s_lshl_b32 s{sT2}, s{sW}, 5
s_add_u32 s{sT1}, s{sT1}, s{sT2}
s_mul_i32 s{sT1}, s{sT1}, 896
s_and_b32 s{sT2}, s{sID}, 3
s_mul_i32 s{sT2}, s{sT2}, 224
s_add_u32 s{sT2}, s{sT2}, s{sT1}
s_mul_i32 s{sT3}, s{sW}, 7168
s_add_u32 s{sT3}, s{sT3}, {L_A}
s_mov_b32 exec_hi, 0x00ffffff
""")
    for i in range(16):
        k(f"s_mov_b32 m0, s{sT3}\nbuffer_load_dwordx4 v8, {S(SRD_C)}, s{sT2} offen {NTW} lds")
        if i == 7: k(f"s_add_u32 s{sT2}, s{sT2}, {(256-28)*896}\ns_sub_u32 s{sT3}, s{sT3}, {L_A-L_B+7*896}")
        elif i < 15: k(f"s_add_u32 s{sT2}, s{sT2}, {4*896}\ns_add_u32 s{sT3}, s{sT3}, 896")
    k("s_mov_b64 exec, -1")
    k("L_T9:")
    svc_setup2()
    isF = f"s_cmp_ge_u32 s{sID}, 28"
    def frag_wo(dst, buf):
        L = k.newlabel("LFW")
        k(f"s_cmp_ge_u32 s{sW}, 7\ns_cbranch_scc1 {L}")
        k(f"v_mul_u32_u24 v8, 224, v{vTR}\nv_and_b32 v9, 3, v{vL}\nv_lshl_add_u32 v8, v9, 3, v8")
        k(f"s_lshl_b32 s{sT2}, s{sW}, 5\ns_add_u32 s{sT2}, s{sT2}, {buf}\nv_add_u32 v8, s{sT2}, v8")
        for T in range(8):
            k(f"ds_read_b64_tr_b16 {V(dst+4*T,2)}, v8 offset:{T*7168}\nds_read_b64_tr_b16 {V(dst+4*T+2,2)}, v8 offset:{T*7168+3584}")
            if T in (3, 7): k("s_waitcnt lgkmcnt(0)")
        k(f"{L}:")
    def if_loader(fn):
        L = k.newlabel("LL")
        k(f"s_cmp_ge_u32 s{sW}, 8\ns_cbranch_scc1 {L}\n{isF}\ns_cbranch_scc1 {L}")
        fn()
        k(f"{L}:")
    k("s_waitcnt vmcnt(8)\ns_barrier            ; t1")
    stamp(1)
    frag_wo(FW, L_A)
    k("s_barrier            ; t2")
    def ld_w2():
        srd(SRD_A, P_W2, 1792 * 896)
        k(f"s_lshl_b32 s{sT1}, s{sID}, 6")
        dma_rows(SRD_A, sT1, L_A)
        k("s_waitcnt vmcnt(8)\ns_branch L_T10")
    if_loader(ld_w2)
    k("s_waitcnt vmcnt(0)\nL_T10:\ns_barrier            ; t3")
    stamp(2)
    frag_wo(FW + 32, L_B)
    k("s_barrier            ; t4")
    def ld_w1():
        srd(SRD_A, P_W1, 448 * 3584)
        k(f"s_lshl_b32 s{sT1}, s{sID}, 7")
        dma_tile(SRD_A, 3584, sT1, L_B)
        k("s_waitcnt vmcnt(7)\ns_branch L_T14")
    if_loader(ld_w1)
    k(f"s_cmp_lt_u32 s{sW}, 8\ns_cbranch_scc1 L_T11\ns_cmp_eq_u32 s{sW}, 11\ns_cbranch_scc1 L_T11")
    poll_flag(D_MODE, "L_PM", sleep=4)
    k(f"v_readfirstlane_b32 s{sMODE}, v9\n{isF}\ns_cbranch_scc1 L_T11")
    neg1()
    k(f"""
s_cmp_eq_u32 s{sW}, 10
s_cbranch_scc1 L_T12
s_mul_i32 s{sT0}, s{sID}, 4352
s_add_u32 s{sT0}, s{sT0}, {WS_PA}
s_add_u32 s{sT1}, s{sT0}, 8192
s_cmp_eq_u32 s{sW}, 8
s_cbranch_scc1 L_T13
s_mul_i32 s{sT0}, s{sID}, 8448
s_add_u32 s{sT0}, s{sT0}, {WS_PB}
s_add_u32 s{sT1}, s{sT0}, 12288
L_T13:
""")
    lstore([f"buffer_store_dwordx4 v[8:11], v{vL16}, {S(SRD_WS)}, s{sT0} offen offset:{i*1024}" for i in range(4)])
    k(f"""
s_add_u32 s{sT0}, s{sT0}, 4096
s_cmp_lt_u32 s{sT0}, s{sT1}
s_cbranch_scc1 L_T13
s_branch L_T11
L_T12:
s_cmp_ge_u32 s{sID}, 8
s_cbranch_scc1 L_T11
s_lshl_b32 s{sT0}, s{sID}, 10
s_add_u32 s{sT0}, s{sT0}, {WS_X1}
""")
    lstore([f"buffer_store_dwordx4 v[8:11], v{vL16}, {S(SRD_WS)}, s{sT0} offen"])
    k("L_T11:")
    k("s_waitcnt vmcnt(0)\nL_T14:\ns_barrier            ; t5")
    stamp(3)
    k(f"s_cmp_lg_u32 s{sW}, 8\ns_cbranch_scc1 L_T15")
    counter_go(D_CB, 31, D_GO2, "L_CG2")
    k("L_T15:")
    k(f"{isF}\ns_cbranch_scc1 L_T16")
    frag_rows(F2, L_A)
    k("L_T16:\ns_barrier            ; t6")
    def ld_w3():
        srd(SRD_A, P_W3, 448 * 3584)
        k(f"s_lshl_b32 s{sT1}, s{sID}, 7")
        dma_tile(SRD_A, 3584, sT1, L_A)
    if_loader(ld_w3)
    k(f"s_cmp_lg_u32 s{sW}, 8\ns_cbranch_scc1 L_T17")
    poll_flag(D_GO2, "L_G1", sleep=8)
    poll_flag(D_GB, "L_G1B", sleep=8)
    k(f"v_mov_b32 v9, s{sMODE}\nds_write_b32 v{vZ}, v9 offset:{L_T}")
    k("L_T17:\ns_waitcnt vmcnt(0) lgkmcnt(0)\ns_barrier            ; t7")
    stamp(4)
    if o.get("x_notail"): k("s_branch L_FIN")
    k(f"ds_read_b32 v9, v{vZ} offset:{L_T}\ns_waitcnt lgkmcnt(0)\nv_readfirstlane_b32 s{sMODE}, v9")
    srd(SRD_A, P_X, 7168); srd(SRD_C, P_OUT, 7168)
    k(f"v_lshlrev_b32 v13, 1, v{vL}\ns_mov_b32 s{sY0}, 0\ns_mov_b32 s{sY1}, 0\ns_mov_b32 s{sT4}, 0")
    MC, MS = 160, 164
    vGA, vGB, vXX, vX1 = 152, 154, 156, 158
    vOAW, vST = 152, 153
    k(f"""
v_mov_b32 v{vST}, 0
v_mov_b32 v12, 0
s_cmp_ge_u32 s{sW}, 8
s_cbranch_scc1 L_T21
v_lshrrev_b32 v8, 5, v{vL}
v_lshlrev_b32 v12, 3, v8                   ; ML: h*8
v_lshlrev_b32 v8, 12, v8                   ; 8h*512
v_lshrrev_b32 v9, 2, v{vN}
v_lshl_add_u32 v8, v9, 9, v8               ; (n>>2)*512
v_and_b32 v9, 1, v{vN}
v_lshl_add_u32 v8, v9, 8, v8               ; 2(n&1)*128
v_and_b32 v9, 1, v{vG}
v_lshl_add_u32 v8, v9, 7, v8               ; (gq&1)*128
v_bfe_u32 v9, v{vN}, 1, 1
v_lshl_add_u32 v8, v9, 3, v8               ; half*8
s_lshl_b32 s{sT1}, s{sW}, 4
v_add_u32 v{vOAW}, s{sT1}, v8
v_lshrrev_b32 v8, 1, v{vG}
v_mul_u32_u24 v8, 2176, v8
v_and_b32 v9, 1, v{vG}
v_lshl_add_u32 v8, v9, 10, v8
v_lshl_add_u32 v{vST}, v{vN}, 4, v8
s_lshr_b32 s{sKVH}, s{sID}, 2
s_mul_i32 s{sT0}, s{sKVH}, 24576
s_mul_i32 s{sT1}, s{sW}, 3072
s_add_u32 s{sT0}, s{sT0}, s{sT1}
s_add_u32 s{sT0}, s{sT0}, {WS_O}
s_lshl_b32 s{sT1}, s{sKVH}, 9
s_lshl_b32 s{sT2}, s{sW}, 6
s_add_u32 s{sT1}, s{sT1}, s{sT2}
s_add_u32 s{sT1}, s{sT1}, {WS_ML}
s_mov_b32 s{sNT}, 7
s_and_b32 s{sY0}, s{sID}, 3
s_mul_i32 s{sY0}, s{sY0}, 14
s_lshl_b32 s{sT2}, s{sW}, 1
s_add_u32 s{sY0}, s{sY0}, s{sT2}
s_mul_i32 s{sY0}, s{sY0}, 2176
s_lshl_b32 s{sT2}, s{sKVH}, 7
s_add_u32 s{sY0}, s{sY0}, s{sT2}
s_add_u32 s{sY0}, s{sY0}, {WS_PA}
""")
    k("s_branch L_AL0\nL_T21:")
    def frag13():
        k(f"""
s_sub_u32 s{sT2}, s{sW}, 8
v_lshrrev_b32 v8, 1, v{vTR}
v_and_b32 v8, 3, v8
v_xor_b32 v8, s{sT2}, v8
v_lshlrev_b32 v8, 5, v8
v_lshl_add_u32 v8, v{vTR}, 7, v8
v_and_b32 v9, 1, v{vL}
v_lshl_add_u32 v8, v9, 3, v8
v_bfe_u32 v9, v{vL}, 1, 1
v_mul_u32_u24 v9, {L_A-L_B}, v9
v_add_u32 v8, v8, v9
v_add_u32 v10, {L_B}, v8
v_add_u32 v11, 16, v10
""")
        frag_tile(F13, 10); frag_tile(F13 + 56, 11)
    frag13()
    k(f"{isF}\ns_cbranch_scc1 L_T22\ns_cmp_eq_u32 s{sW}, 11\ns_cbranch_scc1 L_PAD0")
    k(f"""
s_mul_i32 s{sT0}, s{sID}, 8448
s_add_u32 s{sT0}, s{sT0}, {WS_PB}
s_mul_i32 s{sT1}, s{sID}, 4352
s_add_u32 s{sT1}, s{sT1}, {WS_PA}
s_cmp_eq_u32 s{sW}, 9
s_cselect_b32 s{sT0}, s{sT1}, s{sT0}
s_cmp_eq_u32 s{sW}, 10
s_cselect_b32 s{sT0}, {WS_X1}, s{sT0}
v_lshlrev_b32 v8, 7, v{vL}
buffer_load_dword v128, v8, {S(SRD_WS)}, s{sT0} offen sc1
""")
    if not o.get("x_nom"): poll_flag(D_GM, "L_PGMM", sleep=8)
    k(f"s_cmp_lg_u32 s{sW}, 10\ns_cbranch_scc1 L_T23")
    k(f"s_mov_b32 exec_hi, 0x00ffffff\ns_mov_b32 s{sT0}, {WS_M+896}\ns_mov_b32 s{sT1}, {WS_M+1792}")
    for bb in range(8):
        k(f"s_mov_b32 m0, {L_MM+7168+bb*896}\nbuffer_load_dwordx4 v{vL16}, {S(SRD_WS)}, s{sT0} offen sc1 lds")
        k(f"s_mov_b32 m0, {L_MM+bb*896}\nbuffer_load_dwordx4 v{vL16}, {S(SRD_WS)}, s{sT1} offen sc1 lds")
        if bb < 7: k(f"s_add_u32 s{sT0}, s{sT0}, 4096\ns_add_u32 s{sT1}, s{sT1}, 4096")
    k("s_waitcnt vmcnt(0)")
    k("s_mov_b64 exec, -1\ns_branch L_T22")
    k(f"""
L_T23:
s_lshl_b32 s{sT4}, s{sID}, 1
s_add_u32 s{sT4}, s{sT4}, s{sW}
s_sub_u32 s{sT4}, s{sT4}, 8                ; task
s_lshl_b32 s{sY0}, s{sT4}, 4
s_add_u32 s{sT1}, s{sY0}, {WS_M}
s_add_u32 s{sY1}, s{sY0}, {WS_X1}
v_and_b32 v8, 7, v{vL}
v_lshlrev_b32 v9, 2, v{vG}
v_lshl_add_u32 v10, v8, 12, v9             ; M : b*4096 + pair*4
v_lshl_add_u32 v12, v8, 10, v9             ; X1: b*1024 + pair*4
v_mul_u32_u24 v13, 896, v8
v_add_u32 v13, v13, v9
buffer_load_dword v{vGA}, v10, {S(SRD_WS)}, s{sT1} offen sc1
buffer_load_dword v{vGB}, v10, {S(SRD_WS)}, s{sT1} offen offset:2688 sc1
buffer_load_dword v{vXX}, v13, {S(SRD_A)}, s{sY0} offen
""")
    k("s_waitcnt vmcnt(0)")
    for r in (vGA, vGB, vXX): k(f"v_and_b32 v{r+1}, 0xffff0000, v{r}\nv_lshlrev_b32 v{r}, 16, v{r}")
    k("L_T22:\ns_setprio 3\ns_branch L_TB1")
    OG = 112
    k(".p2align 12\nL_AL0:")
    stamp(8)
    k("L_AL:")
    for sp in range(3):
        L = k.newlabel("LA"); g0 = OG + 6 * sp
        k(f"s_bitcmp1_b32 s{sNT}, {sp}\ns_cbranch_scc0 {L}")
        k(f"buffer_load_dwordx2 {V(g0+4,2)}, v12, {S(SRD_WS)}, s{sT1} offen offset:{sp*16} sc1")
        k(f"buffer_load_dwordx4 {V(g0)}, v{vL16}, {S(SRD_WS)}, s{sT0} offen offset:{sp*1024} sc1")
        k(f"{L}:")
    k(f"s_waitcnt vmcnt(0)")
    for sp in range(3):
        L = k.newlabel("LA"); g0 = OG + 6 * sp
        k(f"s_bitcmp1_b32 s{sNT}, {sp}\ns_cbranch_scc0 {L}")
        sent(range(g0, g0 + 6), 8)
        k(f"s_cbranch_vccnz {L}\ns_bitset0_b32 s{sNT}, {sp}\n{L}:")
    k(f"s_cmp_eq_u32 s{sNT}, 0\ns_cbranch_scc1 L_ALD\ns_cmp_lg_u32 s{sNT}, 7\ns_cbranch_scc1 L_ALS\ns_sleep {o.get('asleep', 8)}\nL_ALS:")
    budget_loop("L_AL")
    k("L_ALD:\ns_setprio 3")
    stamp(9)
    def mm(sp): return OG + 6 * sp + 4
    AC = 132
    k(f"v_max3_f32 v8, v{mm(0)}, v{mm(1)}, v{mm(2)}")
    for sp in range(3): k(f"v_sub_f32 v{mm(sp)}, v{mm(sp)}, v8")
    for sp in range(3): k(f"v_mul_f32 v{mm(sp)}, s{sCC}, v{mm(sp)}")
    for sp in range(3): k(f"v_exp_f32 v{mm(sp)}, v{mm(sp)}")
    for r in range(4): unpack(AC + 2 * r, AC + 2 * r + 1, OG + r)
    for sp in range(3): k(f"v_mul_f32 v{mm(sp)}, v{mm(sp)}, v{mm(sp)+1}")
    k(f"v_add_f32 v8, v{mm(0)}, v{mm(1)}\nv_add_f32 v8, v8, v{mm(2)}\nv_rcp_f32 v8, v8")
    for r in range(4): unpack(AC + 8 + 2 * r, AC + 9 + 2 * r, OG + 6 + r)
    for sp in range(3): k(f"v_mul_f32 v{mm(sp)}, v{mm(sp)}, v8")
    for r in range(8): k(f"v_mul_f32 v{AC+r}, v{AC+r}, v{mm(0)}")
    for r in range(8): k(f"v_fmac_f32 v{AC+r}, v{AC+8+r}, v{mm(1)}")
    for r in range(4): unpack(AC + 8 + 2 * r, AC + 9 + 2 * r, OG + 12 + r)
    for r in range(8): k(f"v_fmac_f32 v{AC+r}, v{AC+8+r}, v{mm(2)}")
    for p in range(4): k(f"v_cvt_pk_bf16_f32 v{OG+12+p}, v{AC+2*p}, v{AC+2*p+1}")
    k(f"""
ds_write_b64 v{vOAW}, {V(OG+12,2)} offset:{L_OA}
ds_write_b64 v{vOAW}, {V(OG+14,2)} offset:{L_OA+2048}
s_waitcnt lgkmcnt(0)
""")
    k("L_TB1:\ns_barrier            ; T1")
    k(f"s_cmp_ge_u32 s{sW}, 7\ns_cbranch_scc1 L_WOD")
    ACT = [112 + 4 * i for i in range(8)]
    for T in range(8): k(f"ds_read_b128 {V(ACT[T])}, v{vBA} offset:{L_OA+T*512}")
    for T in range(16):
        k(f"s_waitcnt lgkmcnt({min(7, 15-T)})")
        k(f"{MF} v[144:147], {V(FW+4*T)}, {V(ACT[T%8])}, {'0' if T == 0 else 'v[144:147]'}")
        if T < 8: k(f"ds_read_b128 {V(ACT[T])}, v{vBA} offset:{L_OA+(T+8)*512}")
    for r in range(4): k(f"v_min_u32 v{144+r}, -2, v{144+r}")
    k(f"s_andn2_b64 exec, exec, s[{sMN}:{sMN+1}]")
    lstore([f"buffer_store_dwordx4 v[144:147], v{vST}, {S(SRD_WS)}, s{sY0} offen"])
    k("s_mov_b64 exec, -1\nL_WOD:")
    stamp(10)
    k(f"{isF}\ns_cbranch_scc1 L_FIN")
    k(f"s_cmp_lt_u32 s{sW}, 8\ns_cbranch_scc1 L_B2S\ns_cmp_ge_u32 s{sW}, 10\ns_cbranch_scc1 L_TB3")
    k(f"""
L_B1S:
s_mul_i32 s{sT0}, s{sT4}, 2176
s_add_u32 s{sT0}, s{sT0}, {WS_PA}
s_setprio 0
L_B1:
buffer_load_dwordx4 v[136:139], v{vL16}, {S(SRD_WS)}, s{sT0} offen sc1
buffer_load_dwordx4 v[140:143], v{vL16}, {S(SRD_WS)}, s{sT0} offen offset:1024 sc1
s_waitcnt vmcnt(0)
""")
    sent(range(136, 144), 8)
    retry("L_B1", "s_mov_b64 exec, vcc" + (f"\ns_sleep {o['r1']}" if o.get("r1") else ""))
    k("s_setprio 3\ns_mov_b64 exec, -1")
    stamp(11)
    def fold8(a):
        for r in range(4): k(f"v_permlane32_swap_b32 v{a+r}, v{a+4+r}")
        k(f"v_pk_add_f32 {V(a,2)}, {V(a,2)}, {V(a+4,2)}\nv_pk_add_f32 {V(a+2,2)}, {V(a+2,2)}, {V(a+6,2)}")
        k(f"v_permlane16_swap_b32 v{a}, v{a+2}\nv_permlane16_swap_b32 v{a+1}, v{a+3}\nv_pk_add_f32 {V(a,2)}, {V(a,2)}, {V(a+2,2)}")
        k(f"v_add_f32_dpp v{a}, v{a}, v{a} row_ror:8 row_mask:0xf bank_mask:0xf\nv_add_f32_dpp v{a+1}, v{a+1}, v{a+1} row_ror:8 row_mask:0xf bank_mask:0xf")
    fold8(136)
    round2(136, 137, 8)
    k(f"v_pk_mul_f32 v[136:137], v[136:137], {V(vGA,2)}")
    round2(136, 137, 8)
    k(f"""
v_pk_add_f32 v[136:137], v[136:137], {V(vXX,2)}
v_cvt_pk_bf16_f32 v138, v136, v137
v_min_u32 v138, -2, v138
s_andn2_b64 exec, exec, s[{sMN}:{sMN+1}]
""")
    lstore([f"buffer_store_dword v138, v12, {S(SRD_WS)}, s{sY1} offen"])
    k("s_mov_b64 exec, -1")
    stamp(12)
    unpack(vX1, vX1 + 1, 138)
    k("s_branch L_TB3")
    Y = 128
    k("L_PAD0:\ns_branch L_PAD1\nL_B2S:")
    chunk_dst(144)
    k(f"""
s_lshl_b32 s{sT0}, s{sW}, 10
s_add_u32 s{sT0}, s{sT0}, {WS_X1}
v_mov_b32 v136, 0
v_mov_b32 v137, 0
v_mov_b32 v138, 0
v_mov_b32 v139, 0
v_mov_b32 v145, 0x3f803f80
v_mov_b32 v146, {f32(1.0/448)}
s_mul_i32 s{sT3}, s{sW}, 896
s_add_u32 s{sT3}, s{sT3}, {L_MM}
v_add_u32 v8, s{sT3}, v{vL16}
ds_read_b128 {V(MC)}, v8
ds_read_b128 {V(MS)}, v8 offset:7168
s_waitcnt lgkmcnt(0)
""")
    CU_, SU_ = 16, 24
    for r in range(4):
        unpack(CU_ + 2 * r, CU_ + 2 * r + 1, MC + r)
        k(f"v_add_f32 v{CU_+2*r}, 1.0, v{CU_+2*r}\nv_add_f32 v{CU_+2*r+1}, 1.0, v{CU_+2*r+1}")
        round2(CU_ + 2 * r, CU_ + 2 * r + 1, 8)
        unpack(SU_ + 2 * r, SU_ + 2 * r + 1, MS + r)
    k(f"""
s_mov_b32 exec_hi, 0x00ffffff
s_setprio 0
L_B2:
buffer_load_dwordx4 v[136:139], v{vL16}, {S(SRD_WS)}, s{sT0} offen sc1
s_waitcnt vmcnt(0)
v_max3_u32 v8, v136, v137, v138
v_max_u32 v8, v8, v139
v_cmp_eq_u32 vcc, -1, v8
""")
    retry("L_B2", "s_mov_b64 exec, vcc" + (f"\ns_sleep {o['r2']}" if o.get("r2") else ""))
    k("s_setprio 3\ns_mov_b64 exec, -1")
    stamp(13)
    k("v_dot2_f32_bf16 v8, v136, v145, 0\nv_dot2_f32_bf16 v9, v136, v136, 0")
    for r in range(1, 4): k(f"v_dot2_f32_bf16 v8, v{136+r}, v145, v8\nv_dot2_f32_bf16 v9, v{136+r}, v{136+r}, v9")
    unpack(Y, Y + 1, 136); unpack(Y + 2, Y + 3, 137)
    steps = [f"row_shr:{sh} row_mask:0xf bank_mask:0xf bound_ctrl:0" for sh in (1, 2, 4, 8)] + ["row_bcast:15 row_mask:0xa bank_mask:0xf", "row_bcast:31 row_mask:0xc bank_mask:0xf"]
    fill = [f"v_lshlrev_b32 v{Y+4}, 16, v138", f"v_and_b32 v{Y+5}, 0xffff0000, v138", f"v_lshlrev_b32 v{Y+6}, 16, v139", f"v_and_b32 v{Y+7}, 0xffff0000, v139"]
    for i, m in enumerate(steps):
        k(f"v_add_f32_dpp v8, v8, v8 {m}\nv_add_f32_dpp v9, v9, v9 {m}")
        if i < 4: k(fill[i])
    k(f"""
v_readlane_b32 s{sT1}, v8, 63
v_readlane_b32 s{sT2}, v9, 63
v_mul_f32 v10, s{sT1}, v146
v_mul_f32 v11, s{sT2}, v146
v_fma_f32 v11, -v10, v10, v11
v_max_f32 v11, 0, v11
""")
    round2(10, 11, 8)
    k(f"v_add_f32 v11, {f32(1e-5)}, v11")
    R = o.get("lnround", 0)
    seq = ["v_cvt_pk_bf16_f32 v11, v11, v11", "v_lshlrev_b32 v11, 16, v11", "v_sqrt_f32 v11, v11", "", "v_cvt_pk_bf16_f32 v11, v11, v11", "v_lshlrev_b32 v11, 16, v11", "v_rcp_f32 v11, v11", ""]
    for c in range(8):
        k(f"v_sub_f32 v{Y+c}, v{Y+c}, v10")
        if seq[c]: k(seq[c])
    if R:
        for p in range(4): round2(Y + 2 * p, Y + 2 * p + 1, 8)
    for c in range(8): k(f"v_mul_f32 v{Y+c}, v{Y+c}, v11")
    if R:
        for p in range(4): round2(Y + 2 * p, Y + 2 * p + 1, 8)
        for c in range(8): k(f"v_mul_f32 v{Y+c}, v{Y+c}, v{CU_+c}")
        for p in range(4): round2(Y + 2 * p, Y + 2 * p + 1, 8)
        for c in range(8): k(f"v_add_f32 v{Y+c}, v{Y+c}, v{SU_+c}")
    else:
        for c in range(8): k(f"v_fma_f32 v{Y+c}, v{Y+c}, v{CU_+c}, v{SU_+c}")
    for p in range(4): k(f"v_cvt_pk_bf16_f32 v{136+p}, v{Y+2*p}, v{Y+2*p+1}")
    k(f"""
s_mov_b32 exec_hi, 0x00ffffff
ds_write_b64 v144, v[136:137] offset:{L_SC}
ds_write_b64 v144, v[138:139] offset:{L_SC+128}
s_mov_b64 exec, -1
s_waitcnt lgkmcnt(0)
L_TB3:
s_barrier            ; T3
s_cmp_ge_u32 s{sW}, 8
s_cbranch_scc1 L_W13
s_cmp_eq_u32 s{sW}, 7
s_cbranch_scc1 L_FIN
v_and_b32 v9, 7, v{vN}
v_mul_u32_u24 v8, 136, v9
v_lshl_add_u32 v8, v{vG}, 3, v8
v_add_u32 v8, {L_G}, v8
v_lshrrev_b32 v10, 3, v{vN}
v_lshl_add_u32 v10, v10, 2, v{vG}
v_mul_u32_u24 v10, 4224, v10
v_lshl_add_u32 v9, v9, 4, v10
s_mul_i32 s{sT0}, s{sW}, {8*4224}
s_lshl_b32 s{sT1}, s{sID}, 7
s_add_u32 s{sT0}, s{sT0}, s{sT1}
s_add_u32 s{sT0}, s{sT0}, {WS_PB}
s_barrier            ; T4
ds_read2_b64 v[112:115], v8 offset0:0 offset1:4
ds_read2_b64 v[116:119], v8 offset0:8 offset1:12
""")
    for T in range(2):
        k(f"s_waitcnt lgkmcnt({1-T})")
        for q in range(4):
            k(f"{MF} {V(128+4*q)}, {V(F2+(T*4+q)*4)}, {V(112+4*T)}, {'0' if T == 0 else V(128+4*q)}")
    for q in range(4):
        k(f"v_cvt_pk_bf16_f32 v{144+2*q}, v{128+4*q}, v{129+4*q}\nv_cvt_pk_bf16_f32 v{145+2*q}, v{130+4*q}, v{131+4*q}")
    for r in range(4):
        k(f"v_cndmask_b32 v{144+r}, v{144+r}, v{148+r}, s[{sMN}:{sMN+1}]\nv_min_u32 v{144+r}, -2, v{144+r}")
    lstore([f"buffer_store_dwordx4 v[144:147], v9, {S(SRD_WS)}, s{sT0} offen"])
    stamp(14)
    k("s_branch L_FIN")
    k("L_PAD1:\ns_branch L_PAD2\nL_W13:")
    stamp(7)
    HA = [128 + 4 * i for i in range(6)]
    A0, A1 = 160, 164
    for t in range(6): k(f"ds_read_b128 {V(HA[t])}, v{vBA} offset:{L_SC+t*512}")
    k(f"""
s_mov_b32 s{sT3}, {f32(-LOG2E)}
v_and_b32 v8, 7, v{vN}
v_mul_u32_u24 v8, 136, v8
v_and_b32 v9, 1, v{vG}
v_lshl_add_u32 v8, v9, 3, v8
v_lshrrev_b32 v9, 5, v{vL}
v_lshl_add_u32 v8, v9, 2, v8
v_lshrrev_b32 v9, 3, v{vN}
v_lshl_add_u32 v8, v9, 4, v8
s_sub_u32 s{sT1}, s{sW}, 8
s_lshl_b32 s{sT1}, s{sT1}, 5
v_add_u32 v8, s{sT1}, v8
""")
    for t in range(14):
        k(f"s_waitcnt lgkmcnt({min(5, 13-t)})")
        k(f"{MF} {V(A0)}, {V(F13+4*t)}, {V(HA[t%6])}, {'0' if t == 0 else V(A0)}")
        k(f"{MF} {V(A1)}, {V(F13+56+4*t)}, {V(HA[t%6])}, {'0' if t == 0 else V(A1)}")
        if t + 6 < 14: k(f"ds_read_b128 {V(HA[t%6])}, v{vBA} offset:{L_SC+(t+6)*512}")
    for r in range(4): k(f"v_cndmask_b32 v{A0+r}, v{A0+r}, v{A1+r}, s[{sMN}:{sMN+1}]")
    k(f"""
v_permlane32_swap_b32 v{A0}, v{A0+2}
v_permlane32_swap_b32 v{A0+1}, v{A0+3}
""")
    round2(A0, A0 + 1, 12)
    k(f"""
v_mul_f32 v10, s{sT3}, v{A0}
v_mul_f32 v11, s{sT3}, v{A0+1}
v_exp_f32 v10, v10
v_exp_f32 v11, v11
""")
    round2(A0 + 2, A0 + 3, 12)
    k(f"""
v_add_f32 v10, 1.0, v10
v_add_f32 v11, 1.0, v11
v_rcp_f32 v10, v10
v_rcp_f32 v11, v11
v_mul_f32 v{A0}, v{A0}, v10
v_mul_f32 v{A0+1}, v{A0+1}, v11
""")
    round2(A0, A0 + 1, 12)
    k(f"""
v_mul_f32 v{A0}, v{A0}, v{A0+2}
v_mul_f32 v{A0+1}, v{A0+1}, v{A0+3}
v_cvt_pk_bf16_f32 v10, v{A0}, v{A0+1}
ds_write_b32 v8, v10 offset:{L_G}
s_waitcnt lgkmcnt(0)
s_barrier            ; T4
""")
    stamp(14)
    k(f"s_cmp_ge_u32 s{sW}, 10\ns_cbranch_scc1 L_FIN")
    k(f"""
s_mul_i32 s{sT0}, s{sT4}, 4224
s_add_u32 s{sT0}, s{sT0}, {WS_PB}
v_mov_b32 v28, 0
v_mov_b32 v29, 0
v_mov_b32 v30, 0
v_mov_b32 v31, 0
s_setprio 0
L_FB:
s_mov_b64 s[{sX0}:{sX0+1}], exec
""")
    for i in range(3): k(f"buffer_load_dwordx4 {V(16+4*i)}, v{vL16}, {S(SRD_WS)}, s{sT0} offen offset:{i*1024} sc1")
    k(f"""
s_mov_b32 exec_hi, 0
s_cbranch_execz L_FB2
buffer_load_dwordx4 v[28:31], v{vL16}, {S(SRD_WS)}, s{sT0} offen offset:3072 sc1
L_FB2:
s_mov_b64 exec, s[{sX0}:{sX0+1}]
s_waitcnt vmcnt(0)
""")
    sent(range(16, 32), 8)
    retry("L_FB", "s_mov_b64 exec, vcc" + (f"\ns_sleep {o['r3']}" if o.get("r3") else ""))
    k("s_mov_b64 exec, -1\ns_setprio 3")
    stamp(13)
    k("v_mov_b32 v8, 0x3f80\nv_mov_b32 v9, 0x3f800000")
    for i in range(4):
        for r in range(4):
            for h in range(2):
                d = 32 + 2 * r + h
                k(f"v_dot2_f32_bf16 v{d}, v{16+4*i+r}, v{8+h}, {'0' if i == 0 else 'v%d' % d}")
    k("s_nop 2")
    fold8(32)
    round2(32, 33, 8)
    k(f"v_pk_mul_f32 v[32:33], v[32:33], {V(vGB,2)}")
    round2(32, 33, 8)
    k(f"""
v_pk_add_f32 v[32:33], v[32:33], {V(vX1,2)}
v_cvt_pk_bf16_f32 v16, v32, v33
s_andn2_b64 exec, exec, s[{sMN}:{sMN+1}]
buffer_store_dword v16, v13, {S(SRD_C)}, s{sY0} offen
s_mov_b64 exec, -1
""")
    stamp(15)
    if o.get("probe"):
        k(f"s_cmp_lg_u32 s2, 0\ns_cbranch_scc1 L_FIN\ns_cmp_lg_u32 s{sW}, 8\ns_cbranch_scc1 L_FIN\nv_mov_b32 v8, 0")
        for j, i in enumerate([1, 2, 3, 4, 10, 12, 14, 15]):
            k(f"s_sub_u32 s{sT0}, s{sSTAMP+2*i}, s{sSTAMP}\nv_writelane_b32 v8, s{sT0}, {j}")
        k(f"v_lshlrev_b32 v7, 2, v0\ns_mov_b64 exec, 0xff\nbuffer_store_dword v8, v7, {S(SRD_B)}, 0 offen offset:16 sc1")
    if debug:
        k("s_branch L_FIN\nL_PAD2:\ns_branch L_T22")
        for blk in ool[::-1]: k(blk)
    k("L_FIN:")
    if debug:
        k("s_mov_b64 exec, -1\nv_mov_b32 v8, 0")
        for i in range(16): k(f"v_writelane_b32 v8, s{sSTAMP+2*i}, {i}")
        k(f"v_writelane_b32 v8, s{sBUD}, 16")
        k(f"""
s_mul_i32 s{sT0}, s2, 12
s_add_u32 s{sT0}, s{sT0}, s{sW}
s_lshl_b32 s{sT0}, s{sT0}, 7
s_add_u32 s{sT0}, s{sT0}, {WS_DBG}
v_lshlrev_b32 v7, 2, v0
s_mov_b32 exec_hi, 0
buffer_store_dword v8, v7, {S(SRD_WS)}, s{sT0} offen
""")
    k("L_END:\ns_endpgm")
    if not debug:
        k("L_PAD2:\ns_branch L_T22")
        for blk in ool: k(blk)
    k("L_CODE_END:")
    kt = kernel_text(KNAME + "_kernel", k.text(), NVGPR)
    return file_text([f"; @launch grid=(256,1,1) block=(768,1,1) lds={LDS_BYTES}"], [kt])

if __name__ == "__main__":
    open("d_dbg.s", "w").write(gen(debug=True))
    open("d_rel.s", "w").write(gen(debug=False))
    for a in sys.argv[1:]:
        name, *kv = a.split(",")
        op = {x.split("=")[0]: (int(x.split("=")[1]) if x.split("=")[1].lstrip("-").isdigit() else x.split("=")[1]) for x in kv}
        open(name, "w").write(gen(debug="dbg" in name, opts=op))
```

```python
import sys, struct
from emit import K
from asmlib import KNAME, kernel_text, file_text

WS_MU = 0x0000
WS_M = 0x4000
WS_ML = 0x50000
WS_CNT = 0x51000
WS_X1 = 0xE000
WS_Q = 0x10000
WS_O = 0x20000
WS_PA = 0xA0000
WS_PB = 0xC0000
WS_DBG = 0x200000
WS_BYTES = 0x20000000
D_GA, D_GO2, D_GB, D_MODE, D_GM = 0, 4, 8, 12, 48
D_GQ, D_CM, D_XC, D_CB, D_CC = 128, 144, 148, 152, 156
AL_QF, AL_T, AL_G, AL_P, AL_N = 0, 4, 8, 12, 16
AL_Q = 64
AL_O = 2048
L_SC = 0
L_H = 7168
L_OA = L_H
L_G = L_H + 8256
L_T = 16640
L_B = 20224
L_A = L_B + 59392 + 16
L_MM = L_A + 59392
LDS_BYTES = 153600
assert L_MM + 14336 <= LDS_BYTES and L_MM % 16 == 0
LOG2E = 1.4426950408889634
def f32(x): return "0x%08x" % struct.unpack("<I", struct.pack("<f", x))[0]

P_X, P_K, P_V, P_WQ, P_WO, P_W1, P_W3, P_W2, P_C, P_WM, P_OUT, P_DBG, P_WS = 4, 6, 8, 10, 12, 16, 18, 20, 22, 24, 26, 28, 30
SRD_WS = 32
sID, sSP, sB, sKVH, sBUD = 36, 37, 38, 39, 40
sT0, sT1, sT2, sT3, sT4, sT5 = 41, 42, 43, 44, 45, 46
sMODE = 47
SRD_A, SRD_B, SRD_C = 48, 52, 56
sMN, sMH = 60, 62
sX0 = 64
sY0, sY1 = 66, 67
sCC = 68
sNT = 69
sW = 3
sSTAMP = 70
BUDGET = 400000
NVGPR = 168

def gen(debug=False, opts=None):
    o = dict(nt_w="nt", first=4, qsleep=20, qdelay=127, fsleep=4, b1sleep=2, b2sleep=0, asleep2=0)
    if opts: o.update(opts)
    NTW = o["nt_w"].replace("+", " ")
    k = K()
    def srd(dst, ptr, nbytes):
        k(f"s_mov_b32 s{dst}, s{ptr}\ns_and_b32 s{dst+1}, s{ptr+1}, 0xffff\ns_mov_b32 s{dst+2}, {nbytes}\ns_mov_b32 s{dst+3}, 0x20000")
    def S(r): return f"s[{r}:{r+3}]"
    def V(r, n=4): return f"v[{r}:{r+n-1}]"
    def stamp(i):
        if debug and (not o.get("lite") or i in (0, 5, 15)): k(f"s_memrealtime s[{sSTAMP+2*i}:{sSTAMP+2*i+1}]\ns_waitcnt lgkmcnt(0)")
    def stamp_init():
        if debug:
            for i in range(15 if o.get("st0") else 16): k(f"s_mov_b32 s{sSTAMP+2*i}, 0")
        stamp(0)
    def budget_loop(L):
        k(f"s_add_u32 s{sBUD}, s{sBUD}, 1\ns_cmp_lt_u32 s{sBUD}, {BUDGET}\ns_cbranch_scc1 {L}")
    def wave_red(op, v, sdst):
        ins = {"add": "v_add_f32_dpp", "max": "v_max_f32_dpp"}[op]
        bc = " bound_ctrl:0" if op == "add" else ""
        for sh in (1, 2, 4, 8):
            k(f"{ins} v{v}, v{v}, v{v} row_shr:{sh} row_mask:0xf bank_mask:0xf{bc}")
        k(f"{ins} v{v}, v{v}, v{v} row_bcast:15 row_mask:0xa bank_mask:0xf")
        k(f"{ins} v{v}, v{v}, v{v} row_bcast:31 row_mask:0xc bank_mask:0xf")
        k(f"v_readlane_b32 s{sdst}, v{v}, 63")
    def xg(op, v, t):
        ins = {"add": "v_add_f32", "max": "v_max_f32"}[op]
        k(f"v_mov_b32 v{t}, v{v}\nv_permlane32_swap_b32 v{t}, v{v}\n{ins} v{v}, v{v}, v{t}")
        k(f"v_mov_b32 v{t}, v{v}\nv_permlane16_swap_b32 v{t}, v{v}\n{ins} v{v}, v{v}, v{t}")
    def fold4(*bases):
        for a in bases: k(f"v_permlane32_swap_b32 v{a}, v{a+1}\nv_permlane32_swap_b32 v{a+2}, v{a+3}")
        for a in bases: k(f"v_add_f32 v{a}, v{a}, v{a+1}\nv_add_f32 v{a+2}, v{a+2}, v{a+3}")
        for a in bases: k(f"v_permlane16_swap_b32 v{a}, v{a+2}")
        for a in bases: k(f"v_add_f32 v{a}, v{a}, v{a+2}")
    def unpack(dlo, dhi, src):
        k(f"v_lshlrev_b32 v{dlo}, 16, v{src}\nv_and_b32 v{dhi}, 0xffff0000, v{src}")
    def round2(a, b, t):
        k(f"v_cvt_pk_bf16_f32 v{t}, v{a}, v{b}"); unpack(a, b, t)
    def round1(a):
        k(f"v_cvt_pk_bf16_f32 v{a}, v{a}, v{a}\nv_lshlrev_b32 v{a}, 16, v{a}")
    def sent(regs, t):
        regs = list(regs)
        if len(regs) == 1: k(f"v_cmp_eq_u32 vcc, -1, v{regs[0]}"); return
        if len(regs) == 2: k(f"v_max_u32 v{t}, v{regs[0]}, v{regs[1]}"); rest = []
        else: k(f"v_max3_u32 v{t}, v{regs[0]}, v{regs[1]}, v{regs[2]}"); rest = regs[3:]
        while len(rest) >= 2: k(f"v_max3_u32 v{t}, v{t}, v{rest[0]}, v{rest[1]}"); rest = rest[2:]
        if rest: k(f"v_max_u32 v{t}, v{t}, v{rest[0]}")
        k(f"v_cmp_eq_u32 vcc, -1, v{t}")
    def neg1(a=8):
        for r in range(4): k(f"v_mov_b32 v{a+r}, -1")
    def lstore(lines):
        L1, L2 = k.newlabel("LS"), k.newlabel("LS")
        k(f"s_cmp_eq_u32 s{sMODE}, 1\ns_cbranch_scc0 {L1}")
        for l in lines: k(l)
        k(f"{L2}:")
        ool.append(f"{L1}:\n" + "\n".join(l + " sc1" for l in lines) + f"\ns_nop 1\ns_branch {L2}")
    ool = []
    def retry(loop, extra=""):
        L, C = k.newlabel("LR"), k.newlabel("LC")
        k(f"s_cbranch_vccnz {L}\n{C}:")
        ool.append(f"{L}:\n{extra}\ns_add_u32 s{sBUD}, s{sBUD}, 1\ns_cmp_lt_u32 s{sBUD}, {BUDGET}\ns_cbranch_scc1 {loop}\ns_branch {C}")
    MF = "v_mfma_f32_16x16x32_bf16"
    vL, vG, vN, vZ, vONE = 0, 1, 2, 3, 4

    k(f"""
{"s_memrealtime s[100:101]" if o.get("st0") else ""}
s_cmp_ge_u32 s2, 256
s_cbranch_scc1 L_END
s_load_dwordx16 s[4:19], s[0:1], 0
s_load_dwordx8 s[20:27], s[0:1], 64
s_load_dwordx4 s[28:31], s[0:1], 96
v_lshrrev_b32 v1, 6, v0
v_readfirstlane_b32 s{sW}, v1
v_and_b32 v{vL}, 63, v0
s_and_b32 s{sT0}, s2, 7
s_lshr_b32 s{sID}, s2, 3
s_mov_b32 s{sBUD}, 0
v_lshrrev_b32 v{vG}, 4, v{vL}
v_and_b32 v{vN}, 15, v{vL}
v_mov_b32 v{vZ}, 0
v_mov_b32 v{vONE}, 1
s_mov_b32 s{sCC}, {f32(0.0625*LOG2E)}
s_cmp_eq_u32 s{sT0}, 0
s_cbranch_scc1 L_TAILWG
s_mul_i32 s{sID}, s{sID}, 7
s_add_u32 s{sID}, s{sID}, s{sT0}
s_sub_u32 s{sID}, s{sID}, 1
s_cmp_lt_u32 s{sID}, 32
s_cbranch_scc1 L_CHAIN
s_sub_u32 s{sT0}, s{sID}, 32
s_mul_i32 s{sT1}, s{sT0}, 781
s_lshr_b32 s{sT1}, s{sT1}, 14              ; a/21
s_mul_i32 s{sT2}, s{sT1}, 21
s_sub_u32 s{sT2}, s{sT0}, s{sT2}           ; a%21
s_mul_i32 s{sSP}, s{sT2}, 37
s_lshr_b32 s{sSP}, s{sSP}, 8               ; r
s_mul_i32 s{sT3}, s{sSP}, 5
s_sub_u32 s{sT3}, s{sT2}, s{sT3}           ; c + 2r
s_sub_u32 s{sT4}, s{sT3}, 7
s_cmp_ge_u32 s{sT3}, 7
s_cselect_b32 s{sT3}, s{sT4}, s{sT3}
s_mul_i32 s{sID}, s{sT1}, 7
s_add_u32 s{sID}, s{sID}, s{sT3}
s_cmp_ge_u32 s{sT0}, 189
s_cselect_b32 s{sID}, 63, s{sID}
s_cselect_b32 s{sSP}, s{sT2}, s{sSP}
""")
    KB, VB, QF, SA = 16, 80, 144, 160
    k(f"""
s_lshl_b32 s{sT0}, s{sSP}, 3
s_add_u32 s{sT0}, s{sT0}, s{sW}
s_lshl_b32 s{sT0}, s{sT0}, 14
s_lshl_b32 s{sY0}, s{sID}, 21
s_add_u32 s{sY0}, s{sY0}, {3072*512}
s_add_u32 s{sT0}, s{sT0}, s{sY0}
s_add_u32 s{sT1}, s{sT0}, 8192
v_lshlrev_b32 v5, 9, v{vN}
v_lshl_add_u32 v5, v{vG}, 4, v5            ; K: n*512 + g*16
v_lshlrev_b32 v6, 11, v{vG}
v_lshl_add_u32 v6, v{vN}, 4, v6            ; V: g*2048 + n*16
v_mov_b32 v8, 0
v_mov_b32 v9, 0
v_mov_b32 v10, 0
v_mov_b32 v11, 0
ds_write_b128 v{vZ}, v[8:11]
ds_write_b128 v{vZ}, v[8:11] offset:16
s_waitcnt lgkmcnt(0)
""")
    stamp_init()
    srd(SRD_A, P_K, 0x8000000)
    def kv_loads(dyn):
        n = 0
        seq = [("K", tl, i) for tl in range(2) for i in range(8)] + [("V", i, hf) for i in range(8) for hf in range(2)]
        for kind, a_, b_ in seq:
            if kind == "K":
                k(f"buffer_load_dwordx4 {V(KB+(a_*8+b_)*4)}, v5, {S(SRD_A)}, s{sT0+a_} offen offset:{b_*64} {o.get('kvpol', 'nt').replace('+', ' ')}")
            else:
                k(f"buffer_load_dwordx4 {V(VB+(a_*2+b_)*4)}, v6, {S(SRD_B)}, s{sT0+(a_>>2)} offen offset:{(a_&3)*512+b_*256} {o.get('kvpol', 'nt').replace('+', ' ')}")
            n += 1
            if not dyn and n == o["first"]:
                if o.get("st0"): k(f"s_memrealtime s[{sSTAMP+4}:{sSTAMP+5}]")
                k("s_barrier"); srd(SRD_B, P_V, 0x8000000)
            if not dyn and n == o.get("trig0", 26):
                k(f"s_cmp_lg_u32 s{sW}, 4\ns_cbranch_scc1 L_NT0\nds_write_b32 v{vZ}, v{vONE} offset:{AL_N}\nL_NT0:")
            if not dyn and n == o.get("trigq", 32):
                k(f"s_cmp_lg_u32 s{sW}, 5\ns_cbranch_scc1 L_NTQ\nds_write_b32 v{vZ}, v{vONE} offset:{AL_P}\nL_NTQ:")
            if dyn and n == o.get("trig1", 12):
                k(f"ds_write_b32 v7, v{vONE} offset:{AL_N+4}")
    k(f"s_cmp_ge_u32 s{sW}, 8\ns_cbranch_scc1 L_DYN")
    if o.get("x_extra"):
        k(f"s_sub_u32 s{sT2}, s{sT0}, 0x100000\nv_lshlrev_b32 v7, 4, v{vL}")
        for i in range(6):
            if i == 4: k(f"s_add_u32 s{sT2}, s{sT2}, 4096")
            k(f"buffer_load_dwordx4 {V(144+4*i)}, v7, {S(SRD_A)}, s{sT2} offen offset:{(i&3)*1024} nt")
    kv_loads(False)
    k("L_KVD:")
    stamp(1)
    srd(SRD_WS, P_WS, WS_BYTES)
    k(f"""
v_lshrrev_b32 v7, 3, v{vN}
v_lshlrev_b32 v7, 9, v7
v_lshl_add_u32 v7, v{vG}, 4, v7
v_and_b32 v12, 1, v{vL}
v_cmp_eq_u32 vcc, 1, v12
v_mov_b32 v13, 0xffff
v_mov_b32 v14, 0xffff0000
v_cndmask_b32 v13, v13, v14, vcc
v_bfe_u32 v12, v{vL}, 1, 2
""")
    for r in range(4): k(f"v_cmp_eq_u32 vcc, {r}, v12\nv_cndmask_b32 v{8+r}, 0, v13, vcc")
    k(f"""
{"s_branch L_AQD" if o.get("x_fakeq") else ""}
s_cmp_ge_u32 s{sW}, 4
s_cbranch_scc1 L_AQW
s_lshl_b32 s{sT2}, s{sID}, 10
s_lshl_b32 s{sT3}, s{sW}, 8
s_add_u32 s{sT2}, s{sT2}, s{sT3}
s_add_u32 s{sT2}, s{sT2}, {WS_Q}
s_add_u32 s{sX0}, s{P_WS}, s{sT2}
s_addc_u32 s{sX0+1}, s{P_WS+1}, 0
s_cmp_eq_u32 s{sW}, 0
s_cbranch_scc1 L_AG0
L_AGL:
ds_read_b32 v12, v{vZ} offset:{AL_G}
s_waitcnt lgkmcnt(0)
v_readfirstlane_b32 s{sT4}, v12
s_cmp_lg_u32 s{sT4}, 0
s_cbranch_scc1 L_AP0
s_sleep 2
""")
    budget_loop("L_AGL")
    k(f"""
s_branch L_AP
L_AG0:
s_and_b32 s{sT3}, s2, 1
s_lshl_b32 s{sT3}, s{sT3}, 6
s_add_u32 s{sT3}, s{sT3}, {D_GQ}
L_AG:
s_load_dword s{sT4}, s[{P_DBG}:{P_DBG+1}], s{sT3} glc
s_waitcnt lgkmcnt(0)
s_cmp_lg_u32 s{sT4}, 0
s_cbranch_scc1 L_AG1
s_sleep 32
""")
    budget_loop("L_AG")
    k(f"""
L_AG1:
ds_write_b32 v{vZ}, v{vONE} offset:{AL_G}
L_AP0:
s_sleep 4
ds_read_b32 v12, v{vZ} offset:{AL_P}
s_waitcnt lgkmcnt(0)
v_readfirstlane_b32 s{sT4}, v12
s_cmp_lg_u32 s{sT4}, 0
s_cbranch_scc1 L_AP
""")
    budget_loop("L_AP0")
    k(f"""
L_AP:
s_load_dwordx16 s[4:19], s[{sX0}:{sX0+1}], 0 glc
s_load_dwordx16 s[48:63], s[{sX0}:{sX0+1}], 64 glc
s_load_dwordx16 s[84:99], s[{sX0}:{sX0+1}], 128 glc
s_load_dwordx8 s[20:27], s[{sX0}:{sX0+1}], 192 glc
s_load_dwordx8 s[76:83], s[{sX0}:{sX0+1}], 224 glc
s_waitcnt lgkmcnt(0)
s_max_u32 s{sT4}, s63, s83
s_cmp_lg_u32 s{sT4}, -1
s_cbranch_scc1 L_AF
L_AR:
s_sleep {o.get("qsleep", 10)}
""")
    budget_loop("L_AP")
    k("L_AF:")
    src = list(range(4, 20)) + list(range(48, 64)) + list(range(84, 100)) + list(range(20, 28)) + list(range(76, 84))
    for i, r in enumerate(src): k(f"v_writelane_b32 v12, s{r}, {i}")
    k(f"v_cmp_eq_u32 vcc, -1, v12\ns_cbranch_vccz L_AW\ns_cmp_lt_u32 s{sBUD}, {BUDGET}\ns_cbranch_scc1 L_AR")
    if debug:
        pass
    k(f"""
L_AW:
s_lshl_b32 s{sT3}, s{sW}, 8
v_lshlrev_b32 v13, 2, v{vL}
v_add_u32 v13, s{sT3}, v13
ds_write_b32 v13, v12 offset:{AL_Q}
s_waitcnt lgkmcnt(0)
s_mov_b64 exec, 1
ds_add_u32 v{vZ}, v{vONE} offset:{AL_QF}
s_mov_b64 exec, -1
L_AQW:
ds_read_b32 v12, v{vZ} offset:{AL_QF}
s_waitcnt lgkmcnt(0)
v_readfirstlane_b32 s{sT4}, v12
s_cmp_ge_u32 s{sT4}, 4
s_cbranch_scc1 L_AQD
s_sleep 2
""")
    budget_loop("L_AQW")
    k("L_AQD:")
    if debug:
        for i in range(3, 15 if o.get("st0") else 16): k(f"s_mov_b32 s{sSTAMP+2*i}, 0")
    if not o.get("st0"): stamp(2)
    for i in range(4): k(f"ds_read_b128 {V(QF+4*i)}, v7 offset:{AL_Q+i*64}")
    PD, AS, OAC, vM, vLs = 16, 24, 40, 48, 49
    def adr():
        k(f"""
v_lshlrev_b32 v15, 4, v{vL}
v_lshlrev_b32 v14, 3, v{vL}
s_and_b32 s{sKVH}, s{sID}, 7
s_lshr_b32 s{sB}, s{sID}, 3
v_lshrrev_b32 v6, 5, v{vL}
v_lshlrev_b32 v6, 3, v6                    ; ML: h*8
s_mul_i32 s{sY0}, s{sB}, 3
s_add_u32 s{sY0}, s{sY0}, s{sSP}
s_lshl_b32 s{sY0}, s{sY0}, 10
s_mul_i32 s{sT2}, s{sKVH}, 24576
s_add_u32 s{sY0}, s{sY0}, s{sT2}
s_add_u32 s{sY0}, s{sY0}, {WS_O}
s_lshl_b32 s{sT0}, s{sB}, 2
s_add_u32 s{sT0}, s{sT0}, s{sSP}
s_lshl_b32 s{sT5}, s{sT0}, 4
s_lshl_b32 s{sT2}, s{sKVH}, 9
s_add_u32 s{sT5}, s{sT5}, s{sT2}
s_add_u32 s{sT5}, s{sT5}, {WS_ML}
s_mov_b32 s{sNT}, 12
""")
    adr()
    k(f"s_mov_b32 s{sT4}, 1")
    for n in range(16):
        tl, i = n >> 3, n & 7
        w = f"vmcnt({31-n}) " if True else ""
        k(f"s_waitcnt {w}lgkmcnt({min(3, 15-n)})")
        k(f"{MF} {V(SA+4*tl)}, {V(KB+n*4)}, {V(QF+4*(n&3))}, {'0' if i == 0 else V(SA+4*tl)}")
        if n < 12: k(f"ds_read_b128 {V(QF+4*(n&3))}, v7 offset:{AL_Q+((n+4)&7)*64}")
        if n == 11:
            round2(SA, SA + 1, 12); round2(SA + 2, SA + 3, 12)
            k(f"v_max3_f32 v13, v{SA}, v{SA+1}, v{SA+2}\nv_max_f32 v13, v13, v{SA+3}")
    round2(SA + 4, SA + 5, 12); round2(SA + 6, SA + 7, 12)
    k(f"v_max3_f32 v13, v13, v{SA+4}, v{SA+5}\nv_max3_f32 v12, v13, v{SA+6}, v{SA+7}")
    xg("max", 12, 5)
    for i in range(8): k(f"v_sub_f32 v{SA+i}, v{SA+i}, v12")
    for i in range(8): k(f"v_mul_f32 v{SA+i}, s{sCC}, v{SA+i}")
    for i in range(8): k(f"v_exp_f32 v{SA+i}, v{SA+i}")
    for i in range(8): k(f"v_cvt_pk_bf16_f32 v{PD+i}, v{SA+i}, v{SA+i}")
    stamp(3)
    for i in range(8):
        a = AS + 4 * (i & 3)
        for r in range(4): k(f"v_and_b32 v{a+r}, v{PD+i}, v{8+r}")
        for hf in range(2):
            k(f"s_waitcnt vmcnt({15-(2*i+hf)})")
            k(f"{MF} {V(OAC+4*hf)}, {V(a)}, {V(VB+(i*2+hf)*4)}, {'0' if i == 0 else V(OAC+4*hf)}")
        if i == 0: k(f"v_add_f32 v13, v{SA}, v{SA+1}\nv_add_f32 v5, v{SA+2}, v{SA+3}\nv_add_f32 v50, v{SA+4}, v{SA+5}\nv_add_f32 v51, v{SA+6}, v{SA+7}")
        if i == 1: k("v_add_f32 v13, v13, v5\nv_add_f32 v50, v50, v51\nv_add_f32 v13, v13, v50")
        if i == 2: xg("add", 13, 5)
        if i == 3:
            k(f"""
v_readlane_b32 s{sT0}, v12, 0
v_readlane_b32 s{sT1}, v12, 8
v_readlane_b32 s{sT2}, v13, 0
v_readlane_b32 s{sT3}, v13, 8
""")
        if i == 4:
            k(f"""
v_mov_b32 v{vM}, s{sT0}
v_mov_b32 v{vLs}, s{sT2}
s_mov_b32 exec_lo, 0
v_mov_b32 v{vM}, s{sT1}
v_mov_b32 v{vLs}, s{sT3}
s_mov_b64 exec, -1
""")
    stamp(4)
    k(f"""
s_setprio 3
L_MG:
s_mov_b64 exec, 1
ds_wrxchg_rtn_b32 v12, v{vZ}, v{vZ} offset:{AL_T}
s_mov_b64 exec, -1
s_waitcnt lgkmcnt(0)
v_readfirstlane_b32 s{sT0}, v12
s_cmp_eq_u32 s{sT0}, 0
s_cbranch_scc1 L_MLEAVE
s_and_b32 s{sT1}, s{sT0}, 0xffff
s_lshr_b32 s{sT0}, s{sT0}, 16
s_add_u32 s{sT4}, s{sT4}, s{sT0}
v_add_u32 v12, s{sT1}, v14
v_add_u32 v13, s{sT1}, v15
ds_read_b64 v[60:61], v12 offset:2048
ds_read_b128 v[52:55], v13
ds_read_b128 v[56:59], v13 offset:1024
s_waitcnt lgkmcnt(2)
v_max_f32 v62, v{vM}, v60
v_sub_f32 v63, v{vM}, v62
v_sub_f32 v60, v60, v62
v_mul_f32 v63, s{sCC}, v63
v_mul_f32 v60, s{sCC}, v60
v_exp_f32 v63, v63
v_exp_f32 v60, v60
v_mov_b32 v{vM}, v62
v_mul_f32 v{vLs}, v{vLs}, v63
v_fmac_f32 v{vLs}, v61, v60
""")
    for r in range(8): k(f"v_mul_f32 v{OAC+r}, v{OAC+r}, v63")
    k("s_waitcnt lgkmcnt(0)")
    for r in range(8): k(f"v_fmac_f32 v{OAC+r}, v{52+r}, v60")
    k(f"""
s_cmp_ge_u32 s{sT4}, s{sNT}
s_cbranch_scc1 L_MPUB
""")
    budget_loop("L_MG")
    k(f"""
s_branch L_FIN
L_MLEAVE:
s_mul_i32 s{sT1}, s{sW}, 2560
s_add_u32 s{sT1}, s{sT1}, {AL_O}
v_add_u32 v12, s{sT1}, v14
v_add_u32 v13, s{sT1}, v15
ds_write_b128 v13, {V(OAC)}
ds_write_b128 v13, {V(OAC+4)} offset:1024
ds_write_b64 v12, v[{vM}:{vLs}] offset:2048
s_lshl_b32 s{sT0}, s{sT4}, 16
s_or_b32 s{sT0}, s{sT0}, s{sT1}
v_mov_b32 v13, s{sT0}
s_waitcnt lgkmcnt(0)
s_mov_b64 exec, 1
ds_cmpst_rtn_b32 v12, v{vZ}, v{vZ}, v13 offset:{AL_T}
s_mov_b64 exec, -1
s_waitcnt lgkmcnt(0)
v_readfirstlane_b32 s{sT0}, v12
s_cmp_eq_u32 s{sT0}, 0
s_cbranch_scc1 L_FIN
""")
    budget_loop("L_MG")
    k("s_branch L_FIN")
    k("L_MPUB:")
    k(f"v_rcp_f32 v62, v{vLs}")
    for r in range(8): k(f"v_mul_f32 v{OAC+r}, v{OAC+r}, v62")
    for p in range(4): k(f"v_cvt_pk_bf16_f32 v{52+p}, v{OAC+2*p}, v{OAC+2*p+1}\nv_min_u32 v{52+p}, -2, v{52+p}")
    k(f"""
buffer_store_dwordx4 v[52:55], v15, {S(SRD_WS)}, s{sY0} offen sc1
v_min_u32 v{vM}, -2, v{vM}
v_min_u32 v{vLs}, -2, v{vLs}
s_mov_b32 exec_lo, 1
s_mov_b32 exec_hi, 1
buffer_store_dwordx2 v[{vM}:{vLs}], v6, {S(SRD_WS)}, s{sT5} offen sc1
""")
    stamp(5)
    k("s_branch L_FIN")
    k(f"""
L_DYN:
s_barrier
s_sub_u32 s{sT2}, s{sW}, 8
s_lshl_b32 s{sT2}, s{sT2}, 2
v_mov_b32 v7, s{sT2}
s_lshl_b32 s{sT2}, s{sID}, 7
s_add_u32 s{sT2}, s{sT2}, {WS_CNT}
s_add_u32 s{sX0}, s{P_WS}, s{sT2}
s_addc_u32 s{sX0+1}, s{P_WS+1}, 0
""")
    srd(SRD_B, P_V, 0x8000000)
    k(f"""
L_DW:
s_sleep 2
ds_read_b32 v12, v7 offset:{AL_N}
ds_read_b32 v13, v{vZ} offset:{AL_G}
s_waitcnt lgkmcnt(0)
v_readfirstlane_b32 s{sT4}, v12
v_readfirstlane_b32 s{sT5}, v13
s_cmp_eq_u32 s{sT4}, 2
s_cbranch_scc1 L_END
s_and_b32 s{sT4}, s{sT4}, s{sT5}
s_cbranch_scc1 L_DC
""")
    budget_loop("L_DW")
    k(f"""
s_endpgm
L_DC:
s_mov_b32 s{sT4}, 1
s_atomic_add s{sT4}, s[{sX0}:{sX0+1}], 0 glc
s_waitcnt lgkmcnt(0)
s_add_u32 s{sT4}, s{sT4}, 1
s_cmp_ge_u32 s{sT4}, 8
s_cbranch_scc1 L_DF
s_add_u32 s{sT0}, s{sT4}, 24
s_lshl_b32 s{sT0}, s{sT0}, 14
s_add_u32 s{sT0}, s{sT0}, s{sY0}
s_add_u32 s{sT1}, s{sT0}, 8192
""")
    kv_loads(True)
    k(f"""
s_branch L_KVD
L_DF:
v_mov_b32 v8, 2
v_mov_b32 v9, 2
v_mov_b32 v10, 2
v_mov_b32 v11, 2
ds_write_b128 v{vZ}, v[8:11] offset:{AL_N}
""")
    srd(SRD_WS, P_WS, WS_BYTES)
    for r in range(8): k(f"v_mov_b32 v{OAC+r}, 0")
    adr()
    k(f"v_mov_b32 v{vM}, 0xff800000\nv_mov_b32 v{vLs}, 0\ns_sub_u32 s{sT4}, 12, s{sW}\ns_branch L_MG")

    vSW, vTR, vRW, vL16, vBA = 5, 6, 7, 15, 14
    def svc_setup():
        k("s_waitcnt lgkmcnt(0)")
        stamp_init()
        srd(SRD_WS, P_WS, WS_BYTES); srd(SRD_B, P_DBG, 256)
        k(f"""
v_cmp_lt_u32 s[{sMN}:{sMN+1}], 7, v{vN}
v_lshlrev_b32 v{vL16}, 4, v{vL}
v_bfe_u32 v8, v{vL}, 1, 2
v_bfe_u32 v9, v{vL}, 4, 2
v_xor_b32 v8, v8, v9
v_lshlrev_b32 v8, 5, v8
v_and_b32 v9, 1, v{vL}
v_lshl_add_u32 v{vSW}, v9, 4, v8
s_and_b32 s{sT5}, s{sW}, 3
""")
    def svc_setup2():
        k(f"""
v_bfe_u32 v8, v{vL}, 2, 2
v_lshl_add_u32 v{vTR}, v{vG}, 2, v8        ; 4g + r
v_mul_u32_u24 v{vRW}, 928, v{vTR}
v_and_b32 v8, 3, v{vL}
v_lshl_add_u32 v{vRW}, v8, 4, v{vRW}
v_and_b32 v{vBA}, 7, v{vN}
v_lshlrev_b32 v{vBA}, 4, v{vBA}
v_lshl_add_u32 v{vBA}, v{vG}, 7, v{vBA}
""")
    def code_prefetch(tag, sidx):
        k(f"""
s_getpc_b64 s[{sX0}:{sX0+1}]
L_PC{tag}:
s_sub_u32 s{sX0}, s{sX0}, L_PC{tag}-{KNAME}_kernel
s_subb_u32 s{sX0+1}, s{sX0+1}, 0
v_lshlrev_b32 v12, 7, v{vL}
s_lshl_b32 s{sT0}, s{sidx}, 13
v_add_u32 v12, s{sT0}, v12
v_cmp_gt_u32 vcc, L_CODE_END-{KNAME}_kernel, v12
s_and_b64 exec, exec, vcc
s_cbranch_execz L_NOPF{tag}
global_load_dword v13, v12, s[{sX0}:{sX0+1}]
L_NOPF{tag}:
s_mov_b64 exec, -1
""")
    def dma_tile(srdreg, pitch, scol, buf):
        k(f"""
v_lshrrev_b32 v8, 3, v{vL}
v_mul_u32_u24 v8, {pitch}, v8
v_add_u32 v8, v8, v{vSW}
s_mul_i32 s{sT2}, s{sW}, {56*pitch}
s_add_u32 s{sT2}, s{sT2}, s{scol}
s_mul_i32 s{sT3}, s{sW}, 7168
s_add_u32 s{sT3}, s{sT3}, {buf}
""")
        for i in range(7):
            k(f"s_mov_b32 m0, s{sT3}\nbuffer_load_dwordx4 v8, {S(srdreg)}, s{sT2} offen {NTW} lds")
            if i < 6: k(f"s_add_u32 s{sT2}, s{sT2}, {8*pitch}\ns_add_u32 s{sT3}, s{sT3}, 1024")
    def dma_rows(srdreg, srow, buf):
        k(f"""
s_lshl_b32 s{sT2}, s{sW}, 3
s_mul_i32 s{sT3}, s{sT2}, 928
s_add_u32 s{sT3}, s{sT3}, {buf}
s_add_u32 s{sT2}, s{sT2}, s{srow}
s_mul_i32 s{sT2}, s{sT2}, 896
s_mov_b32 exec_hi, 0x00ffffff
""")
        for i in range(8):
            k(f"s_mov_b32 m0, s{sT3}\nbuffer_load_dwordx4 v{vL16}, {S(srdreg)}, s{sT2} offen {NTW} lds")
            if i < 7: k(f"s_add_u32 s{sT2}, s{sT2}, 896\ns_add_u32 s{sT3}, s{sT3}, 928")
        k("s_mov_b64 exec, -1")
    def frag_tile(dst, vaddr):
        for t in range(14):
            k(f"ds_read_b64_tr_b16 {V(dst+4*t,2)}, v{vaddr} offset:{t*4096}\nds_read_b64_tr_b16 {V(dst+4*t+2,2)}, v{vaddr} offset:{t*4096+2048}")
            if t in (6, 13): k("s_waitcnt lgkmcnt(0)")
    def tile_addr(dst, sq, sbuf):
        k(f"""
v_lshrrev_b32 v8, 1, v{vTR}
v_and_b32 v8, 3, v8
v_xor_b32 v8, s{sq}, v8
v_lshlrev_b32 v8, 5, v8
v_lshl_add_u32 v8, v{vTR}, 7, v8
v_and_b32 v9, 3, v{vL}
v_lshl_add_u32 v8, v9, 3, v8
v_add_u32 v{dst}, {sbuf}, v8
""")
    def frag_rows(dst, buf):
        L = k.newlabel("LFR")
        k(f"s_cmp_ge_u32 s{sW}, 7\ns_cbranch_scc1 {L}")
        k(f"s_lshl_b32 s{sT2}, s{sW}, 7\ns_add_u32 s{sT2}, s{sT2}, {buf}\nv_add_u32 v8, s{sT2}, v{vRW}")
        for T in range(2):
            for q in range(4):
                r = dst + (T * 4 + q) * 4
                qo = (q >> 1) * 64 + (q & 1) * 8
                k(f"ds_read_b64_tr_b16 {V(r,2)}, v8 offset:{T*29696+qo}\nds_read_b64_tr_b16 {V(r+2,2)}, v8 offset:{T*29696+qo+14848}")
            k("s_waitcnt lgkmcnt(0)")
        k(f"{L}:")
    def poll_flag(off, name, sleep=2):
        k(f"""
s_mov_b64 exec, 1
{name}:
buffer_load_dword v9, v{vZ}, {S(SRD_B)}, 0 offen offset:{off} sc1
s_waitcnt vmcnt(0)
v_cmp_eq_u32 vcc, 0, v9
s_cbranch_vccz {name}D
s_sleep {sleep}
""")
        budget_loop(name)
        k(f"{name}D:\ns_mov_b64 exec, -1")
    def ln_stats(X, vmean, vrden):
        k(f"v_add_f32 v8, v{X}, v{X+1}\nv_add_f32 v9, v{X+2}, v{X+3}\nv_add_f32 v12, v{X+4}, v{X+5}\nv_add_f32 v13, v{X+6}, v{X+7}")
        k("v_add_f32 v8, v8, v9\nv_add_f32 v12, v12, v13\nv_add_f32 v8, v8, v12")
        wave_red("add", 8, sT2)
        k(f"v_mov_b32 v12, {f32(1.0/448)}\nv_mul_f32 v{vmean}, s{sT2}, v12")
        for c in range(8):
            k(f"v_sub_f32 v9, v{X+c}, v{vmean}")
            k("v_mul_f32 v8, v9, v9" if c == 0 else "v_fmac_f32 v8, v9, v9")
        k("v_cndmask_b32 v8, 0, v8, vcc")
        wave_red("add", 8, sT2)
        k(f"v_mul_f32 v{vrden}, s{sT2}, v12")
        round2(vmean, vrden, 8)
        k(f"v_add_f32 v{vrden}, {f32(1e-5)}, v{vrden}"); round1(vrden)
        k(f"v_sqrt_f32 v{vrden}, v{vrden}"); round1(vrden)
        k(f"v_rcp_f32 v{vrden}, v{vrden}")
    def chunk_dst(dst):
        k(f"""
v_lshrrev_b32 v11, 2, v{vL}
v_lshlrev_b32 v11, 9, v11
v_and_b32 v12, 1, v{vL}
v_lshl_add_u32 v11, v12, 8, v11
v_bfe_u32 v12, v{vL}, 1, 1
v_lshl_add_u32 v11, v12, 3, v11
s_lshl_b32 s{sT1}, s{sW}, 4
v_add_u32 v{dst}, s{sT1}, v11
""")
    def counter_go(off_c, last, off_go, name):
        k(f"""
s_mov_b32 s{sT1}, 1
s_atomic_add s{sT1}, s[{P_DBG}:{P_DBG+1}], {off_c} glc
s_waitcnt lgkmcnt(0)
s_cmp_lg_u32 s{sT1}, {last}
s_cbranch_scc1 {name}
s_mov_b64 exec, 1
buffer_store_dword v{vONE}, v{vZ}, {S(SRD_B)}, 0 offen offset:{off_go} sc1
s_mov_b64 exec, -1
{name}:
""")

    WF, AF, D0 = 48, 104, 160
    CV, XR, LNV, SAv, CAv = 16, 20, 24, 28, 32
    k("L_CHAIN:")
    svc_setup()
    svc_setup2()
    def tile_mfma(lbase):
        for t in range(14): k(f"ds_read_b128 {V(AF+4*t)}, v{vBA} offset:{lbase+t*512}")
        k(f"""
v_and_b32 v8, 7, v{vN}
v_mul_u32_u24 v8, 144, v8
v_lshl_add_u32 v8, v{vG}, 3, v8
s_lshr_b32 s{sT2}, s{sW}, 2
s_mul_i32 s{sT2}, s{sT2}, 1152
s_lshl_b32 s{sT3}, s{sT5}, 5
s_add_u32 s{sT2}, s{sT2}, s{sT3}
v_add_u32 v8, s{sT2}, v8
""")
        for t in range(14):
            k(f"s_waitcnt lgkmcnt({13-t})")
            k(f"{MF} {V(D0)}, {V(WF+4*t)}, {V(AF+4*t)}, {'0' if t == 0 else V(D0)}")
        k(f"""
v_cvt_pk_bf16_f32 v10, v{D0}, v{D0+1}
v_cvt_pk_bf16_f32 v11, v{D0+2}, v{D0+3}
v_min_u32 v10, -2, v10
v_min_u32 v11, -2, v11
ds_write_b64 v8, v[10:11] offset:{L_T}
s_waitcnt lgkmcnt(0)
""")
    def stage_pub(pitch_shift, soff):
        k(f"""
v_lshrrev_b32 v12, 3, v{vL}
v_mul_u32_u24 v13, 144, v12
v_and_b32 v9, 7, v{vL}
v_lshl_add_u32 v13, v9, 4, v13
s_lshr_b32 s{sT2}, s{sW}, 2
s_mul_i32 s{sT3}, s{sT2}, 1152
v_add_u32 v13, s{sT3}, v13
v_lshlrev_b32 v12, {pitch_shift}, v12
v_lshl_add_u32 v12, v9, 4, v12
ds_read_b128 v[8:11], v13 offset:{L_T}
s_lshl_b32 s{sT2}, s{sT2}, 7
s_add_u32 s{sT2}, s{sT2}, s{soff}
s_waitcnt lgkmcnt(0)
buffer_store_dwordx4 v[8:11], v12, {S(SRD_WS)}, s{sT2} offen sc1
""")

    def spoll(off, name):
        k(f"""
{name}:
s_load_dword s{sT1}, s[{P_DBG}:{P_DBG+1}], {off} glc
s_waitcnt lgkmcnt(0)
s_cmp_lg_u32 s{sT1}, 0
s_cbranch_scc1 {name}D
s_sleep 6
""")
        budget_loop(name)
        k(f"{name}D:")
    k(f"""
s_mul_i32 s{sY0}, s{sID}, 384
s_sub_u32 s{sY0}, s{sY0}, {28*128}         ; first tile column bytes: (14+3(k-14))*128 for k<28
s_lshl_b32 s{sT1}, s{sID}, 8               ;                          (56+2(k-28))*128 for k>=28
s_cmp_ge_u32 s{sID}, 28
s_cselect_b32 s{sY0}, s{sT1}, s{sY0}
s_lshl_b32 s{sY1}, s{sID}, 7
s_cmp_lt_u32 s{sW}, 8
s_cbranch_scc1 L_C8
""")
    srd(SRD_A, P_X, 7168)
    k(f"""
s_setprio 3
s_mul_i32 s{sT1}, s{sT5}, 1792
buffer_load_dwordx4 v[16:19], v{vL16}, {S(SRD_A)}, s{sT1} offen
buffer_load_dwordx4 v[20:23], v{vL16}, {S(SRD_A)}, s{sT1} offen offset:896
""")
    neg1()
    k(f"s_cmp_ge_u32 s{sID}, 7\ns_cbranch_scc1 L_CNP")
    code_prefetch("C", sT5)
    k(f"""
L_CNP:
s_cmp_lt_u32 s{sID}, 14
s_cbranch_scc1 L_CX
s_cmp_eq_u32 s{sW}, 9
s_cbranch_scc1 L_CLQ
s_cmp_lg_u32 s{sW}, 8
s_cbranch_scc1 L_CX
s_cmp_lg_u32 s{sID}, 28
s_cbranch_scc1 L_CX
s_mov_b32 s{sT0}, {WS_MU}
L_CLM:
""")
    for i in range(4): k(f"buffer_store_dwordx4 v[8:11], v{vL16}, {S(SRD_WS)}, s{sT0} offen offset:{i*1024} sc1")
    k(f"""
s_add_u32 s{sT0}, s{sT0}, 4096
s_cmp_lt_u32 s{sT0}, {WS_MU+16384}
s_cbranch_scc1 L_CLM
s_waitcnt vmcnt(0)
s_mov_b64 exec, 1
buffer_store_dword v{vONE}, v{vZ}, {S(SRD_B)}, 0 offen offset:{D_GA} sc1
s_mov_b64 exec, -1
s_branch L_CX
L_CLQ:
s_sub_u32 s{sT0}, s{sID}, 14
s_mul_i32 s{sT0}, s{sT0}, 15360
s_add_u32 s{sT0}, s{sT0}, {WS_Q}
""")
    for i in range(15):
        k(f"buffer_store_dwordx4 v[8:11], v{vL16}, {S(SRD_WS)}, s{sT0} offen offset:{(i&3)*1024} sc1")
        if i & 3 == 3: k(f"s_add_u32 s{sT0}, s{sT0}, 4096")
    k(f"""
s_mov_b32 s{sT1}, 1
s_waitcnt vmcnt(0)
s_atomic_add s{sT1}, s[{P_DBG}:{P_DBG+1}], {D_CC} glc
s_waitcnt lgkmcnt(0)
s_cmp_lg_u32 s{sT1}, 17
s_cbranch_scc1 L_CX
s_mov_b64 exec, 1
buffer_store_dword v{vONE}, v{vZ}, {S(SRD_B)}, 0 offen offset:{D_GQ} sc1
buffer_store_dword v{vONE}, v{vZ}, {S(SRD_B)}, 0 offen offset:{D_GQ+64} sc1
buffer_store_dword v{vONE}, v{vZ}, {S(SRD_B)}, 0 offen offset:{D_GB} sc1
s_mov_b64 exec, -1
L_CX:
s_waitcnt vmcnt(0)
v_cmp_gt_u32 vcc, 56, v{vL}
""")
    for rr in range(2):
        for r in range(4):
            k(f"v_cndmask_b32 v{16+4*rr+r}, 0, v{16+4*rr+r}, vcc")
            unpack(36 + 2 * r, 37 + 2 * r, 16 + 4 * rr + r)
        ln_stats(36, 10, 11)
        for c in range(8): k(f"v_sub_f32 v{36+c}, v{36+c}, v10")
        for p in range(4): round2(36 + 2 * p, 37 + 2 * p, 8)
        for p in range(4):
            k(f"v_mul_f32 v{36+2*p}, v{36+2*p}, v11\nv_mul_f32 v{37+2*p}, v{37+2*p}, v11\nv_cvt_pk_bf16_f32 v{16+4*rr+p}, v{36+2*p}, v{37+2*p}")
    k(f"""
s_cmp_ge_u32 s{sID}, 14
s_cbranch_scc1 L_SGQ
s_cmp_lg_u32 s{sW}, 8
s_cbranch_scc1 L_SGAD
s_branch L_SGA
L_SGQ:
s_sleep 48
""")
    spoll(D_GA, "L_SGA")
    stamp(1)
    k(f"""
s_cmp_ge_u32 s{sID}, 14
s_cbranch_scc1 L_HN
s_barrier            ; c1
s_barrier            ; u1
s_barrier            ; u2
L_HN:
v_lshrrev_b32 v11, 2, v{vL}
v_lshlrev_b32 v11, 9, v11
v_and_b32 v12, 1, v{vL}
v_lshl_add_u32 v11, v12, 8, v11
v_bfe_u32 v12, v{vL}, 1, 1
v_lshl_add_u32 v11, v12, 3, v11
s_lshl_b32 s{sT1}, s{sT5}, 5
v_add_u32 v13, s{sT1}, v11
s_lshl_b32 s{sT0}, s{sT5}, 12
s_add_u32 s{sT0}, s{sT0}, {WS_MU}
s_mov_b32 exec_hi, 0x00ffffff
L_MU:
""")
    for rr in range(2):
        k(f"buffer_load_dwordx4 {V(24+8*rr)}, v{vL16}, {S(SRD_WS)}, s{sT0} offen offset:{rr*2048} sc1")
        k(f"buffer_load_dwordx4 {V(28+8*rr)}, v{vL16}, {S(SRD_WS)}, s{sT0} offen offset:{rr*2048+896} sc1")
    k("s_waitcnt vmcnt(0)")
    sent(range(24, 40), 8)
    retry("L_MU", "s_mov_b64 exec, vcc\ns_sleep 4")
    k("s_mov_b32 exec_lo, -1\ns_mov_b32 exec_hi, 0x00ffffff")
    stamp(4)
    for rr in range(2):
        for p in range(4):
            unpack(8, 9, 28 + 8 * rr + p)
            k("v_add_f32 v8, 1.0, v8\nv_add_f32 v9, 1.0, v9")
            round2(8, 9, 10)
            unpack(10, 11, 16 + 4 * rr + p)
            k("v_mul_f32 v8, v8, v10\nv_mul_f32 v9, v9, v11")
            round2(8, 9, 10)
            unpack(10, 11, 24 + 8 * rr + p)
            k(f"v_add_f32 v8, v8, v10\nv_add_f32 v9, v9, v11\nv_cvt_pk_bf16_f32 v{24+8*rr+p}, v8, v9")
        k(f"ds_write_b64 v13, {V(24+8*rr,2)} offset:{L_H+16*rr}\nds_write_b64 v13, {V(26+8*rr,2)} offset:{L_H+128+16*rr}")
    k("s_mov_b64 exec, -1")
    k(f"s_cmp_lg_u32 s{sW}, 8\ns_cbranch_scc1 L_SGBD")
    spoll(D_GB, "L_SGB")
    k(f"""
s_waitcnt lgkmcnt(0)
s_cmp_lt_u32 s{sID}, 14
s_cbranch_scc1 L_HM
s_barrier            ; c1
s_barrier            ; q1
L_HM:
s_barrier            ; c2
s_cmp_ge_u32 s{sID}, 28
s_cbranch_scc1 L_FIN
""")
    tile_addr(10, sT5, L_A)
    frag_tile(WF, 10)
    tile_mfma(L_H)
    k(f"""
s_barrier            ; c3
s_cmp_lg_u32 s{sW}, 8
s_cbranch_scc1 L_FIN
s_sub_u32 s{sT1}, s{sY1}, 256
s_cmp_lt_u32 s{sID}, 14
s_cselect_b32 s{sT1}, s{sT1}, s{sY0}
s_add_u32 s{sT1}, s{sT1}, {WS_Q}
""")
    stage_pub(13, sT1)
    k("s_barrier            ; c7")
    stamp(6)
    k("s_branch L_FIN")
    k("L_C8:")
    srd(SRD_A, P_C, 7168)
    k(f"s_lshl_b32 s{sT1}, s{sW}, 10\nbuffer_load_dwordx4 {V(CV)}, v{vL16}, {S(SRD_A)}, s{sT1} offen")
    srd(SRD_C, P_WQ, 448 * 8192); srd(SRD_A, P_WM, 448 * 5376)
    k(f"s_cmp_ge_u32 s{sID}, 14\ns_cbranch_scc1 L_R1Q")
    dma_tile(SRD_A, 5376, sY1, L_A)
    k("s_branch L_R1D\nL_R1Q:")
    k(f"""
v_lshrrev_b32 v8, 3, v{vL}
v_lshlrev_b32 v8, 13, v8
v_add_u32 v8, v8, v{vSW}
v_add_u32 v9, 128, v8
s_mul_i32 s{sT2}, s{sW}, {56*8192}
s_add_u32 s{sT2}, s{sT2}, s{sY0}
s_mul_i32 s{sT3}, s{sW}, 7168
s_add_u32 s{sT1}, s{sT3}, {L_B}
s_add_u32 s{sT3}, s{sT3}, {L_A}
""")
    for i in range(7):
        k(f"s_mov_b32 m0, s{sT3}\nbuffer_load_dwordx4 v8, {S(SRD_C)}, s{sT2} offen {NTW} lds")
        k(f"s_mov_b32 m0, s{sT1}\nbuffer_load_dwordx4 v9, {S(SRD_C)}, s{sT2} offen {NTW} lds")
        L = k.newlabel("LT3")
        k(f"s_cmp_ge_u32 s{sID}, 28\ns_cbranch_scc1 {L}")
        k(f"buffer_load_dwordx4 {V(AF+4*i)}, v8, {S(SRD_C)}, s{sT2} offen offset:256 {NTW}\n{L}:")
        if i < 6: k(f"s_add_u32 s{sT2}, s{sT2}, {8*8192}\ns_add_u32 s{sT3}, s{sT3}, 1024\ns_add_u32 s{sT1}, s{sT1}, 1024")
    k("L_R1D:")
    k("s_waitcnt vmcnt(7)")
    stamp(1)
    k(f"s_cmp_eq_u32 s{sW}, 7\ns_cbranch_scc1 L_NOSILU")
    k(f"s_mov_b32 s{sT3}, {f32(-LOG2E)}")
    for r in range(4):
        unpack(8, 9, CV + r)
        k(f"""
v_mul_f32 v10, s{sT3}, abs(v8)
v_mul_f32 v11, s{sT3}, abs(v9)
v_exp_f32 v10, v10
v_exp_f32 v11, v11
v_add_f32 v12, 1.0, v10
v_add_f32 v13, 1.0, v11
v_rcp_f32 v12, v12
v_rcp_f32 v13, v13
v_mul_f32 v10, v10, v12                    ; sigmoid(-|x|)
v_mul_f32 v11, v11, v13
v_max_f32 v12, 0, v8
v_max_f32 v13, 0, v9
v_fma_f32 v8, -abs(v8), v10, v12
v_fma_f32 v9, -abs(v9), v11, v13
v_cvt_pk_bf16_f32 v{CV+r}, v8, v9
""")
    k(f"""
s_lshl_b32 s{sT1}, s{sW}, 6
v_add_u32 v8, s{sT1}, v{vL}
v_mul_u32_u24 v9, 1171, v8
v_lshrrev_b32 v9, 16, v9                   ; m
v_mul_u32_u24 v10, 56, v9
v_sub_u32 v10, v8, v10                     ; cc
v_lshrrev_b32 v11, 2, v10
v_lshlrev_b32 v11, 9, v11
v_lshl_add_u32 v11, v9, 4, v11
v_and_b32 v12, 1, v10
v_lshl_add_u32 v11, v12, 8, v11
v_bfe_u32 v12, v10, 1, 1
v_lshl_add_u32 v11, v12, 3, v11
ds_write_b64 v11, {V(CV,2)} offset:{L_SC}
ds_write_b64 v11, {V(CV+2,2)} offset:{L_SC+128}
L_NOSILU:
""")
    k("s_waitcnt vmcnt(0) lgkmcnt(0)\ns_barrier            ; c1")
    stamp(2)
    def frag_ab():
        k(f"s_mov_b32 s{sT1}, {L_B}\ns_cmp_lt_u32 s{sW}, 4\ns_cselect_b32 s{sT1}, {L_A}, s{sT1}")
        tile_addr(10, sT5, f"s{sT1}")
        frag_tile(WF, 10)
    k(f"s_cmp_ge_u32 s{sID}, 14\ns_cbranch_scc1 L_CQ")
    k(f"s_cmp_ge_u32 s{sW}, 4\ns_cbranch_scc1 L_U1")
    frag_ab()
    tile_mfma(L_SC)
    k("L_U1:\ns_barrier            ; u1")
    k(f"s_cmp_lg_u32 s{sW}, 0\ns_cbranch_scc1 L_U2")
    k(f"s_add_u32 s{sT1}, s{sY1}, {WS_MU}")
    stage_pub(11, sT1)
    stamp(3)
    k("L_U2:\ns_barrier            ; u2")
    dma_tile(SRD_C, 8192, sY1, L_A)
    k("s_waitcnt vmcnt(0)\ns_barrier            ; c2\ns_barrier            ; c3\ns_branch L_CLZ")
    k("L_CQ:")
    frag_ab()
    k(f"s_barrier            ; q1\ns_mul_i32 s{sT2}, s{sW}, 7168\ns_add_u32 s{sT2}, s{sT2}, {L_A}\nv_add_u32 v8, s{sT2}, v{vL16}")
    for i in range(7): k(f"ds_write_b128 v8, {V(AF+4*i)} offset:{i*1024}")
    k("s_waitcnt lgkmcnt(0)\ns_barrier            ; c2")
    tile_mfma(L_H)
    k("s_barrier            ; c3")
    k(f"s_cmp_lg_u32 s{sT5}, 0\ns_cbranch_scc1 L_CQ2")
    k(f"s_add_u32 s{sT1}, s{sY0}, {WS_Q}")
    stage_pub(13, sT1)
    stamp(5)
    k(f"L_CQ2:\ns_cmp_ge_u32 s{sID}, 28\ns_cbranch_scc1 L_FIN")
    k("L_CLZ:\ns_barrier            ; c7")
    k(f"s_add_u32 s{sT1}, s{sY1}, {14*128}")
    dma_tile(SRD_A, 5376, sT1, L_B)
    k("s_waitcnt vmcnt(0)\ns_barrier            ; c8")
    k(f"s_cmp_lt_u32 s{sW}, 4\ns_cbranch_scc1 L_FIN")
    frag_ab()
    tile_mfma(L_SC)
    k("s_barrier            ; c9")
    k(f"s_cmp_lg_u32 s{sW}, 4\ns_cbranch_scc1 L_FIN")
    k(f"s_add_u32 s{sT1}, s{sY1}, {WS_M-128}")
    stage_pub(12, sT1)
    k("s_waitcnt vmcnt(0)")
    counter_go(D_CM, 27, D_GM, "L_CG1")
    stamp(7)
    k("s_branch L_FIN")

    FW, F2, F13 = 16, 80, 16
    k("L_TAILWG:")
    if o.get("x_notw"): k("s_endpgm")
    svc_setup()
    k(f"s_mov_b32 s{sMODE}, 0\ns_cmp_lt_u32 s{sW}, 8\ns_cbranch_scc1 L_T8")
    neg1()
    k(f"""
s_sub_u32 s{sT5}, s{sW}, 8
s_cmp_lg_u32 s{sW}, 10
s_cbranch_scc1 L_TC3
s_setprio 3
s_getreg_b32 s{sT1}, hwreg(HW_REG_XCC_ID, 0, 4)
s_mul_i32 s{sT2}, s{sT1}, s{sT1}
s_lshl_b32 s{sT2}, s{sT2}, 16
s_lshl_b32 s{sT1}, s{sT1}, 6
s_add_u32 s{sT2}, s{sT2}, s{sT1}
s_add_u32 s{sT2}, s{sT2}, 1                ; 1 | x<<6 | x^2<<16
v_mov_b32 v12, s{sT2}
s_mov_b64 exec, 1
buffer_atomic_add v12, v{vZ}, {S(SRD_B)}, 0 offen offset:{D_XC} sc0 sc1
s_waitcnt vmcnt(0)
v_readfirstlane_b32 s{sT1}, v12
s_add_u32 s{sT1}, s{sT1}, s{sT2}
s_and_b32 s{sT2}, s{sT1}, 63
s_cmp_lg_u32 s{sT2}, 32
s_cbranch_scc1 L_TC5
s_bfe_u32 s{sT2}, s{sT1}, 0xa0006
s_mul_i32 s{sT2}, s{sT2}, s{sT2}
s_lshr_b32 s{sT1}, s{sT1}, 16
s_lshl_b32 s{sT1}, s{sT1}, 5
s_cmp_eq_u32 s{sT1}, s{sT2}
s_cselect_b32 s{sT1}, {2 if o.get("slow") else 1}, 2
v_mov_b32 v12, s{sT1}
buffer_store_dword v12, v{vZ}, {S(SRD_B)}, 0 offen offset:{D_MODE} sc1
L_TC5:
s_mov_b64 exec, -1
s_setprio 0
L_TC3:
s_cmp_lg_u32 s{sID}, 31
s_cbranch_scc1 L_T9
""")
    code_prefetch("T", sT5)
    k(f"""
s_branch L_T9
L_T8:
""")
    srd(SRD_C, P_WO, 4096 * 896)
    k(f"""
v_mul_u32_u24 v8, 37, v{vL}
v_lshrrev_b32 v8, 9, v8                    ; l/14
v_mul_u32_u24 v9, 14, v8
v_sub_u32 v9, v{vL}, v9
v_mul_u32_u24 v8, 896, v8
v_lshl_add_u32 v8, v9, 4, v8
s_lshr_b32 s{sT1}, s{sID}, 2
s_lshl_b32 s{sT1}, s{sT1}, 9
s_lshl_b32 s{sT2}, s{sW}, 5
s_add_u32 s{sT1}, s{sT1}, s{sT2}
s_mul_i32 s{sT1}, s{sT1}, 896
s_and_b32 s{sT2}, s{sID}, 3
s_mul_i32 s{sT2}, s{sT2}, 224
s_add_u32 s{sT2}, s{sT2}, s{sT1}
s_mul_i32 s{sT3}, s{sW}, 7168
s_add_u32 s{sT3}, s{sT3}, {L_A}
s_mov_b32 exec_hi, 0x00ffffff
""")
    for i in range(16):
        k(f"s_mov_b32 m0, s{sT3}\nbuffer_load_dwordx4 v8, {S(SRD_C)}, s{sT2} offen {NTW} lds")
        if i == 7: k(f"s_add_u32 s{sT2}, s{sT2}, {(256-28)*896}\ns_sub_u32 s{sT3}, s{sT3}, {L_A-L_B+7*896}")
        elif i < 15: k(f"s_add_u32 s{sT2}, s{sT2}, {4*896}\ns_add_u32 s{sT3}, s{sT3}, 896")
    k("s_mov_b64 exec, -1")
    k("L_T9:")
    svc_setup2()
    isF = f"s_cmp_ge_u32 s{sID}, 28"
    def frag_wo(dst, buf):
        L = k.newlabel("LFW")
        k(f"s_cmp_ge_u32 s{sW}, 7\ns_cbranch_scc1 {L}")
        k(f"v_mul_u32_u24 v8, 224, v{vTR}\nv_and_b32 v9, 3, v{vL}\nv_lshl_add_u32 v8, v9, 3, v8")
        k(f"s_lshl_b32 s{sT2}, s{sW}, 5\ns_add_u32 s{sT2}, s{sT2}, {buf}\nv_add_u32 v8, s{sT2}, v8")
        for T in range(8):
            k(f"ds_read_b64_tr_b16 {V(dst+4*T,2)}, v8 offset:{T*7168}\nds_read_b64_tr_b16 {V(dst+4*T+2,2)}, v8 offset:{T*7168+3584}")
            if T in (3, 7): k("s_waitcnt lgkmcnt(0)")
        k(f"{L}:")
    def if_loader(fn):
        L = k.newlabel("LL")
        k(f"s_cmp_ge_u32 s{sW}, 8\ns_cbranch_scc1 {L}\n{isF}\ns_cbranch_scc1 {L}")
        fn()
        k(f"{L}:")
    k("s_waitcnt vmcnt(8)\ns_barrier            ; t1")
    stamp(1)
    frag_wo(FW, L_A)
    k("s_barrier            ; t2")
    def ld_w2():
        srd(SRD_A, P_W2, 1792 * 896)
        k(f"s_lshl_b32 s{sT1}, s{sID}, 6")
        dma_rows(SRD_A, sT1, L_A)
        k("s_waitcnt vmcnt(8)\ns_branch L_T10")
    if_loader(ld_w2)
    k("s_waitcnt vmcnt(0)\nL_T10:\ns_barrier            ; t3")
    stamp(2)
    frag_wo(FW + 32, L_B)
    k("s_barrier            ; t4")
    def ld_w1():
        srd(SRD_A, P_W1, 448 * 3584)
        k(f"s_lshl_b32 s{sT1}, s{sID}, 7")
        dma_tile(SRD_A, 3584, sT1, L_B)
        k("s_waitcnt vmcnt(7)\ns_branch L_T14")
    if_loader(ld_w1)
    k(f"s_cmp_lt_u32 s{sW}, 8\ns_cbranch_scc1 L_T11\ns_cmp_eq_u32 s{sW}, 11\ns_cbranch_scc1 L_T11")
    poll_flag(D_MODE, "L_PM", sleep=4)
    k(f"v_readfirstlane_b32 s{sMODE}, v9\n{isF}\ns_cbranch_scc1 L_T11")
    neg1()
    k(f"""
s_cmp_eq_u32 s{sW}, 10
s_cbranch_scc1 L_T12
s_mul_i32 s{sT0}, s{sID}, 4352
s_add_u32 s{sT0}, s{sT0}, {WS_PA}
s_add_u32 s{sT1}, s{sT0}, 8192
s_cmp_eq_u32 s{sW}, 8
s_cbranch_scc1 L_T13
s_mul_i32 s{sT0}, s{sID}, 8448
s_add_u32 s{sT0}, s{sT0}, {WS_PB}
s_add_u32 s{sT1}, s{sT0}, 12288
L_T13:
""")
    lstore([f"buffer_store_dwordx4 v[8:11], v{vL16}, {S(SRD_WS)}, s{sT0} offen offset:{i*1024}" for i in range(4)])
    k(f"""
s_add_u32 s{sT0}, s{sT0}, 4096
s_cmp_lt_u32 s{sT0}, s{sT1}
s_cbranch_scc1 L_T13
s_branch L_T11
L_T12:
s_cmp_ge_u32 s{sID}, 8
s_cbranch_scc1 L_T11
s_lshl_b32 s{sT0}, s{sID}, 10
s_add_u32 s{sT0}, s{sT0}, {WS_X1}
""")
    lstore([f"buffer_store_dwordx4 v[8:11], v{vL16}, {S(SRD_WS)}, s{sT0} offen"])
    k("L_T11:")
    k("s_waitcnt vmcnt(0)\nL_T14:\ns_barrier            ; t5")
    stamp(3)
    k(f"s_cmp_lg_u32 s{sW}, 8\ns_cbranch_scc1 L_T15")
    counter_go(D_CB, 31, D_GO2, "L_CG2")
    k("L_T15:")
    k(f"{isF}\ns_cbranch_scc1 L_T16")
    frag_rows(F2, L_A)
    k("L_T16:\ns_barrier            ; t6")
    def ld_w3():
        srd(SRD_A, P_W3, 448 * 3584)
        k(f"s_lshl_b32 s{sT1}, s{sID}, 7")
        dma_tile(SRD_A, 3584, sT1, L_A)
    if_loader(ld_w3)
    k(f"s_cmp_lg_u32 s{sW}, 8\ns_cbranch_scc1 L_T17")
    poll_flag(D_GO2, "L_G1", sleep=8)
    poll_flag(D_GB, "L_G1B", sleep=8)
    k(f"v_mov_b32 v9, s{sMODE}\nds_write_b32 v{vZ}, v9 offset:{L_T}")
    k("L_T17:\ns_waitcnt vmcnt(0) lgkmcnt(0)\ns_barrier            ; t7")
    stamp(4)
    if o.get("x_notail"): k("s_branch L_FIN")
    k(f"ds_read_b32 v9, v{vZ} offset:{L_T}\ns_waitcnt lgkmcnt(0)\nv_readfirstlane_b32 s{sMODE}, v9")
    srd(SRD_A, P_X, 7168); srd(SRD_C, P_OUT, 7168)
    k(f"v_lshlrev_b32 v13, 1, v{vL}\ns_mov_b32 s{sY0}, 0\ns_mov_b32 s{sY1}, 0\ns_mov_b32 s{sT4}, 0")
    MC, MS = 160, 164
    vGA, vGB, vXX, vX1 = 152, 154, 156, 158
    vOAW, vST = 152, 153
    k(f"""
v_mov_b32 v{vST}, 0
v_mov_b32 v12, 0
s_cmp_ge_u32 s{sW}, 8
s_cbranch_scc1 L_T21
v_lshrrev_b32 v8, 5, v{vL}
v_lshlrev_b32 v12, 3, v8                   ; ML: h*8
v_lshlrev_b32 v8, 12, v8                   ; 8h*512
v_lshrrev_b32 v9, 2, v{vN}
v_lshl_add_u32 v8, v9, 9, v8               ; (n>>2)*512
v_and_b32 v9, 1, v{vN}
v_lshl_add_u32 v8, v9, 8, v8               ; 2(n&1)*128
v_and_b32 v9, 1, v{vG}
v_lshl_add_u32 v8, v9, 7, v8               ; (gq&1)*128
v_bfe_u32 v9, v{vN}, 1, 1
v_lshl_add_u32 v8, v9, 3, v8               ; half*8
s_lshl_b32 s{sT1}, s{sW}, 4
v_add_u32 v{vOAW}, s{sT1}, v8
v_lshrrev_b32 v8, 1, v{vG}
v_mul_u32_u24 v8, 2176, v8
v_and_b32 v9, 1, v{vG}
v_lshl_add_u32 v8, v9, 10, v8
v_lshl_add_u32 v{vST}, v{vN}, 4, v8
s_lshr_b32 s{sKVH}, s{sID}, 2
s_mul_i32 s{sT0}, s{sKVH}, 24576
s_mul_i32 s{sT1}, s{sW}, 3072
s_add_u32 s{sT0}, s{sT0}, s{sT1}
s_add_u32 s{sT0}, s{sT0}, {WS_O}
s_lshl_b32 s{sT1}, s{sKVH}, 9
s_lshl_b32 s{sT2}, s{sW}, 6
s_add_u32 s{sT1}, s{sT1}, s{sT2}
s_add_u32 s{sT1}, s{sT1}, {WS_ML}
s_mov_b32 s{sNT}, 7
s_and_b32 s{sY0}, s{sID}, 3
s_mul_i32 s{sY0}, s{sY0}, 14
s_lshl_b32 s{sT2}, s{sW}, 1
s_add_u32 s{sY0}, s{sY0}, s{sT2}
s_mul_i32 s{sY0}, s{sY0}, 2176
s_lshl_b32 s{sT2}, s{sKVH}, 7
s_add_u32 s{sY0}, s{sY0}, s{sT2}
s_add_u32 s{sY0}, s{sY0}, {WS_PA}
""")
    k("s_branch L_AL0\nL_T21:")
    def frag13():
        k(f"""
s_sub_u32 s{sT2}, s{sW}, 8
v_lshrrev_b32 v8, 1, v{vTR}
v_and_b32 v8, 3, v8
v_xor_b32 v8, s{sT2}, v8
v_lshlrev_b32 v8, 5, v8
v_lshl_add_u32 v8, v{vTR}, 7, v8
v_and_b32 v9, 1, v{vL}
v_lshl_add_u32 v8, v9, 3, v8
v_bfe_u32 v9, v{vL}, 1, 1
v_mul_u32_u24 v9, {L_A-L_B}, v9
v_add_u32 v8, v8, v9
v_add_u32 v10, {L_B}, v8
v_add_u32 v11, 16, v10
""")
        frag_tile(F13, 10); frag_tile(F13 + 56, 11)
    frag13()
    k(f"{isF}\ns_cbranch_scc1 L_T22\ns_cmp_eq_u32 s{sW}, 11\ns_cbranch_scc1 L_PAD0")
    k(f"""
s_mul_i32 s{sT0}, s{sID}, 8448
s_add_u32 s{sT0}, s{sT0}, {WS_PB}
s_mul_i32 s{sT1}, s{sID}, 4352
s_add_u32 s{sT1}, s{sT1}, {WS_PA}
s_cmp_eq_u32 s{sW}, 9
s_cselect_b32 s{sT0}, s{sT1}, s{sT0}
s_cmp_eq_u32 s{sW}, 10
s_cselect_b32 s{sT0}, {WS_X1}, s{sT0}
v_lshlrev_b32 v8, 7, v{vL}
buffer_load_dword v128, v8, {S(SRD_WS)}, s{sT0} offen sc1
""")
    if not o.get("x_nom"): poll_flag(D_GM, "L_PGMM", sleep=8)
    k(f"s_cmp_lg_u32 s{sW}, 10\ns_cbranch_scc1 L_T23")
    k(f"s_mov_b32 exec_hi, 0x00ffffff\ns_mov_b32 s{sT0}, {WS_M+896}\ns_mov_b32 s{sT1}, {WS_M+1792}")
    for bb in range(8):
        k(f"s_mov_b32 m0, {L_MM+7168+bb*896}\nbuffer_load_dwordx4 v{vL16}, {S(SRD_WS)}, s{sT0} offen sc1 lds")
        k(f"s_mov_b32 m0, {L_MM+bb*896}\nbuffer_load_dwordx4 v{vL16}, {S(SRD_WS)}, s{sT1} offen sc1 lds")
        if bb < 7: k(f"s_add_u32 s{sT0}, s{sT0}, 4096\ns_add_u32 s{sT1}, s{sT1}, 4096")
    k("s_waitcnt vmcnt(0)")
    k("s_mov_b64 exec, -1\ns_branch L_T22")
    k(f"""
L_T23:
s_lshl_b32 s{sT4}, s{sID}, 1
s_add_u32 s{sT4}, s{sT4}, s{sW}
s_sub_u32 s{sT4}, s{sT4}, 8                ; task
s_lshl_b32 s{sY0}, s{sT4}, 4
s_add_u32 s{sT1}, s{sY0}, {WS_M}
s_add_u32 s{sY1}, s{sY0}, {WS_X1}
v_and_b32 v8, 7, v{vL}
v_lshlrev_b32 v9, 2, v{vG}
v_lshl_add_u32 v10, v8, 12, v9             ; M : b*4096 + pair*4
v_lshl_add_u32 v12, v8, 10, v9             ; X1: b*1024 + pair*4
v_mul_u32_u24 v13, 896, v8
v_add_u32 v13, v13, v9
buffer_load_dword v{vGA}, v10, {S(SRD_WS)}, s{sT1} offen sc1
buffer_load_dword v{vGB}, v10, {S(SRD_WS)}, s{sT1} offen offset:2688 sc1
buffer_load_dword v{vXX}, v13, {S(SRD_A)}, s{sY0} offen
""")
    k("s_waitcnt vmcnt(0)")
    for r in (vGA, vGB, vXX): k(f"v_and_b32 v{r+1}, 0xffff0000, v{r}\nv_lshlrev_b32 v{r}, 16, v{r}")
    k("L_T22:\ns_setprio 3\ns_branch L_TB1")
    OG = 112
    k(".p2align 12\nL_AL0:")
    stamp(8)
    k("L_AL:")
    for sp in range(3):
        L = k.newlabel("LA"); g0 = OG + 6 * sp
        k(f"s_bitcmp1_b32 s{sNT}, {sp}\ns_cbranch_scc0 {L}")
        k(f"buffer_load_dwordx2 {V(g0+4,2)}, v12, {S(SRD_WS)}, s{sT1} offen offset:{sp*16} sc1")
        k(f"buffer_load_dwordx4 {V(g0)}, v{vL16}, {S(SRD_WS)}, s{sT0} offen offset:{sp*1024} sc1")
        k(f"{L}:")
    k(f"s_waitcnt vmcnt(0)")
    for sp in range(3):
        L = k.newlabel("LA"); g0 = OG + 6 * sp
        k(f"s_bitcmp1_b32 s{sNT}, {sp}\ns_cbranch_scc0 {L}")
        sent(range(g0, g0 + 6), 8)
        k(f"s_cbranch_vccnz {L}\ns_bitset0_b32 s{sNT}, {sp}\n{L}:")
    k(f"s_cmp_eq_u32 s{sNT}, 0\ns_cbranch_scc1 L_ALD\ns_cmp_lg_u32 s{sNT}, 7\ns_cbranch_scc1 L_ALS\ns_sleep {o.get('asleep', 8)}\nL_ALS:")
    budget_loop("L_AL")
    k("L_ALD:\ns_setprio 3")
    stamp(9)
    def mm(sp): return OG + 6 * sp + 4
    AC = 132
    k(f"v_max3_f32 v8, v{mm(0)}, v{mm(1)}, v{mm(2)}")
    for sp in range(3): k(f"v_sub_f32 v{mm(sp)}, v{mm(sp)}, v8")
    for sp in range(3): k(f"v_mul_f32 v{mm(sp)}, s{sCC}, v{mm(sp)}")
    for sp in range(3): k(f"v_exp_f32 v{mm(sp)}, v{mm(sp)}")
    for r in range(4): unpack(AC + 2 * r, AC + 2 * r + 1, OG + r)
    for sp in range(3): k(f"v_mul_f32 v{mm(sp)}, v{mm(sp)}, v{mm(sp)+1}")
    k(f"v_add_f32 v8, v{mm(0)}, v{mm(1)}\nv_add_f32 v8, v8, v{mm(2)}\nv_rcp_f32 v8, v8")
    for r in range(4): unpack(AC + 8 + 2 * r, AC + 9 + 2 * r, OG + 6 + r)
    for sp in range(3): k(f"v_mul_f32 v{mm(sp)}, v{mm(sp)}, v8")
    for r in range(8): k(f"v_mul_f32 v{AC+r}, v{AC+r}, v{mm(0)}")
    for r in range(8): k(f"v_fmac_f32 v{AC+r}, v{AC+8+r}, v{mm(1)}")
    for r in range(4): unpack(AC + 8 + 2 * r, AC + 9 + 2 * r, OG + 12 + r)
    for r in range(8): k(f"v_fmac_f32 v{AC+r}, v{AC+8+r}, v{mm(2)}")
    for p in range(4): k(f"v_cvt_pk_bf16_f32 v{OG+12+p}, v{AC+2*p}, v{AC+2*p+1}")
    k(f"""
ds_write_b64 v{vOAW}, {V(OG+12,2)} offset:{L_OA}
ds_write_b64 v{vOAW}, {V(OG+14,2)} offset:{L_OA+2048}
s_waitcnt lgkmcnt(0)
""")
    k("L_TB1:\ns_barrier            ; T1")
    k(f"s_cmp_ge_u32 s{sW}, 7\ns_cbranch_scc1 L_WOD")
    ACT = [112 + 4 * i for i in range(8)]
    for T in range(8): k(f"ds_read_b128 {V(ACT[T])}, v{vBA} offset:{L_OA+T*512}")
    for T in range(16):
        k(f"s_waitcnt lgkmcnt({min(7, 15-T)})")
        k(f"{MF} v[144:147], {V(FW+4*T)}, {V(ACT[T%8])}, {'0' if T == 0 else 'v[144:147]'}")
        if T < 8: k(f"ds_read_b128 {V(ACT[T])}, v{vBA} offset:{L_OA+(T+8)*512}")
    for r in range(4): k(f"v_min_u32 v{144+r}, -2, v{144+r}")
    k(f"s_andn2_b64 exec, exec, s[{sMN}:{sMN+1}]")
    lstore([f"buffer_store_dwordx4 v[144:147], v{vST}, {S(SRD_WS)}, s{sY0} offen"])
    k("s_mov_b64 exec, -1\nL_WOD:")
    stamp(10)
    k(f"{isF}\ns_cbranch_scc1 L_FIN")
    k(f"s_cmp_lt_u32 s{sW}, 8\ns_cbranch_scc1 L_B2S\ns_cmp_ge_u32 s{sW}, 10\ns_cbranch_scc1 L_TB3")
    k(f"""
L_B1S:
s_mul_i32 s{sT0}, s{sT4}, 2176
s_add_u32 s{sT0}, s{sT0}, {WS_PA}
s_setprio 0
L_B1:
buffer_load_dwordx4 v[136:139], v{vL16}, {S(SRD_WS)}, s{sT0} offen sc1
buffer_load_dwordx4 v[140:143], v{vL16}, {S(SRD_WS)}, s{sT0} offen offset:1024 sc1
s_waitcnt vmcnt(0)
""")
    sent(range(136, 144), 8)
    retry("L_B1", "s_mov_b64 exec, vcc" + (f"\ns_sleep {o['r1']}" if o.get("r1") else ""))
    k("s_setprio 3\ns_mov_b64 exec, -1")
    stamp(11)
    def fold8(a):
        for r in range(4): k(f"v_permlane32_swap_b32 v{a+r}, v{a+4+r}")
        k(f"v_pk_add_f32 {V(a,2)}, {V(a,2)}, {V(a+4,2)}\nv_pk_add_f32 {V(a+2,2)}, {V(a+2,2)}, {V(a+6,2)}")
        k(f"v_permlane16_swap_b32 v{a}, v{a+2}\nv_permlane16_swap_b32 v{a+1}, v{a+3}\nv_pk_add_f32 {V(a,2)}, {V(a,2)}, {V(a+2,2)}")
        k(f"v_add_f32_dpp v{a}, v{a}, v{a} row_ror:8 row_mask:0xf bank_mask:0xf\nv_add_f32_dpp v{a+1}, v{a+1}, v{a+1} row_ror:8 row_mask:0xf bank_mask:0xf")
    fold8(136)
    round2(136, 137, 8)
    k(f"v_pk_mul_f32 v[136:137], v[136:137], {V(vGA,2)}")
    round2(136, 137, 8)
    k(f"""
v_pk_add_f32 v[136:137], v[136:137], {V(vXX,2)}
v_cvt_pk_bf16_f32 v138, v136, v137
v_min_u32 v138, -2, v138
s_andn2_b64 exec, exec, s[{sMN}:{sMN+1}]
""")
    lstore([f"buffer_store_dword v138, v12, {S(SRD_WS)}, s{sY1} offen"])
    k("s_mov_b64 exec, -1")
    stamp(12)
    unpack(vX1, vX1 + 1, 138)
    k("s_branch L_TB3")
    Y = 128
    k("L_PAD0:\ns_branch L_PAD1\nL_B2S:")
    chunk_dst(144)
    k(f"""
s_lshl_b32 s{sT0}, s{sW}, 10
s_add_u32 s{sT0}, s{sT0}, {WS_X1}
v_mov_b32 v136, 0
v_mov_b32 v137, 0
v_mov_b32 v138, 0
v_mov_b32 v139, 0
v_mov_b32 v145, 0x3f803f80
v_mov_b32 v146, {f32(1.0/448)}
s_mul_i32 s{sT3}, s{sW}, 896
s_add_u32 s{sT3}, s{sT3}, {L_MM}
v_add_u32 v8, s{sT3}, v{vL16}
ds_read_b128 {V(MC)}, v8
ds_read_b128 {V(MS)}, v8 offset:7168
s_waitcnt lgkmcnt(0)
""")
    CU_, SU_ = 16, 24
    for r in range(4):
        unpack(CU_ + 2 * r, CU_ + 2 * r + 1, MC + r)
        k(f"v_add_f32 v{CU_+2*r}, 1.0, v{CU_+2*r}\nv_add_f32 v{CU_+2*r+1}, 1.0, v{CU_+2*r+1}")
        round2(CU_ + 2 * r, CU_ + 2 * r + 1, 8)
        unpack(SU_ + 2 * r, SU_ + 2 * r + 1, MS + r)
    k(f"""
s_mov_b32 exec_hi, 0x00ffffff
s_setprio 0
L_B2:
buffer_load_dwordx4 v[136:139], v{vL16}, {S(SRD_WS)}, s{sT0} offen sc1
s_waitcnt vmcnt(0)
v_max3_u32 v8, v136, v137, v138
v_max_u32 v8, v8, v139
v_cmp_eq_u32 vcc, -1, v8
""")
    retry("L_B2", "s_mov_b64 exec, vcc" + (f"\ns_sleep {o['r2']}" if o.get("r2") else ""))
    k("s_setprio 3\ns_mov_b64 exec, -1")
    stamp(13)
    k("v_dot2_f32_bf16 v8, v136, v145, 0\nv_dot2_f32_bf16 v9, v136, v136, 0")
    for r in range(1, 4): k(f"v_dot2_f32_bf16 v8, v{136+r}, v145, v8\nv_dot2_f32_bf16 v9, v{136+r}, v{136+r}, v9")
    unpack(Y, Y + 1, 136); unpack(Y + 2, Y + 3, 137)
    steps = [f"row_shr:{sh} row_mask:0xf bank_mask:0xf bound_ctrl:0" for sh in (1, 2, 4, 8)] + ["row_bcast:15 row_mask:0xa bank_mask:0xf", "row_bcast:31 row_mask:0xc bank_mask:0xf"]
    fill = [f"v_lshlrev_b32 v{Y+4}, 16, v138", f"v_and_b32 v{Y+5}, 0xffff0000, v138", f"v_lshlrev_b32 v{Y+6}, 16, v139", f"v_and_b32 v{Y+7}, 0xffff0000, v139"]
    for i, m in enumerate(steps):
        k(f"v_add_f32_dpp v8, v8, v8 {m}\nv_add_f32_dpp v9, v9, v9 {m}")
        if i < 4: k(fill[i])
    k(f"""
v_readlane_b32 s{sT1}, v8, 63
v_readlane_b32 s{sT2}, v9, 63
v_mul_f32 v10, s{sT1}, v146
v_mul_f32 v11, s{sT2}, v146
v_fma_f32 v11, -v10, v10, v11
v_max_f32 v11, 0, v11
""")
    round2(10, 11, 8)
    k(f"v_add_f32 v11, {f32(1e-5)}, v11")
    R = o.get("lnround", 0)
    seq = ["v_cvt_pk_bf16_f32 v11, v11, v11", "v_lshlrev_b32 v11, 16, v11", "v_sqrt_f32 v11, v11", "", "v_cvt_pk_bf16_f32 v11, v11, v11", "v_lshlrev_b32 v11, 16, v11", "v_rcp_f32 v11, v11", ""]
    for c in range(8):
        k(f"v_sub_f32 v{Y+c}, v{Y+c}, v10")
        if seq[c]: k(seq[c])
    if R:
        for p in range(4): round2(Y + 2 * p, Y + 2 * p + 1, 8)
    for c in range(8): k(f"v_mul_f32 v{Y+c}, v{Y+c}, v11")
    if R:
        for p in range(4): round2(Y + 2 * p, Y + 2 * p + 1, 8)
        for c in range(8): k(f"v_mul_f32 v{Y+c}, v{Y+c}, v{CU_+c}")
        for p in range(4): round2(Y + 2 * p, Y + 2 * p + 1, 8)
        for c in range(8): k(f"v_add_f32 v{Y+c}, v{Y+c}, v{SU_+c}")
    else:
        for c in range(8): k(f"v_fma_f32 v{Y+c}, v{Y+c}, v{CU_+c}, v{SU_+c}")
    for p in range(4): k(f"v_cvt_pk_bf16_f32 v{136+p}, v{Y+2*p}, v{Y+2*p+1}")
    k(f"""
s_mov_b32 exec_hi, 0x00ffffff
ds_write_b64 v144, v[136:137] offset:{L_SC}
ds_write_b64 v144, v[138:139] offset:{L_SC+128}
s_mov_b64 exec, -1
s_waitcnt lgkmcnt(0)
L_TB3:
s_barrier            ; T3
s_cmp_ge_u32 s{sW}, 8
s_cbranch_scc1 L_W13
s_cmp_eq_u32 s{sW}, 7
s_cbranch_scc1 L_FIN
v_and_b32 v9, 7, v{vN}
v_mul_u32_u24 v8, 136, v9
v_lshl_add_u32 v8, v{vG}, 3, v8
v_add_u32 v8, {L_G}, v8
v_lshrrev_b32 v10, 3, v{vN}
v_lshl_add_u32 v10, v10, 2, v{vG}
v_mul_u32_u24 v10, 4224, v10
v_lshl_add_u32 v9, v9, 4, v10
s_mul_i32 s{sT0}, s{sW}, {8*4224}
s_lshl_b32 s{sT1}, s{sID}, 7
s_add_u32 s{sT0}, s{sT0}, s{sT1}
s_add_u32 s{sT0}, s{sT0}, {WS_PB}
s_barrier            ; T4
ds_read2_b64 v[112:115], v8 offset0:0 offset1:4
ds_read2_b64 v[116:119], v8 offset0:8 offset1:12
""")
    for T in range(2):
        k(f"s_waitcnt lgkmcnt({1-T})")
        for q in range(4):
            k(f"{MF} {V(128+4*q)}, {V(F2+(T*4+q)*4)}, {V(112+4*T)}, {'0' if T == 0 else V(128+4*q)}")
    for q in range(4):
        k(f"v_cvt_pk_bf16_f32 v{144+2*q}, v{128+4*q}, v{129+4*q}\nv_cvt_pk_bf16_f32 v{145+2*q}, v{130+4*q}, v{131+4*q}")
    for r in range(4):
        k(f"v_cndmask_b32 v{144+r}, v{144+r}, v{148+r}, s[{sMN}:{sMN+1}]\nv_min_u32 v{144+r}, -2, v{144+r}")
    lstore([f"buffer_store_dwordx4 v[144:147], v9, {S(SRD_WS)}, s{sT0} offen"])
    stamp(14)
    k("s_branch L_FIN")
    k("L_PAD1:\ns_branch L_PAD2\nL_W13:")
    stamp(7)
    HA = [128 + 4 * i for i in range(6)]
    A0, A1 = 160, 164
    for t in range(6): k(f"ds_read_b128 {V(HA[t])}, v{vBA} offset:{L_SC+t*512}")
    k(f"""
s_mov_b32 s{sT3}, {f32(-LOG2E)}
v_and_b32 v8, 7, v{vN}
v_mul_u32_u24 v8, 136, v8
v_and_b32 v9, 1, v{vG}
v_lshl_add_u32 v8, v9, 3, v8
v_lshrrev_b32 v9, 5, v{vL}
v_lshl_add_u32 v8, v9, 2, v8
v_lshrrev_b32 v9, 3, v{vN}
v_lshl_add_u32 v8, v9, 4, v8
s_sub_u32 s{sT1}, s{sW}, 8
s_lshl_b32 s{sT1}, s{sT1}, 5
v_add_u32 v8, s{sT1}, v8
""")
    for t in range(14):
        k(f"s_waitcnt lgkmcnt({min(5, 13-t)})")
        k(f"{MF} {V(A0)}, {V(F13+4*t)}, {V(HA[t%6])}, {'0' if t == 0 else V(A0)}")
        k(f"{MF} {V(A1)}, {V(F13+56+4*t)}, {V(HA[t%6])}, {'0' if t == 0 else V(A1)}")
        if t + 6 < 14: k(f"ds_read_b128 {V(HA[t%6])}, v{vBA} offset:{L_SC+(t+6)*512}")
    for r in range(4): k(f"v_cndmask_b32 v{A0+r}, v{A0+r}, v{A1+r}, s[{sMN}:{sMN+1}]")
    k(f"""
v_permlane32_swap_b32 v{A0}, v{A0+2}
v_permlane32_swap_b32 v{A0+1}, v{A0+3}
""")
    round2(A0, A0 + 1, 12)
    k(f"""
v_mul_f32 v10, s{sT3}, v{A0}
v_mul_f32 v11, s{sT3}, v{A0+1}
v_exp_f32 v10, v10
v_exp_f32 v11, v11
""")
    round2(A0 + 2, A0 + 3, 12)
    k(f"""
v_add_f32 v10, 1.0, v10
v_add_f32 v11, 1.0, v11
v_rcp_f32 v10, v10
v_rcp_f32 v11, v11
v_mul_f32 v{A0}, v{A0}, v10
v_mul_f32 v{A0+1}, v{A0+1}, v11
""")
    round2(A0, A0 + 1, 12)
    k(f"""
v_mul_f32 v{A0}, v{A0}, v{A0+2}
v_mul_f32 v{A0+1}, v{A0+1}, v{A0+3}
v_cvt_pk_bf16_f32 v10, v{A0}, v{A0+1}
ds_write_b32 v8, v10 offset:{L_G}
s_waitcnt lgkmcnt(0)
s_barrier            ; T4
""")
    stamp(14)
    k(f"s_cmp_ge_u32 s{sW}, 10\ns_cbranch_scc1 L_FIN")
    k(f"""
s_mul_i32 s{sT0}, s{sT4}, 4224
s_add_u32 s{sT0}, s{sT0}, {WS_PB}
v_mov_b32 v28, 0
v_mov_b32 v29, 0
v_mov_b32 v30, 0
v_mov_b32 v31, 0
s_setprio 0
L_FB:
s_mov_b64 s[{sX0}:{sX0+1}], exec
""")
    for i in range(3): k(f"buffer_load_dwordx4 {V(16+4*i)}, v{vL16}, {S(SRD_WS)}, s{sT0} offen offset:{i*1024} sc1")
    k(f"""
s_mov_b32 exec_hi, 0
s_cbranch_execz L_FB2
buffer_load_dwordx4 v[28:31], v{vL16}, {S(SRD_WS)}, s{sT0} offen offset:3072 sc1
L_FB2:
s_mov_b64 exec, s[{sX0}:{sX0+1}]
s_waitcnt vmcnt(0)
""")
    sent(range(16, 32), 8)
    retry("L_FB", "s_mov_b64 exec, vcc" + (f"\ns_sleep {o['r3']}" if o.get("r3") else ""))
    k("s_mov_b64 exec, -1\ns_setprio 3")
    stamp(13)
    k("v_mov_b32 v8, 0x3f80\nv_mov_b32 v9, 0x3f800000")
    for i in range(4):
        for r in range(4):
            for h in range(2):
                d = 32 + 2 * r + h
                k(f"v_dot2_f32_bf16 v{d}, v{16+4*i+r}, v{8+h}, {'0' if i == 0 else 'v%d' % d}")
    k("s_nop 2")
    fold8(32)
    round2(32, 33, 8)
    k(f"v_pk_mul_f32 v[32:33], v[32:33], {V(vGB,2)}")
    round2(32, 33, 8)
    k(f"""
v_pk_add_f32 v[32:33], v[32:33], {V(vX1,2)}
v_cvt_pk_bf16_f32 v16, v32, v33
s_andn2_b64 exec, exec, s[{sMN}:{sMN+1}]
buffer_store_dword v16, v13, {S(SRD_C)}, s{sY0} offen
s_mov_b64 exec, -1
""")
    stamp(15)
    if o.get("probe"):
        k(f"s_cmp_lg_u32 s2, 0\ns_cbranch_scc1 L_FIN\ns_cmp_lg_u32 s{sW}, 8\ns_cbranch_scc1 L_FIN\nv_mov_b32 v8, 0")
        for j, i in enumerate([1, 2, 3, 4, 10, 12, 14, 15]):
            k(f"s_sub_u32 s{sT0}, s{sSTAMP+2*i}, s{sSTAMP}\nv_writelane_b32 v8, s{sT0}, {j}")
        k(f"v_lshlrev_b32 v7, 2, v0\ns_mov_b64 exec, 0xff\nbuffer_store_dword v8, v7, {S(SRD_B)}, 0 offen offset:16 sc1")
    if debug:
        k("s_branch L_FIN\nL_PAD2:\ns_branch L_T22")
        for blk in ool[::-1]: k(blk)
    k("L_FIN:")
    if debug:
        k("s_mov_b64 exec, -1\nv_mov_b32 v8, 0")
        for i in range(16): k(f"v_writelane_b32 v8, s{sSTAMP+2*i}, {i}")
        k(f"v_writelane_b32 v8, s{sBUD}, 16")
        k(f"""
s_mul_i32 s{sT0}, s2, 12
s_add_u32 s{sT0}, s{sT0}, s{sW}
s_lshl_b32 s{sT0}, s{sT0}, 7
s_add_u32 s{sT0}, s{sT0}, {WS_DBG}
v_lshlrev_b32 v7, 2, v0
s_mov_b32 exec_hi, 0
buffer_store_dword v8, v7, {S(SRD_WS)}, s{sT0} offen
""")
    k("L_END:\ns_endpgm")
    if not debug:
        k("L_PAD2:\ns_branch L_T22")
        for blk in ool: k(blk)
    k("L_CODE_END:")
    kt = kernel_text(KNAME + "_kernel", k.text(), NVGPR)
    return file_text([f"; @launch grid=(256,1,1) block=(768,1,1) lds={LDS_BYTES}"], [kt])

if __name__ == "__main__":
    open("d_dbg.s", "w").write(gen(debug=True))
    open("d_rel.s", "w").write(gen(debug=False))
    for a in sys.argv[1:]:
        name, *kv = a.split(",")
        op = {x.split("=")[0]: (int(x.split("=")[1]) if x.split("=")[1].lstrip("-").isdigit() else x.split("=")[1]) for x in kv}
        open(name, "w").write(gen(debug="dbg" in name, opts=op))
```

```python
import sys, struct
from emit import K
from asmlib import KNAME, kernel_text, file_text

WS_MU = 0x0000
WS_M = 0x4000
WS_ML = 0x50000
WS_CNT = 0x51000
WS_X1 = 0xE000
WS_Q = 0x10000
WS_O = 0x20000
WS_PA = 0xA0000
WS_PB = 0xC0000
WS_DBG = 0x200000
WS_BYTES = 0x20000000
D_GA, D_GO2, D_GB, D_MODE, D_GM = 0, 4, 8, 12, 48
D_GQ, D_CM, D_XC, D_CB, D_CC = 128, 144, 148, 152, 156
AL_QF, AL_T, AL_G, AL_P, AL_N = 0, 4, 8, 12, 16
AL_Q = 64
AL_O = 2048
L_SC = 0
L_H = 7168
L_OA = L_H
L_G = L_H + 8256
L_T = 16640
L_B = 20224
L_A = L_B + 65536 + 16
L_MC = L_B + 57344
L_MS = L_A + 57344
LDS_BYTES = 152320
assert L_A + 65536 <= LDS_BYTES and L_MS % 16 == 0
LOG2E = 1.4426950408889634
def f32(x): return "0x%08x" % struct.unpack("<I", struct.pack("<f", x))[0]

P_X, P_K, P_V, P_WQ, P_WO, P_W1, P_W3, P_W2, P_C, P_WM, P_OUT, P_DBG, P_WS = 4, 6, 8, 10, 12, 16, 18, 20, 22, 24, 26, 28, 30
SRD_WS = 32
sID, sSP, sB, sKVH, sBUD = 36, 37, 38, 39, 40
sT0, sT1, sT2, sT3, sT4, sT5 = 41, 42, 43, 44, 45, 46
sMODE = 47
SRD_A, SRD_B, SRD_C = 48, 52, 56
sMN, sMH = 60, 62
sX0 = 64
sY0, sY1 = 66, 67
sCC = 68
sNT = 69
sW = 3
sSTAMP = 70
BUDGET = 400000
NVGPR = 168

def gen(debug=False, opts=None):
    o = dict(nt_w="nt", first=4, qsleep=20, qdelay=127, fsleep=4, b1sleep=2, b2sleep=0, asleep2=0)
    if opts: o.update(opts)
    NTW = o["nt_w"].replace("+", " ")
    k = K()
    def srd(dst, ptr, nbytes):
        k(f"s_mov_b32 s{dst}, s{ptr}\ns_and_b32 s{dst+1}, s{ptr+1}, 0xffff\ns_mov_b32 s{dst+2}, {nbytes}\ns_mov_b32 s{dst+3}, 0x20000")
    def S(r): return f"s[{r}:{r+3}]"
    def V(r, n=4): return f"v[{r}:{r+n-1}]"
    def stamp(i):
        if debug and (not o.get("lite") or i in (0, 5, 15)): k(f"s_memrealtime s[{sSTAMP+2*i}:{sSTAMP+2*i+1}]\ns_waitcnt lgkmcnt(0)")
    def stamp_init():
        if debug:
            for i in range(15 if o.get("st0") else 16): k(f"s_mov_b32 s{sSTAMP+2*i}, 0")
        stamp(0)
    def budget_loop(L):
        k(f"s_add_u32 s{sBUD}, s{sBUD}, 1\ns_cmp_lt_u32 s{sBUD}, {BUDGET}\ns_cbranch_scc1 {L}")
    def wave_red(op, v, sdst):
        ins = {"add": "v_add_f32_dpp", "max": "v_max_f32_dpp"}[op]
        bc = " bound_ctrl:0" if op == "add" else ""
        for sh in (1, 2, 4, 8):
            k(f"{ins} v{v}, v{v}, v{v} row_shr:{sh} row_mask:0xf bank_mask:0xf{bc}")
        k(f"{ins} v{v}, v{v}, v{v} row_bcast:15 row_mask:0xa bank_mask:0xf")
        k(f"{ins} v{v}, v{v}, v{v} row_bcast:31 row_mask:0xc bank_mask:0xf")
        k(f"v_readlane_b32 s{sdst}, v{v}, 63")
    def xg(op, v, t):
        ins = {"add": "v_add_f32", "max": "v_max_f32"}[op]
        k(f"v_mov_b32 v{t}, v{v}\nv_permlane32_swap_b32 v{t}, v{v}\n{ins} v{v}, v{v}, v{t}")
        k(f"v_mov_b32 v{t}, v{v}\nv_permlane16_swap_b32 v{t}, v{v}\n{ins} v{v}, v{v}, v{t}")
    def fold4(*bases):
        for a in bases: k(f"v_permlane32_swap_b32 v{a}, v{a+1}\nv_permlane32_swap_b32 v{a+2}, v{a+3}")
        for a in bases: k(f"v_add_f32 v{a}, v{a}, v{a+1}\nv_add_f32 v{a+2}, v{a+2}, v{a+3}")
        for a in bases: k(f"v_permlane16_swap_b32 v{a}, v{a+2}")
        for a in bases: k(f"v_add_f32 v{a}, v{a}, v{a+2}")
    def unpack(dlo, dhi, src):
        k(f"v_lshlrev_b32 v{dlo}, 16, v{src}\nv_and_b32 v{dhi}, 0xffff0000, v{src}")
    def round2(a, b, t):
        k(f"v_cvt_pk_bf16_f32 v{t}, v{a}, v{b}"); unpack(a, b, t)
    def round1(a):
        k(f"v_cvt_pk_bf16_f32 v{a}, v{a}, v{a}\nv_lshlrev_b32 v{a}, 16, v{a}")
    def sent(regs, t):
        regs = list(regs)
        if len(regs) == 1: k(f"v_cmp_eq_u32 vcc, -1, v{regs[0]}"); return
        if len(regs) == 2: k(f"v_max_u32 v{t}, v{regs[0]}, v{regs[1]}"); rest = []
        else: k(f"v_max3_u32 v{t}, v{regs[0]}, v{regs[1]}, v{regs[2]}"); rest = regs[3:]
        while len(rest) >= 2: k(f"v_max3_u32 v{t}, v{t}, v{rest[0]}, v{rest[1]}"); rest = rest[2:]
        if rest: k(f"v_max_u32 v{t}, v{t}, v{rest[0]}")
        k(f"v_cmp_eq_u32 vcc, -1, v{t}")
    def neg1(a=8):
        for r in range(4): k(f"v_mov_b32 v{a+r}, -1")
    def lstore(lines):
        L1, L2 = k.newlabel("LS"), k.newlabel("LS")
        k(f"s_cmp_eq_u32 s{sMODE}, 1\ns_cbranch_scc0 {L1}")
        for l in lines: k(l)
        k(f"{L2}:")
        ool.append(f"{L1}:\n" + "\n".join(l + " sc1" for l in lines) + f"\ns_nop 1\ns_branch {L2}")
    ool = []
    def retry(loop, extra=""):
        L, C = k.newlabel("LR"), k.newlabel("LC")
        k(f"s_cbranch_vccnz {L}\n{C}:")
        ool.append(f"{L}:\n{extra}\ns_add_u32 s{sBUD}, s{sBUD}, 1\ns_cmp_lt_u32 s{sBUD}, {BUDGET}\ns_cbranch_scc1 {loop}\ns_branch {C}")
    MF = "v_mfma_f32_16x16x32_bf16"
    vL, vG, vN, vZ, vONE = 0, 1, 2, 3, 4

    k(f"""
{"s_memrealtime s[100:101]" if o.get("st0") else ""}
s_cmp_ge_u32 s2, 256
s_cbranch_scc1 L_END
s_load_dwordx16 s[4:19], s[0:1], 0
s_load_dwordx8 s[20:27], s[0:1], 64
s_load_dwordx4 s[28:31], s[0:1], 96
v_lshrrev_b32 v1, 6, v0
v_readfirstlane_b32 s{sW}, v1
v_and_b32 v{vL}, 63, v0
s_and_b32 s{sT0}, s2, 7
s_lshr_b32 s{sID}, s2, 3
s_mov_b32 s{sBUD}, 0
v_lshrrev_b32 v{vG}, 4, v{vL}
v_and_b32 v{vN}, 15, v{vL}
v_mov_b32 v{vZ}, 0
v_mov_b32 v{vONE}, 1
s_mov_b32 s{sCC}, {f32(0.0625*LOG2E)}
s_cmp_eq_u32 s{sT0}, 0
s_cbranch_scc1 L_TAILWG
s_mul_i32 s{sID}, s{sID}, 7
s_add_u32 s{sID}, s{sID}, s{sT0}
s_sub_u32 s{sID}, s{sID}, 1
s_cmp_lt_u32 s{sID}, 32
s_cbranch_scc1 L_CHAIN
s_sub_u32 s{sT0}, s{sID}, 32
s_mul_i32 s{sT1}, s{sT0}, 781
s_lshr_b32 s{sT1}, s{sT1}, 14              ; a/21
s_mul_i32 s{sT2}, s{sT1}, 21
s_sub_u32 s{sT2}, s{sT0}, s{sT2}           ; a%21
s_mul_i32 s{sSP}, s{sT2}, 37
s_lshr_b32 s{sSP}, s{sSP}, 8               ; r
s_mul_i32 s{sT3}, s{sSP}, 5
s_sub_u32 s{sT3}, s{sT2}, s{sT3}           ; c + 2r
s_sub_u32 s{sT4}, s{sT3}, 7
s_cmp_ge_u32 s{sT3}, 7
s_cselect_b32 s{sT3}, s{sT4}, s{sT3}
s_mul_i32 s{sID}, s{sT1}, 7
s_add_u32 s{sID}, s{sID}, s{sT3}
s_cmp_ge_u32 s{sT0}, 189
s_cselect_b32 s{sID}, 63, s{sID}
s_cselect_b32 s{sSP}, s{sT2}, s{sSP}
""")
    KB, VB, QF, SA = 16, 80, 144, 160
    k(f"""
s_lshl_b32 s{sT0}, s{sSP}, 3
s_add_u32 s{sT0}, s{sT0}, s{sW}
s_lshl_b32 s{sT0}, s{sT0}, 14
s_lshl_b32 s{sY0}, s{sID}, 21
s_add_u32 s{sY0}, s{sY0}, {3072*512}
s_add_u32 s{sT0}, s{sT0}, s{sY0}
s_add_u32 s{sT1}, s{sT0}, 8192
v_lshlrev_b32 v5, 9, v{vN}
v_lshl_add_u32 v5, v{vG}, 4, v5            ; K: n*512 + g*16
v_lshlrev_b32 v6, 11, v{vG}
v_lshl_add_u32 v6, v{vN}, 4, v6            ; V: g*2048 + n*16
v_mov_b32 v8, 0
v_mov_b32 v9, 0
v_mov_b32 v10, 0
v_mov_b32 v11, 0
ds_write_b128 v{vZ}, v[8:11]
ds_write_b128 v{vZ}, v[8:11] offset:16
s_waitcnt lgkmcnt(0)
""")
    stamp_init()
    srd(SRD_A, P_K, 0x8000000)
    def kv_loads(dyn):
        n = 0
        seq = [("K", tl, i) for tl in range(2) for i in range(8)] + [("V", i, hf) for i in range(8) for hf in range(2)]
        for kind, a_, b_ in seq:
            if kind == "K":
                k(f"buffer_load_dwordx4 {V(KB+(a_*8+b_)*4)}, v5, {S(SRD_A)}, s{sT0+a_} offen offset:{b_*64} {o.get('kvpol', 'nt').replace('+', ' ')}")
            else:
                k(f"buffer_load_dwordx4 {V(VB+(a_*2+b_)*4)}, v6, {S(SRD_B)}, s{sT0+(a_>>2)} offen offset:{(a_&3)*512+b_*256} {o.get('kvpol', 'nt').replace('+', ' ')}")
            n += 1
            if not dyn and n == o["first"]:
                if o.get("st0"): k(f"s_memrealtime s[{sSTAMP+4}:{sSTAMP+5}]")
                k("s_barrier"); srd(SRD_B, P_V, 0x8000000)
            if not dyn and n == o.get("trig0", 26):
                k(f"s_cmp_lg_u32 s{sW}, 4\ns_cbranch_scc1 L_NT0\nds_write_b32 v{vZ}, v{vONE} offset:{AL_N}\nL_NT0:")
            if not dyn and n == o.get("trigq", 32):
                k(f"s_cmp_lg_u32 s{sW}, 5\ns_cbranch_scc1 L_NTQ\nds_write_b32 v{vZ}, v{vONE} offset:{AL_P}\nL_NTQ:")
            if dyn and n == o.get("trig1", 12):
                k(f"ds_write_b32 v7, v{vONE} offset:{AL_N+4}")
    k(f"s_cmp_ge_u32 s{sW}, 8\ns_cbranch_scc1 L_DYN")
    if o.get("x_extra"):
        k(f"s_sub_u32 s{sT2}, s{sT0}, 0x100000\nv_lshlrev_b32 v7, 4, v{vL}")
        for i in range(6):
            if i == 4: k(f"s_add_u32 s{sT2}, s{sT2}, 4096")
            k(f"buffer_load_dwordx4 {V(144+4*i)}, v7, {S(SRD_A)}, s{sT2} offen offset:{(i&3)*1024} nt")
    kv_loads(False)
    k("L_KVD:")
    stamp(1)
    srd(SRD_WS, P_WS, WS_BYTES)
    k(f"""
v_lshrrev_b32 v7, 3, v{vN}
v_lshlrev_b32 v7, 9, v7
v_lshl_add_u32 v7, v{vG}, 4, v7
v_and_b32 v12, 1, v{vL}
v_cmp_eq_u32 vcc, 1, v12
v_mov_b32 v13, 0xffff
v_mov_b32 v14, 0xffff0000
v_cndmask_b32 v13, v13, v14, vcc
v_bfe_u32 v12, v{vL}, 1, 2
""")
    for r in range(4): k(f"v_cmp_eq_u32 vcc, {r}, v12\nv_cndmask_b32 v{8+r}, 0, v13, vcc")
    k(f"""
{"s_branch L_AQD" if o.get("x_fakeq") else ""}
s_cmp_ge_u32 s{sW}, 4
s_cbranch_scc1 L_AQW
s_lshl_b32 s{sT2}, s{sID}, 10
s_lshl_b32 s{sT3}, s{sW}, 8
s_add_u32 s{sT2}, s{sT2}, s{sT3}
s_add_u32 s{sT2}, s{sT2}, {WS_Q}
s_add_u32 s{sX0}, s{P_WS}, s{sT2}
s_addc_u32 s{sX0+1}, s{P_WS+1}, 0
s_cmp_eq_u32 s{sW}, 0
s_cbranch_scc1 L_AG0
L_AGL:
ds_read_b32 v12, v{vZ} offset:{AL_G}
s_waitcnt lgkmcnt(0)
v_readfirstlane_b32 s{sT4}, v12
s_cmp_lg_u32 s{sT4}, 0
s_cbranch_scc1 L_AP0
s_sleep 2
""")
    budget_loop("L_AGL")
    k(f"""
s_branch L_AP
L_AG0:
s_and_b32 s{sT3}, s2, 1
s_lshl_b32 s{sT3}, s{sT3}, 6
s_add_u32 s{sT3}, s{sT3}, {D_GQ}
L_AG:
s_load_dword s{sT4}, s[{P_DBG}:{P_DBG+1}], s{sT3} glc
s_waitcnt lgkmcnt(0)
s_cmp_lg_u32 s{sT4}, 0
s_cbranch_scc1 L_AG1
s_sleep 32
""")
    budget_loop("L_AG")
    k(f"""
L_AG1:
ds_write_b32 v{vZ}, v{vONE} offset:{AL_G}
L_AP0:
s_sleep 4
ds_read_b32 v12, v{vZ} offset:{AL_P}
s_waitcnt lgkmcnt(0)
v_readfirstlane_b32 s{sT4}, v12
s_cmp_lg_u32 s{sT4}, 0
s_cbranch_scc1 L_AP
""")
    budget_loop("L_AP0")
    k(f"""
L_AP:
s_load_dwordx16 s[4:19], s[{sX0}:{sX0+1}], 0 glc
s_load_dwordx16 s[48:63], s[{sX0}:{sX0+1}], 64 glc
s_load_dwordx16 s[84:99], s[{sX0}:{sX0+1}], 128 glc
s_load_dwordx8 s[20:27], s[{sX0}:{sX0+1}], 192 glc
s_load_dwordx8 s[76:83], s[{sX0}:{sX0+1}], 224 glc
s_waitcnt lgkmcnt(0)
s_max_u32 s{sT4}, s63, s83
s_cmp_lg_u32 s{sT4}, -1
s_cbranch_scc1 L_AF
L_AR:
s_sleep {o.get("qsleep", 10)}
""")
    budget_loop("L_AP")
    k("L_AF:")
    src = list(range(4, 20)) + list(range(48, 64)) + list(range(84, 100)) + list(range(20, 28)) + list(range(76, 84))
    for i, r in enumerate(src): k(f"v_writelane_b32 v12, s{r}, {i}")
    k(f"v_cmp_eq_u32 vcc, -1, v12\ns_cbranch_vccz L_AW\ns_cmp_lt_u32 s{sBUD}, {BUDGET}\ns_cbranch_scc1 L_AR")
    if debug:
        pass
    k(f"""
L_AW:
s_lshl_b32 s{sT3}, s{sW}, 8
v_lshlrev_b32 v13, 2, v{vL}
v_add_u32 v13, s{sT3}, v13
ds_write_b32 v13, v12 offset:{AL_Q}
s_waitcnt lgkmcnt(0)
s_mov_b64 exec, 1
ds_add_u32 v{vZ}, v{vONE} offset:{AL_QF}
s_mov_b64 exec, -1
L_AQW:
ds_read_b32 v12, v{vZ} offset:{AL_QF}
s_waitcnt lgkmcnt(0)
v_readfirstlane_b32 s{sT4}, v12
s_cmp_ge_u32 s{sT4}, 4
s_cbranch_scc1 L_AQD
s_sleep 2
""")
    budget_loop("L_AQW")
    k("L_AQD:")
    if debug:
        for i in range(3, 15 if o.get("st0") else 16): k(f"s_mov_b32 s{sSTAMP+2*i}, 0")
    if not o.get("st0"): stamp(2)
    for i in range(4): k(f"ds_read_b128 {V(QF+4*i)}, v7 offset:{AL_Q+i*64}")
    PD, AS, OAC, vM, vLs = 16, 24, 40, 48, 49
    def adr():
        k(f"""
v_lshlrev_b32 v15, 4, v{vL}
v_lshlrev_b32 v14, 3, v{vL}
s_and_b32 s{sKVH}, s{sID}, 7
s_lshr_b32 s{sB}, s{sID}, 3
v_lshrrev_b32 v6, 5, v{vL}
v_lshlrev_b32 v6, 3, v6                    ; ML: h*8
s_mul_i32 s{sY0}, s{sB}, 3
s_add_u32 s{sY0}, s{sY0}, s{sSP}
s_lshl_b32 s{sY0}, s{sY0}, 10
s_mul_i32 s{sT2}, s{sKVH}, 24576
s_add_u32 s{sY0}, s{sY0}, s{sT2}
s_add_u32 s{sY0}, s{sY0}, {WS_O}
s_lshl_b32 s{sT0}, s{sB}, 2
s_add_u32 s{sT0}, s{sT0}, s{sSP}
s_lshl_b32 s{sT5}, s{sT0}, 4
s_lshl_b32 s{sT2}, s{sKVH}, 9
s_add_u32 s{sT5}, s{sT5}, s{sT2}
s_add_u32 s{sT5}, s{sT5}, {WS_ML}
s_mov_b32 s{sNT}, 12
""")
    adr()
    k(f"s_mov_b32 s{sT4}, 1")
    for n in range(16):
        tl, i = n >> 3, n & 7
        w = f"vmcnt({31-n}) " if True else ""
        k(f"s_waitcnt {w}lgkmcnt({min(3, 15-n)})")
        k(f"{MF} {V(SA+4*tl)}, {V(KB+n*4)}, {V(QF+4*(n&3))}, {'0' if i == 0 else V(SA+4*tl)}")
        if n < 12: k(f"ds_read_b128 {V(QF+4*(n&3))}, v7 offset:{AL_Q+((n+4)&7)*64}")
        if n == 11:
            round2(SA, SA + 1, 12); round2(SA + 2, SA + 3, 12)
            k(f"v_max3_f32 v13, v{SA}, v{SA+1}, v{SA+2}\nv_max_f32 v13, v13, v{SA+3}")
    round2(SA + 4, SA + 5, 12); round2(SA + 6, SA + 7, 12)
    k(f"v_max3_f32 v13, v13, v{SA+4}, v{SA+5}\nv_max3_f32 v12, v13, v{SA+6}, v{SA+7}")
    xg("max", 12, 5)
    for i in range(8): k(f"v_sub_f32 v{SA+i}, v{SA+i}, v12")
    for i in range(8): k(f"v_mul_f32 v{SA+i}, s{sCC}, v{SA+i}")
    for i in range(8): k(f"v_exp_f32 v{SA+i}, v{SA+i}")
    for i in range(8): k(f"v_cvt_pk_bf16_f32 v{PD+i}, v{SA+i}, v{SA+i}")
    stamp(3)
    for i in range(8):
        a = AS + 4 * (i & 3)
        for r in range(4): k(f"v_and_b32 v{a+r}, v{PD+i}, v{8+r}")
        for hf in range(2):
            k(f"s_waitcnt vmcnt({15-(2*i+hf)})")
            k(f"{MF} {V(OAC+4*hf)}, {V(a)}, {V(VB+(i*2+hf)*4)}, {'0' if i == 0 else V(OAC+4*hf)}")
        if i == 0: k(f"v_add_f32 v13, v{SA}, v{SA+1}\nv_add_f32 v5, v{SA+2}, v{SA+3}\nv_add_f32 v50, v{SA+4}, v{SA+5}\nv_add_f32 v51, v{SA+6}, v{SA+7}")
        if i == 1: k("v_add_f32 v13, v13, v5\nv_add_f32 v50, v50, v51\nv_add_f32 v13, v13, v50")
        if i == 2: xg("add", 13, 5)
        if i == 3:
            k(f"""
v_readlane_b32 s{sT0}, v12, 0
v_readlane_b32 s{sT1}, v12, 8
v_readlane_b32 s{sT2}, v13, 0
v_readlane_b32 s{sT3}, v13, 8
""")
        if i == 4:
            k(f"""
v_mov_b32 v{vM}, s{sT0}
v_mov_b32 v{vLs}, s{sT2}
s_mov_b32 exec_lo, 0
v_mov_b32 v{vM}, s{sT1}
v_mov_b32 v{vLs}, s{sT3}
s_mov_b64 exec, -1
""")
    stamp(4)
    k(f"""
s_setprio 3
L_MG:
s_mov_b64 exec, 1
ds_wrxchg_rtn_b32 v12, v{vZ}, v{vZ} offset:{AL_T}
s_mov_b64 exec, -1
s_waitcnt lgkmcnt(0)
v_readfirstlane_b32 s{sT0}, v12
s_cmp_eq_u32 s{sT0}, 0
s_cbranch_scc1 L_MLEAVE
s_and_b32 s{sT1}, s{sT0}, 0xffff
s_lshr_b32 s{sT0}, s{sT0}, 16
s_add_u32 s{sT4}, s{sT4}, s{sT0}
v_add_u32 v12, s{sT1}, v14
v_add_u32 v13, s{sT1}, v15
ds_read_b64 v[60:61], v12 offset:2048
ds_read_b128 v[52:55], v13
ds_read_b128 v[56:59], v13 offset:1024
s_waitcnt lgkmcnt(2)
v_max_f32 v62, v{vM}, v60
v_sub_f32 v63, v{vM}, v62
v_sub_f32 v60, v60, v62
v_mul_f32 v63, s{sCC}, v63
v_mul_f32 v60, s{sCC}, v60
v_exp_f32 v63, v63
v_exp_f32 v60, v60
v_mov_b32 v{vM}, v62
v_mul_f32 v{vLs}, v{vLs}, v63
v_fmac_f32 v{vLs}, v61, v60
""")
    for r in range(8): k(f"v_mul_f32 v{OAC+r}, v{OAC+r}, v63")
    k("s_waitcnt lgkmcnt(0)")
    for r in range(8): k(f"v_fmac_f32 v{OAC+r}, v{52+r}, v60")
    k(f"""
s_cmp_ge_u32 s{sT4}, s{sNT}
s_cbranch_scc1 L_MPUB
""")
    budget_loop("L_MG")
    k(f"""
s_branch L_FIN
L_MLEAVE:
s_mul_i32 s{sT1}, s{sW}, 2560
s_add_u32 s{sT1}, s{sT1}, {AL_O}
v_add_u32 v12, s{sT1}, v14
v_add_u32 v13, s{sT1}, v15
ds_write_b128 v13, {V(OAC)}
ds_write_b128 v13, {V(OAC+4)} offset:1024
ds_write_b64 v12, v[{vM}:{vLs}] offset:2048
s_lshl_b32 s{sT0}, s{sT4}, 16
s_or_b32 s{sT0}, s{sT0}, s{sT1}
v_mov_b32 v13, s{sT0}
s_waitcnt lgkmcnt(0)
s_mov_b64 exec, 1
ds_cmpst_rtn_b32 v12, v{vZ}, v{vZ}, v13 offset:{AL_T}
s_mov_b64 exec, -1
s_waitcnt lgkmcnt(0)
v_readfirstlane_b32 s{sT0}, v12
s_cmp_eq_u32 s{sT0}, 0
s_cbranch_scc1 L_FIN
""")
    budget_loop("L_MG")
    k("s_branch L_FIN")
    k("L_MPUB:")
    k(f"v_rcp_f32 v62, v{vLs}")
    for r in range(8): k(f"v_mul_f32 v{OAC+r}, v{OAC+r}, v62")
    for p in range(4): k(f"v_cvt_pk_bf16_f32 v{52+p}, v{OAC+2*p}, v{OAC+2*p+1}\nv_min_u32 v{52+p}, -2, v{52+p}")
    k(f"""
buffer_store_dwordx4 v[52:55], v15, {S(SRD_WS)}, s{sY0} offen sc1
v_min_u32 v{vM}, -2, v{vM}
v_min_u32 v{vLs}, -2, v{vLs}
s_mov_b32 exec_lo, 1
s_mov_b32 exec_hi, 1
buffer_store_dwordx2 v[{vM}:{vLs}], v6, {S(SRD_WS)}, s{sT5} offen sc1
""")
    stamp(5)
    k("s_branch L_FIN")
    k(f"""
L_DYN:
s_barrier
s_sub_u32 s{sT2}, s{sW}, 8
s_lshl_b32 s{sT2}, s{sT2}, 2
v_mov_b32 v7, s{sT2}
s_lshl_b32 s{sT2}, s{sID}, 7
s_add_u32 s{sT2}, s{sT2}, {WS_CNT}
s_add_u32 s{sX0}, s{P_WS}, s{sT2}
s_addc_u32 s{sX0+1}, s{P_WS+1}, 0
""")
    srd(SRD_B, P_V, 0x8000000)
    k(f"""
L_DW:
s_sleep 2
ds_read_b32 v12, v7 offset:{AL_N}
ds_read_b32 v13, v{vZ} offset:{AL_G}
s_waitcnt lgkmcnt(0)
v_readfirstlane_b32 s{sT4}, v12
v_readfirstlane_b32 s{sT5}, v13
s_cmp_eq_u32 s{sT4}, 2
s_cbranch_scc1 L_END
s_and_b32 s{sT4}, s{sT4}, s{sT5}
s_cbranch_scc1 L_DC
""")
    budget_loop("L_DW")
    k(f"""
s_endpgm
L_DC:
s_mov_b32 s{sT4}, 1
s_atomic_add s{sT4}, s[{sX0}:{sX0+1}], 0 glc
s_waitcnt lgkmcnt(0)
s_add_u32 s{sT4}, s{sT4}, 1
s_cmp_ge_u32 s{sT4}, 8
s_cbranch_scc1 L_DF
s_add_u32 s{sT0}, s{sT4}, 24
s_lshl_b32 s{sT0}, s{sT0}, 14
s_add_u32 s{sT0}, s{sT0}, s{sY0}
s_add_u32 s{sT1}, s{sT0}, 8192
""")
    kv_loads(True)
    k(f"""
s_branch L_KVD
L_DF:
v_mov_b32 v8, 2
v_mov_b32 v9, 2
v_mov_b32 v10, 2
v_mov_b32 v11, 2
ds_write_b128 v{vZ}, v[8:11] offset:{AL_N}
""")
    srd(SRD_WS, P_WS, WS_BYTES)
    for r in range(8): k(f"v_mov_b32 v{OAC+r}, 0")
    adr()
    k(f"v_mov_b32 v{vM}, 0xff800000\nv_mov_b32 v{vLs}, 0\ns_sub_u32 s{sT4}, 12, s{sW}\ns_branch L_MG")

    vSW, vTR, vRW, vL16, vBA = 5, 6, 7, 15, 14
    def svc_setup():
        k("s_waitcnt lgkmcnt(0)")
        stamp_init()
        srd(SRD_WS, P_WS, WS_BYTES); srd(SRD_B, P_DBG, 256)
        k(f"""
v_cmp_lt_u32 s[{sMN}:{sMN+1}], 7, v{vN}
v_lshlrev_b32 v{vL16}, 4, v{vL}
v_bfe_u32 v8, v{vL}, 1, 2
v_bfe_u32 v9, v{vL}, 4, 2
v_xor_b32 v8, v8, v9
v_lshlrev_b32 v8, 5, v8
v_and_b32 v9, 1, v{vL}
v_lshl_add_u32 v{vSW}, v9, 4, v8
s_and_b32 s{sT5}, s{sW}, 3
""")
    def svc_setup2():
        k(f"""
v_bfe_u32 v8, v{vL}, 2, 2
v_lshl_add_u32 v{vTR}, v{vG}, 2, v8        ; 4g + r
v_mul_u32_u24 v{vRW}, 928, v{vTR}
v_and_b32 v8, 3, v{vL}
v_lshl_add_u32 v{vRW}, v8, 4, v{vRW}
v_and_b32 v{vBA}, 7, v{vN}
v_lshlrev_b32 v{vBA}, 4, v{vBA}
v_lshl_add_u32 v{vBA}, v{vG}, 7, v{vBA}
""")
    def code_prefetch(tag, sidx):
        k(f"""
s_getpc_b64 s[{sX0}:{sX0+1}]
L_PC{tag}:
s_sub_u32 s{sX0}, s{sX0}, L_PC{tag}-{KNAME}_kernel
s_subb_u32 s{sX0+1}, s{sX0+1}, 0
v_lshlrev_b32 v12, 7, v{vL}
s_lshl_b32 s{sT0}, s{sidx}, 13
v_add_u32 v12, s{sT0}, v12
v_cmp_gt_u32 vcc, L_CODE_END-{KNAME}_kernel, v12
s_and_b64 exec, exec, vcc
s_cbranch_execz L_NOPF{tag}
global_load_dword v13, v12, s[{sX0}:{sX0+1}]
L_NOPF{tag}:
s_mov_b64 exec, -1
""")
    def dma_tile(srdreg, pitch, scol, buf):
        k(f"""
v_lshrrev_b32 v8, 3, v{vL}
v_mul_u32_u24 v8, {pitch}, v8
v_add_u32 v8, v8, v{vSW}
s_mul_i32 s{sT2}, s{sW}, {56*pitch}
s_add_u32 s{sT2}, s{sT2}, s{scol}
s_mul_i32 s{sT3}, s{sW}, 7168
s_add_u32 s{sT3}, s{sT3}, {buf}
""")
        for i in range(7):
            k(f"s_mov_b32 m0, s{sT3}\nbuffer_load_dwordx4 v8, {S(srdreg)}, s{sT2} offen {NTW} lds")
            if i < 6: k(f"s_add_u32 s{sT2}, s{sT2}, {8*pitch}\ns_add_u32 s{sT3}, s{sT3}, 1024")
    def dma_rows(srdreg, srow, buf):
        k(f"""
s_lshl_b32 s{sT2}, s{sW}, 3
s_mul_i32 s{sT3}, s{sT2}, 928
s_add_u32 s{sT3}, s{sT3}, {buf}
s_add_u32 s{sT2}, s{sT2}, s{srow}
s_mul_i32 s{sT2}, s{sT2}, 896
s_mov_b32 exec_hi, 0x00ffffff
""")
        for i in range(8):
            k(f"s_mov_b32 m0, s{sT3}\nbuffer_load_dwordx4 v{vL16}, {S(srdreg)}, s{sT2} offen {NTW} lds")
            if i < 7: k(f"s_add_u32 s{sT2}, s{sT2}, 896\ns_add_u32 s{sT3}, s{sT3}, 928")
        k("s_mov_b64 exec, -1")
    def frag_tile(dst, vaddr):
        for t in range(14):
            k(f"ds_read_b64_tr_b16 {V(dst+4*t,2)}, v{vaddr} offset:{t*4096}\nds_read_b64_tr_b16 {V(dst+4*t+2,2)}, v{vaddr} offset:{t*4096+2048}")
            if t in (6, 13): k("s_waitcnt lgkmcnt(0)")
    def tile_addr(dst, sq, sbuf):
        k(f"""
v_lshrrev_b32 v8, 1, v{vTR}
v_and_b32 v8, 3, v8
v_xor_b32 v8, s{sq}, v8
v_lshlrev_b32 v8, 5, v8
v_lshl_add_u32 v8, v{vTR}, 7, v8
v_and_b32 v9, 3, v{vL}
v_lshl_add_u32 v8, v9, 3, v8
v_add_u32 v{dst}, {sbuf}, v8
""")
    def frag_rows(dst, buf):
        L = k.newlabel("LFR")
        k(f"s_cmp_ge_u32 s{sW}, 7\ns_cbranch_scc1 {L}")
        k(f"s_lshl_b32 s{sT2}, s{sW}, 7\ns_add_u32 s{sT2}, s{sT2}, {buf}\nv_add_u32 v8, s{sT2}, v{vRW}")
        for T in range(2):
            for q in range(4):
                r = dst + (T * 4 + q) * 4
                qo = (q >> 1) * 64 + (q & 1) * 8
                k(f"ds_read_b64_tr_b16 {V(r,2)}, v8 offset:{T*29696+qo}\nds_read_b64_tr_b16 {V(r+2,2)}, v8 offset:{T*29696+qo+14848}")
            k("s_waitcnt lgkmcnt(0)")
        k(f"{L}:")
    def poll_flag(off, name, sleep=2):
        k(f"""
s_mov_b64 exec, 1
{name}:
buffer_load_dword v9, v{vZ}, {S(SRD_B)}, 0 offen offset:{off} sc1
s_waitcnt vmcnt(0)
v_cmp_eq_u32 vcc, 0, v9
s_cbranch_vccz {name}D
s_sleep {sleep}
""")
        budget_loop(name)
        k(f"{name}D:\ns_mov_b64 exec, -1")
    def ln_stats(X, vmean, vrden):
        k(f"v_add_f32 v8, v{X}, v{X+1}\nv_add_f32 v9, v{X+2}, v{X+3}\nv_add_f32 v12, v{X+4}, v{X+5}\nv_add_f32 v13, v{X+6}, v{X+7}")
        k("v_add_f32 v8, v8, v9\nv_add_f32 v12, v12, v13\nv_add_f32 v8, v8, v12")
        wave_red("add", 8, sT2)
        k(f"v_mov_b32 v12, {f32(1.0/448)}\nv_mul_f32 v{vmean}, s{sT2}, v12")
        for c in range(8):
            k(f"v_sub_f32 v9, v{X+c}, v{vmean}")
            k("v_mul_f32 v8, v9, v9" if c == 0 else "v_fmac_f32 v8, v9, v9")
        k("v_cndmask_b32 v8, 0, v8, vcc")
        wave_red("add", 8, sT2)
        k(f"v_mul_f32 v{vrden}, s{sT2}, v12")
        round2(vmean, vrden, 8)
        k(f"v_add_f32 v{vrden}, {f32(1e-5)}, v{vrden}"); round1(vrden)
        k(f"v_sqrt_f32 v{vrden}, v{vrden}"); round1(vrden)
        k(f"v_rcp_f32 v{vrden}, v{vrden}")
    def chunk_dst(dst):
        k(f"""
v_lshrrev_b32 v11, 2, v{vL}
v_lshlrev_b32 v11, 9, v11
v_and_b32 v12, 1, v{vL}
v_lshl_add_u32 v11, v12, 8, v11
v_bfe_u32 v12, v{vL}, 1, 1
v_lshl_add_u32 v11, v12, 3, v11
s_lshl_b32 s{sT1}, s{sW}, 4
v_add_u32 v{dst}, s{sT1}, v11
""")
    def counter_go(off_c, last, off_go, name):
        k(f"""
s_mov_b32 s{sT1}, 1
s_atomic_add s{sT1}, s[{P_DBG}:{P_DBG+1}], {off_c} glc
s_waitcnt lgkmcnt(0)
s_cmp_lg_u32 s{sT1}, {last}
s_cbranch_scc1 {name}
s_mov_b64 exec, 1
buffer_store_dword v{vONE}, v{vZ}, {S(SRD_B)}, 0 offen offset:{off_go} sc1
s_mov_b64 exec, -1
{name}:
""")

    WF, AF, D0 = 48, 104, 160
    CV, XR, LNV, SAv, CAv = 16, 20, 24, 28, 32
    k("L_CHAIN:")
    svc_setup()
    svc_setup2()
    def tile_mfma(lbase):
        for t in range(14): k(f"ds_read_b128 {V(AF+4*t)}, v{vBA} offset:{lbase+t*512}")
        k(f"""
v_and_b32 v8, 7, v{vN}
v_mul_u32_u24 v8, 144, v8
v_lshl_add_u32 v8, v{vG}, 3, v8
s_lshr_b32 s{sT2}, s{sW}, 2
s_mul_i32 s{sT2}, s{sT2}, 1152
s_lshl_b32 s{sT3}, s{sT5}, 5
s_add_u32 s{sT2}, s{sT2}, s{sT3}
v_add_u32 v8, s{sT2}, v8
""")
        for t in range(14):
            k(f"s_waitcnt lgkmcnt({13-t})")
            k(f"{MF} {V(D0)}, {V(WF+4*t)}, {V(AF+4*t)}, {'0' if t == 0 else V(D0)}")
        k(f"""
v_cvt_pk_bf16_f32 v10, v{D0}, v{D0+1}
v_cvt_pk_bf16_f32 v11, v{D0+2}, v{D0+3}
v_min_u32 v10, -2, v10
v_min_u32 v11, -2, v11
ds_write_b64 v8, v[10:11] offset:{L_T}
s_waitcnt lgkmcnt(0)
""")
    def stage_pub(pitch_shift, soff):
        k(f"""
v_lshrrev_b32 v12, 3, v{vL}
v_mul_u32_u24 v13, 144, v12
v_and_b32 v9, 7, v{vL}
v_lshl_add_u32 v13, v9, 4, v13
s_lshr_b32 s{sT2}, s{sW}, 2
s_mul_i32 s{sT3}, s{sT2}, 1152
v_add_u32 v13, s{sT3}, v13
v_lshlrev_b32 v12, {pitch_shift}, v12
v_lshl_add_u32 v12, v9, 4, v12
ds_read_b128 v[8:11], v13 offset:{L_T}
s_lshl_b32 s{sT2}, s{sT2}, 7
s_add_u32 s{sT2}, s{sT2}, s{soff}
s_waitcnt lgkmcnt(0)
buffer_store_dwordx4 v[8:11], v12, {S(SRD_WS)}, s{sT2} offen sc1
""")

    def spoll(off, name):
        k(f"""
{name}:
s_load_dword s{sT1}, s[{P_DBG}:{P_DBG+1}], {off} glc
s_waitcnt lgkmcnt(0)
s_cmp_lg_u32 s{sT1}, 0
s_cbranch_scc1 {name}D
s_sleep 6
""")
        budget_loop(name)
        k(f"{name}D:")
    k(f"""
s_mul_i32 s{sY0}, s{sID}, 384
s_sub_u32 s{sY0}, s{sY0}, {28*128}         ; first tile column bytes: (14+3(k-14))*128 for k<28
s_lshl_b32 s{sT1}, s{sID}, 8               ;                          (56+2(k-28))*128 for k>=28
s_cmp_ge_u32 s{sID}, 28
s_cselect_b32 s{sY0}, s{sT1}, s{sY0}
s_lshl_b32 s{sY1}, s{sID}, 7
s_cmp_lt_u32 s{sW}, 8
s_cbranch_scc1 L_C8
""")
    srd(SRD_A, P_X, 7168)
    k(f"""
s_setprio 3
s_mul_i32 s{sT1}, s{sT5}, 1792
buffer_load_dwordx4 v[16:19], v{vL16}, {S(SRD_A)}, s{sT1} offen
buffer_load_dwordx4 v[20:23], v{vL16}, {S(SRD_A)}, s{sT1} offen offset:896
""")
    neg1()
    k(f"s_cmp_ge_u32 s{sID}, 7\ns_cbranch_scc1 L_CNP")
    code_prefetch("C", sT5)
    k(f"""
L_CNP:
s_cmp_lt_u32 s{sID}, 14
s_cbranch_scc1 L_CX
s_cmp_eq_u32 s{sW}, 9
s_cbranch_scc1 L_CLQ
s_cmp_lg_u32 s{sW}, 8
s_cbranch_scc1 L_CX
s_cmp_lg_u32 s{sID}, 28
s_cbranch_scc1 L_CX
s_mov_b32 s{sT0}, {WS_MU}
L_CLM:
""")
    for i in range(4): k(f"buffer_store_dwordx4 v[8:11], v{vL16}, {S(SRD_WS)}, s{sT0} offen offset:{i*1024} sc1")
    k(f"""
s_add_u32 s{sT0}, s{sT0}, 4096
s_cmp_lt_u32 s{sT0}, {WS_MU+16384}
s_cbranch_scc1 L_CLM
s_waitcnt vmcnt(0)
s_mov_b64 exec, 1
buffer_store_dword v{vONE}, v{vZ}, {S(SRD_B)}, 0 offen offset:{D_GA} sc1
s_mov_b64 exec, -1
s_branch L_CX
L_CLQ:
s_sub_u32 s{sT0}, s{sID}, 14
s_mul_i32 s{sT0}, s{sT0}, 15360
s_add_u32 s{sT0}, s{sT0}, {WS_Q}
""")
    for i in range(15):
        k(f"buffer_store_dwordx4 v[8:11], v{vL16}, {S(SRD_WS)}, s{sT0} offen offset:{(i&3)*1024} sc1")
        if i & 3 == 3: k(f"s_add_u32 s{sT0}, s{sT0}, 4096")
    k(f"""
s_mov_b32 s{sT1}, 1
s_waitcnt vmcnt(0)
s_atomic_add s{sT1}, s[{P_DBG}:{P_DBG+1}], {D_CC} glc
s_waitcnt lgkmcnt(0)
s_cmp_lg_u32 s{sT1}, 17
s_cbranch_scc1 L_CX
s_mov_b64 exec, 1
buffer_store_dword v{vONE}, v{vZ}, {S(SRD_B)}, 0 offen offset:{D_GQ} sc1
buffer_store_dword v{vONE}, v{vZ}, {S(SRD_B)}, 0 offen offset:{D_GQ+64} sc1
buffer_store_dword v{vONE}, v{vZ}, {S(SRD_B)}, 0 offen offset:{D_GB} sc1
s_mov_b64 exec, -1
L_CX:
s_waitcnt vmcnt(0)
v_cmp_gt_u32 vcc, 56, v{vL}
""")
    for rr in range(2):
        for r in range(4):
            k(f"v_cndmask_b32 v{16+4*rr+r}, 0, v{16+4*rr+r}, vcc")
            unpack(36 + 2 * r, 37 + 2 * r, 16 + 4 * rr + r)
        ln_stats(36, 10, 11)
        for c in range(8): k(f"v_sub_f32 v{36+c}, v{36+c}, v10")
        for p in range(4): round2(36 + 2 * p, 37 + 2 * p, 8)
        for p in range(4):
            k(f"v_mul_f32 v{36+2*p}, v{36+2*p}, v11\nv_mul_f32 v{37+2*p}, v{37+2*p}, v11\nv_cvt_pk_bf16_f32 v{16+4*rr+p}, v{36+2*p}, v{37+2*p}")
    k(f"""
s_cmp_ge_u32 s{sID}, 14
s_cbranch_scc1 L_SGQ
s_cmp_lg_u32 s{sW}, 8
s_cbranch_scc1 L_SGAD
s_branch L_SGA
L_SGQ:
s_sleep 48
""")
    spoll(D_GA, "L_SGA")
    stamp(1)
    k(f"""
s_cmp_ge_u32 s{sID}, 14
s_cbranch_scc1 L_HN
s_barrier            ; c1
s_barrier            ; u1
s_barrier            ; u2
L_HN:
v_lshrrev_b32 v11, 2, v{vL}
v_lshlrev_b32 v11, 9, v11
v_and_b32 v12, 1, v{vL}
v_lshl_add_u32 v11, v12, 8, v11
v_bfe_u32 v12, v{vL}, 1, 1
v_lshl_add_u32 v11, v12, 3, v11
s_lshl_b32 s{sT1}, s{sT5}, 5
v_add_u32 v13, s{sT1}, v11
s_lshl_b32 s{sT0}, s{sT5}, 12
s_add_u32 s{sT0}, s{sT0}, {WS_MU}
s_mov_b32 exec_hi, 0x00ffffff
L_MU:
""")
    for rr in range(2):
        k(f"buffer_load_dwordx4 {V(24+8*rr)}, v{vL16}, {S(SRD_WS)}, s{sT0} offen offset:{rr*2048} sc1")
        k(f"buffer_load_dwordx4 {V(28+8*rr)}, v{vL16}, {S(SRD_WS)}, s{sT0} offen offset:{rr*2048+896} sc1")
    k("s_waitcnt vmcnt(0)")
    sent(range(24, 40), 8)
    retry("L_MU", "s_mov_b64 exec, vcc\ns_sleep 4")
    k("s_mov_b32 exec_lo, -1\ns_mov_b32 exec_hi, 0x00ffffff")
    stamp(4)
    for rr in range(2):
        for p in range(4):
            unpack(8, 9, 28 + 8 * rr + p)
            k("v_add_f32 v8, 1.0, v8\nv_add_f32 v9, 1.0, v9")
            round2(8, 9, 10)
            unpack(10, 11, 16 + 4 * rr + p)
            k("v_mul_f32 v8, v8, v10\nv_mul_f32 v9, v9, v11")
            round2(8, 9, 10)
            unpack(10, 11, 24 + 8 * rr + p)
            k(f"v_add_f32 v8, v8, v10\nv_add_f32 v9, v9, v11\nv_cvt_pk_bf16_f32 v{24+8*rr+p}, v8, v9")
        k(f"ds_write_b64 v13, {V(24+8*rr,2)} offset:{L_H+16*rr}\nds_write_b64 v13, {V(26+8*rr,2)} offset:{L_H+128+16*rr}")
    k("s_mov_b64 exec, -1")
    k(f"s_cmp_lg_u32 s{sW}, 8\ns_cbranch_scc1 L_SGBD")
    spoll(D_GB, "L_SGB")
    k(f"""
s_waitcnt lgkmcnt(0)
s_cmp_lt_u32 s{sID}, 14
s_cbranch_scc1 L_HM
s_barrier            ; c1
s_barrier            ; q1
L_HM:
s_barrier            ; c2
s_cmp_ge_u32 s{sID}, 28
s_cbranch_scc1 L_FIN
""")
    tile_addr(10, sT5, L_A)
    frag_tile(WF, 10)
    tile_mfma(L_H)
    k(f"""
s_barrier            ; c3
s_cmp_lg_u32 s{sW}, 8
s_cbranch_scc1 L_FIN
s_sub_u32 s{sT1}, s{sY1}, 256
s_cmp_lt_u32 s{sID}, 14
s_cselect_b32 s{sT1}, s{sT1}, s{sY0}
s_add_u32 s{sT1}, s{sT1}, {WS_Q}
""")
    stage_pub(13, sT1)
    k("s_barrier            ; c7")
    stamp(6)
    k("s_branch L_FIN")
    k("L_C8:")
    srd(SRD_A, P_C, 7168)
    k(f"s_lshl_b32 s{sT1}, s{sW}, 10\nbuffer_load_dwordx4 {V(CV)}, v{vL16}, {S(SRD_A)}, s{sT1} offen")
    srd(SRD_C, P_WQ, 448 * 8192); srd(SRD_A, P_WM, 448 * 5376)
    k(f"s_cmp_ge_u32 s{sID}, 14\ns_cbranch_scc1 L_R1Q")
    dma_tile(SRD_A, 5376, sY1, L_A)
    k("s_branch L_R1D\nL_R1Q:")
    k(f"""
v_lshrrev_b32 v8, 3, v{vL}
v_lshlrev_b32 v8, 13, v8
v_add_u32 v8, v8, v{vSW}
v_add_u32 v9, 128, v8
s_mul_i32 s{sT2}, s{sW}, {56*8192}
s_add_u32 s{sT2}, s{sT2}, s{sY0}
s_mul_i32 s{sT3}, s{sW}, 7168
s_add_u32 s{sT1}, s{sT3}, {L_B}
s_add_u32 s{sT3}, s{sT3}, {L_A}
""")
    for i in range(7):
        k(f"s_mov_b32 m0, s{sT3}\nbuffer_load_dwordx4 v8, {S(SRD_C)}, s{sT2} offen {NTW} lds")
        k(f"s_mov_b32 m0, s{sT1}\nbuffer_load_dwordx4 v9, {S(SRD_C)}, s{sT2} offen {NTW} lds")
        L = k.newlabel("LT3")
        k(f"s_cmp_ge_u32 s{sID}, 28\ns_cbranch_scc1 {L}")
        k(f"buffer_load_dwordx4 {V(AF+4*i)}, v8, {S(SRD_C)}, s{sT2} offen offset:256 {NTW}\n{L}:")
        if i < 6: k(f"s_add_u32 s{sT2}, s{sT2}, {8*8192}\ns_add_u32 s{sT3}, s{sT3}, 1024\ns_add_u32 s{sT1}, s{sT1}, 1024")
    k("L_R1D:")
    k("s_waitcnt vmcnt(7)")
    stamp(1)
    k(f"s_cmp_eq_u32 s{sW}, 7\ns_cbranch_scc1 L_NOSILU")
    k(f"s_mov_b32 s{sT3}, {f32(-LOG2E)}")
    for r in range(4):
        unpack(8, 9, CV + r)
        k(f"""
v_mul_f32 v10, s{sT3}, abs(v8)
v_mul_f32 v11, s{sT3}, abs(v9)
v_exp_f32 v10, v10
v_exp_f32 v11, v11
v_add_f32 v12, 1.0, v10
v_add_f32 v13, 1.0, v11
v_rcp_f32 v12, v12
v_rcp_f32 v13, v13
v_mul_f32 v10, v10, v12                    ; sigmoid(-|x|)
v_mul_f32 v11, v11, v13
v_max_f32 v12, 0, v8
v_max_f32 v13, 0, v9
v_fma_f32 v8, -abs(v8), v10, v12
v_fma_f32 v9, -abs(v9), v11, v13
v_cvt_pk_bf16_f32 v{CV+r}, v8, v9
""")
    k(f"""
s_lshl_b32 s{sT1}, s{sW}, 6
v_add_u32 v8, s{sT1}, v{vL}
v_mul_u32_u24 v9, 1171, v8
v_lshrrev_b32 v9, 16, v9                   ; m
v_mul_u32_u24 v10, 56, v9
v_sub_u32 v10, v8, v10                     ; cc
v_lshrrev_b32 v11, 2, v10
v_lshlrev_b32 v11, 9, v11
v_lshl_add_u32 v11, v9, 4, v11
v_and_b32 v12, 1, v10
v_lshl_add_u32 v11, v12, 8, v11
v_bfe_u32 v12, v10, 1, 1
v_lshl_add_u32 v11, v12, 3, v11
ds_write_b64 v11, {V(CV,2)} offset:{L_SC}
ds_write_b64 v11, {V(CV+2,2)} offset:{L_SC+128}
L_NOSILU:
""")
    k("s_waitcnt vmcnt(0) lgkmcnt(0)\ns_barrier            ; c1")
    stamp(2)
    def frag_ab():
        k(f"s_mov_b32 s{sT1}, {L_B}\ns_cmp_lt_u32 s{sW}, 4\ns_cselect_b32 s{sT1}, {L_A}, s{sT1}")
        tile_addr(10, sT5, f"s{sT1}")
        frag_tile(WF, 10)
    k(f"s_cmp_ge_u32 s{sID}, 14\ns_cbranch_scc1 L_CQ")
    k(f"s_cmp_ge_u32 s{sW}, 4\ns_cbranch_scc1 L_U1")
    frag_ab()
    tile_mfma(L_SC)
    k("L_U1:\ns_barrier            ; u1")
    k(f"s_cmp_lg_u32 s{sW}, 0\ns_cbranch_scc1 L_U2")
    k(f"s_add_u32 s{sT1}, s{sY1}, {WS_MU}")
    stage_pub(11, sT1)
    stamp(3)
    k("L_U2:\ns_barrier            ; u2")
    dma_tile(SRD_C, 8192, sY1, L_A)
    k("s_waitcnt vmcnt(0)\ns_barrier            ; c2\ns_barrier            ; c3\ns_branch L_CLZ")
    k("L_CQ:")
    frag_ab()
    k(f"s_barrier            ; q1\ns_mul_i32 s{sT2}, s{sW}, 7168\ns_add_u32 s{sT2}, s{sT2}, {L_A}\nv_add_u32 v8, s{sT2}, v{vL16}")
    for i in range(7): k(f"ds_write_b128 v8, {V(AF+4*i)} offset:{i*1024}")
    k("s_waitcnt lgkmcnt(0)\ns_barrier            ; c2")
    tile_mfma(L_H)
    k("s_barrier            ; c3")
    k(f"s_cmp_lg_u32 s{sT5}, 0\ns_cbranch_scc1 L_CQ2")
    k(f"s_add_u32 s{sT1}, s{sY0}, {WS_Q}")
    stage_pub(13, sT1)
    stamp(5)
    k(f"L_CQ2:\ns_cmp_ge_u32 s{sID}, 28\ns_cbranch_scc1 L_FIN")
    k("L_CLZ:\ns_barrier            ; c7")
    k(f"s_add_u32 s{sT1}, s{sY1}, {14*128}")
    dma_tile(SRD_A, 5376, sT1, L_B)
    k("s_waitcnt vmcnt(0)\ns_barrier            ; c8")
    k(f"s_cmp_lt_u32 s{sW}, 4\ns_cbranch_scc1 L_FIN")
    frag_ab()
    tile_mfma(L_SC)
    k("s_barrier            ; c9")
    k(f"s_cmp_lg_u32 s{sW}, 4\ns_cbranch_scc1 L_FIN")
    k(f"s_add_u32 s{sT1}, s{sY1}, {WS_M-128}")
    stage_pub(12, sT1)
    k("s_waitcnt vmcnt(0)")
    counter_go(D_CM, 27, D_GM, "L_CG1")
    stamp(7)
    k("s_branch L_FIN")

    FW, F2, F13 = 16, 80, 16
    k("L_TAILWG:")
    if o.get("x_notw"): k("s_endpgm")
    svc_setup()
    k(f"s_mov_b32 s{sMODE}, 0\ns_cmp_lt_u32 s{sW}, 8\ns_cbranch_scc1 L_T8")
    neg1()
    k(f"""
s_sub_u32 s{sT5}, s{sW}, 8
s_cmp_lg_u32 s{sW}, 10
s_cbranch_scc1 L_TC3
s_setprio 3
s_getreg_b32 s{sT1}, hwreg(HW_REG_XCC_ID, 0, 4)
s_mul_i32 s{sT2}, s{sT1}, s{sT1}
s_lshl_b32 s{sT2}, s{sT2}, 16
s_lshl_b32 s{sT1}, s{sT1}, 6
s_add_u32 s{sT2}, s{sT2}, s{sT1}
s_add_u32 s{sT2}, s{sT2}, 1                ; 1 | x<<6 | x^2<<16
v_mov_b32 v12, s{sT2}
s_mov_b64 exec, 1
buffer_atomic_add v12, v{vZ}, {S(SRD_B)}, 0 offen offset:{D_XC} sc0 sc1
s_waitcnt vmcnt(0)
v_readfirstlane_b32 s{sT1}, v12
s_add_u32 s{sT1}, s{sT1}, s{sT2}
s_and_b32 s{sT2}, s{sT1}, 63
s_cmp_lg_u32 s{sT2}, 32
s_cbranch_scc1 L_TC5
s_bfe_u32 s{sT2}, s{sT1}, 0xa0006
s_mul_i32 s{sT2}, s{sT2}, s{sT2}
s_lshr_b32 s{sT1}, s{sT1}, 16
s_lshl_b32 s{sT1}, s{sT1}, 5
s_cmp_eq_u32 s{sT1}, s{sT2}
s_cselect_b32 s{sT1}, {2 if o.get("slow") else 1}, 2
v_mov_b32 v12, s{sT1}
buffer_store_dword v12, v{vZ}, {S(SRD_B)}, 0 offen offset:{D_MODE} sc1
L_TC5:
s_mov_b64 exec, -1
s_setprio 0
L_TC3:
s_cmp_lg_u32 s{sID}, 31
s_cbranch_scc1 L_T9
""")
    code_prefetch("T", sT5)
    k(f"""
s_branch L_T9
L_T8:
""")
    srd(SRD_C, P_WO, 4096 * 896)
    k(f"""
v_lshrrev_b32 v8, 3, v{vL}
v_mul_u32_u24 v8, 896, v8
v_add_u32 v8, v8, v{vSW}
v_add_u32 v9, 128, v8
s_lshr_b32 s{sT1}, s{sID}, 2
s_lshl_b32 s{sT1}, s{sT1}, 9
s_lshl_b32 s{sT2}, s{sW}, 5
s_add_u32 s{sT1}, s{sT1}, s{sT2}
s_mul_i32 s{sT1}, s{sT1}, 896
s_and_b32 s{sT0}, s{sID}, 3
s_lshl_b32 s{sT2}, s{sT0}, 8
s_add_u32 s{sT2}, s{sT2}, s{sT1}
s_lshl_b32 s{sT3}, s{sW}, 12
s_add_u32 s{sT3}, s{sT3}, {L_A}
s_cmp_lg_u32 s{sT0}, 3
s_cbranch_scc1 L_WX
v_mov_b32 v9, v8
L_WX:
""")
    for i in range(8):
        k(f"s_mov_b32 m0, s{sT3}\nbuffer_load_dwordx4 v8, {S(SRD_C)}, s{sT2} offen {NTW} lds")
        k(f"s_add_u32 s{sT1}, s{sT3}, 32768\ns_mov_b32 m0, s{sT1}\nbuffer_load_dwordx4 v9, {S(SRD_C)}, s{sT2} offen {NTW} lds")
        if i == 3: k(f"s_add_u32 s{sT2}, s{sT2}, {(256-24)*896}\ns_sub_u32 s{sT3}, s{sT3}, {L_A-L_B+3*1024}")
        elif i < 7: k(f"s_add_u32 s{sT2}, s{sT2}, {8*896}\ns_add_u32 s{sT3}, s{sT3}, 1024")
    k("L_T9:")
    svc_setup2()
    isF = f"s_cmp_ge_u32 s{sID}, 28"
    def frag_wo(dst, buf):
        L = k.newlabel("LFW")
        k(f"s_cmp_ge_u32 s{sW}, 8\ns_cbranch_scc1 {L}")
        k(f"s_lshr_b32 s{sT2}, s{sW}, 2\ns_lshl_b32 s{sT2}, s{sT2}, 15\ns_add_u32 s{sT2}, s{sT2}, {buf}")
        tile_addr(10, sT5, f"s{sT2}")
        for T in range(8):
            k(f"ds_read_b64_tr_b16 {V(dst+4*T,2)}, v10 offset:{T*4096}\nds_read_b64_tr_b16 {V(dst+4*T+2,2)}, v10 offset:{T*4096+2048}")
            if T in (3, 7): k("s_waitcnt lgkmcnt(0)")
        k(f"{L}:")
    def if_loader(fn):
        L = k.newlabel("LL")
        k(f"s_cmp_ge_u32 s{sW}, 8\ns_cbranch_scc1 {L}\n{isF}\ns_cbranch_scc1 {L}")
        fn()
        k(f"{L}:")
    k("s_waitcnt vmcnt(8)\ns_barrier            ; t1")
    stamp(1)
    frag_wo(FW, L_A)
    k("s_barrier            ; t2")
    def ld_w2():
        srd(SRD_A, P_W2, 1792 * 896)
        k(f"s_lshl_b32 s{sT1}, s{sID}, 6")
        dma_rows(SRD_A, sT1, L_A)
        k("s_waitcnt vmcnt(8)\ns_branch L_T10")
    if_loader(ld_w2)
    k("s_waitcnt vmcnt(0)\nL_T10:\ns_barrier            ; t3")
    stamp(2)
    frag_wo(FW + 32, L_B)
    k("s_barrier            ; t4")
    def ld_w1():
        srd(SRD_A, P_W1, 448 * 3584)
        k(f"s_lshl_b32 s{sT1}, s{sID}, 7")
        dma_tile(SRD_A, 3584, sT1, L_B)
        k("s_waitcnt vmcnt(7)\ns_branch L_T14")
    if_loader(ld_w1)
    k(f"s_cmp_lt_u32 s{sW}, 8\ns_cbranch_scc1 L_T11\ns_cmp_eq_u32 s{sW}, 11\ns_cbranch_scc1 L_T11")
    poll_flag(D_MODE, "L_PM", sleep=4)
    k(f"v_readfirstlane_b32 s{sMODE}, v9\n{isF}\ns_cbranch_scc1 L_T11")
    neg1()
    k(f"""
s_cmp_eq_u32 s{sW}, 10
s_cbranch_scc1 L_T12
s_mul_i32 s{sT0}, s{sID}, 4352
s_add_u32 s{sT0}, s{sT0}, {WS_PA}
s_add_u32 s{sT1}, s{sT0}, 8192
s_cmp_eq_u32 s{sW}, 8
s_cbranch_scc1 L_T13
s_mul_i32 s{sT0}, s{sID}, 8448
s_add_u32 s{sT0}, s{sT0}, {WS_PB}
s_add_u32 s{sT1}, s{sT0}, 12288
L_T13:
""")
    lstore([f"buffer_store_dwordx4 v[8:11], v{vL16}, {S(SRD_WS)}, s{sT0} offen offset:{i*1024}" for i in range(4)])
    k(f"""
s_add_u32 s{sT0}, s{sT0}, 4096
s_cmp_lt_u32 s{sT0}, s{sT1}
s_cbranch_scc1 L_T13
s_branch L_T11
L_T12:
s_cmp_ge_u32 s{sID}, 8
s_cbranch_scc1 L_T11
s_lshl_b32 s{sT0}, s{sID}, 10
s_add_u32 s{sT0}, s{sT0}, {WS_X1}
""")
    lstore([f"buffer_store_dwordx4 v[8:11], v{vL16}, {S(SRD_WS)}, s{sT0} offen"])
    k("L_T11:")
    k("s_waitcnt vmcnt(0)\nL_T14:\ns_barrier            ; t5")
    stamp(3)
    k(f"s_cmp_lg_u32 s{sW}, 8\ns_cbranch_scc1 L_T15")
    counter_go(D_CB, 31, D_GO2, "L_CG2")
    k("L_T15:")
    k(f"{isF}\ns_cbranch_scc1 L_T16")
    frag_rows(F2, L_A)
    k("L_T16:\ns_barrier            ; t6")
    def ld_w3():
        srd(SRD_A, P_W3, 448 * 3584)
        k(f"s_lshl_b32 s{sT1}, s{sID}, 7")
        dma_tile(SRD_A, 3584, sT1, L_A)
    if_loader(ld_w3)
    k(f"s_cmp_lg_u32 s{sW}, 8\ns_cbranch_scc1 L_T17")
    poll_flag(D_GO2, "L_G1", sleep=8)
    poll_flag(D_GB, "L_G1B", sleep=8)
    k(f"v_mov_b32 v9, s{sMODE}\nds_write_b32 v{vZ}, v9 offset:{L_T}")
    k("L_T17:\ns_waitcnt vmcnt(0) lgkmcnt(0)\ns_barrier            ; t7")
    stamp(4)
    if o.get("x_notail"): k("s_branch L_FIN")
    k(f"ds_read_b32 v9, v{vZ} offset:{L_T}\ns_waitcnt lgkmcnt(0)\nv_readfirstlane_b32 s{sMODE}, v9")
    srd(SRD_A, P_X, 7168); srd(SRD_C, P_OUT, 7168)
    k(f"v_lshlrev_b32 v13, 1, v{vL}\ns_mov_b32 s{sY0}, 0\ns_mov_b32 s{sY1}, 0\ns_mov_b32 s{sT4}, 0")
    MC, MS = 160, 164
    vGA, vGB, vXX, vX1 = 152, 154, 156, 158
    vOAW, vST = 152, 153
    k(f"""
v_mov_b32 v{vST}, 0
v_mov_b32 v12, 0
s_cmp_ge_u32 s{sW}, 8
s_cbranch_scc1 L_T21
v_lshrrev_b32 v8, 5, v{vL}
v_lshlrev_b32 v12, 3, v8                   ; ML: h*8
v_lshlrev_b32 v8, 12, v8                   ; 8h*512
v_lshrrev_b32 v9, 2, v{vN}
v_lshl_add_u32 v8, v9, 9, v8               ; (n>>2)*512
v_and_b32 v9, 1, v{vN}
v_lshl_add_u32 v8, v9, 8, v8               ; 2(n&1)*128
v_and_b32 v9, 1, v{vG}
v_lshl_add_u32 v8, v9, 7, v8               ; (gq&1)*128
v_bfe_u32 v9, v{vN}, 1, 1
v_lshl_add_u32 v8, v9, 3, v8               ; half*8
s_lshl_b32 s{sT1}, s{sW}, 4
v_add_u32 v{vOAW}, s{sT1}, v8
v_lshrrev_b32 v8, 1, v{vG}
v_mul_u32_u24 v8, 2176, v8
v_and_b32 v9, 1, v{vG}
v_lshl_add_u32 v8, v9, 10, v8
v_lshl_add_u32 v{vST}, v{vN}, 4, v8
s_lshr_b32 s{sKVH}, s{sID}, 2
s_mul_i32 s{sT0}, s{sKVH}, 24576
s_mul_i32 s{sT1}, s{sW}, 3072
s_add_u32 s{sT0}, s{sT0}, s{sT1}
s_add_u32 s{sT0}, s{sT0}, {WS_O}
s_lshl_b32 s{sT1}, s{sKVH}, 9
s_lshl_b32 s{sT2}, s{sW}, 6
s_add_u32 s{sT1}, s{sT1}, s{sT2}
s_add_u32 s{sT1}, s{sT1}, {WS_ML}
s_mov_b32 s{sNT}, 7
s_and_b32 s{sY0}, s{sID}, 3
s_lshl_b32 s{sY0}, s{sY0}, 4
s_lshl_b32 s{sT2}, s{sW}, 1
s_add_u32 s{sY0}, s{sY0}, s{sT2}
s_mov_b32 s{sY1}, s{sY0}                   ; first task of this wave (>= 56: no wo block)
s_mul_i32 s{sY0}, s{sY0}, 2176
s_lshl_b32 s{sT2}, s{sKVH}, 7
s_add_u32 s{sY0}, s{sY0}, s{sT2}
s_add_u32 s{sY0}, s{sY0}, {WS_PA}
""")
    k("s_branch L_AL0\nL_T21:")
    def frag13():
        k(f"""
s_sub_u32 s{sT2}, s{sW}, 8
v_lshrrev_b32 v8, 1, v{vTR}
v_and_b32 v8, 3, v8
v_xor_b32 v8, s{sT2}, v8
v_lshlrev_b32 v8, 5, v8
v_lshl_add_u32 v8, v{vTR}, 7, v8
v_and_b32 v9, 1, v{vL}
v_lshl_add_u32 v8, v9, 3, v8
v_bfe_u32 v9, v{vL}, 1, 1
v_mul_u32_u24 v9, {L_A-L_B}, v9
v_add_u32 v8, v8, v9
v_add_u32 v10, {L_B}, v8
v_add_u32 v11, 16, v10
""")
        frag_tile(F13, 10); frag_tile(F13 + 56, 11)
    frag13()
    k(f"{isF}\ns_cbranch_scc1 L_T22\ns_cmp_eq_u32 s{sW}, 11\ns_cbranch_scc1 L_PAD0")
    k(f"""
s_mul_i32 s{sT0}, s{sID}, 8448
s_add_u32 s{sT0}, s{sT0}, {WS_PB}
s_mul_i32 s{sT1}, s{sID}, 4352
s_add_u32 s{sT1}, s{sT1}, {WS_PA}
s_cmp_eq_u32 s{sW}, 9
s_cselect_b32 s{sT0}, s{sT1}, s{sT0}
s_cmp_eq_u32 s{sW}, 10
s_cselect_b32 s{sT0}, {WS_X1}, s{sT0}
v_lshlrev_b32 v8, 7, v{vL}
buffer_load_dword v128, v8, {S(SRD_WS)}, s{sT0} offen sc1
""")
    if not o.get("x_nom"): poll_flag(D_GM, "L_PGMM", sleep=8)
    k(f"s_cmp_lg_u32 s{sW}, 10\ns_cbranch_scc1 L_T23")
    k(f"s_mov_b32 exec_hi, 0x00ffffff\ns_mov_b32 s{sT0}, {WS_M+896}\ns_mov_b32 s{sT1}, {WS_M+1792}")
    for bb in range(8):
        k(f"s_mov_b32 m0, {L_MS+bb*896}\nbuffer_load_dwordx4 v{vL16}, {S(SRD_WS)}, s{sT0} offen sc1 lds")
        k(f"s_mov_b32 m0, {L_MC+bb*896}\nbuffer_load_dwordx4 v{vL16}, {S(SRD_WS)}, s{sT1} offen sc1 lds")
        if bb < 7: k(f"s_add_u32 s{sT0}, s{sT0}, 4096\ns_add_u32 s{sT1}, s{sT1}, 4096")
    k("s_waitcnt vmcnt(0)")
    k("s_mov_b64 exec, -1\ns_branch L_T22")
    k(f"""
L_T23:
s_lshl_b32 s{sT4}, s{sID}, 1
s_add_u32 s{sT4}, s{sT4}, s{sW}
s_sub_u32 s{sT4}, s{sT4}, 8                ; task
s_lshl_b32 s{sY0}, s{sT4}, 4
s_add_u32 s{sT1}, s{sY0}, {WS_M}
s_add_u32 s{sY1}, s{sY0}, {WS_X1}
v_and_b32 v8, 7, v{vL}
v_lshlrev_b32 v9, 2, v{vG}
v_lshl_add_u32 v10, v8, 12, v9             ; M : b*4096 + pair*4
v_lshl_add_u32 v12, v8, 10, v9             ; X1: b*1024 + pair*4
v_mul_u32_u24 v13, 896, v8
v_add_u32 v13, v13, v9
buffer_load_dword v{vGA}, v10, {S(SRD_WS)}, s{sT1} offen sc1
buffer_load_dword v{vGB}, v10, {S(SRD_WS)}, s{sT1} offen offset:2688 sc1
buffer_load_dword v{vXX}, v13, {S(SRD_A)}, s{sY0} offen
""")
    k("s_waitcnt vmcnt(0)")
    for r in (vGA, vGB, vXX): k(f"v_and_b32 v{r+1}, 0xffff0000, v{r}\nv_lshlrev_b32 v{r}, 16, v{r}")
    k("L_T22:\ns_setprio 3\ns_branch L_TB1")
    OG = 112
    k(".p2align 12\nL_AL0:")
    stamp(8)
    k("L_AL:")
    for sp in range(3):
        L = k.newlabel("LA"); g0 = OG + 6 * sp
        k(f"s_bitcmp1_b32 s{sNT}, {sp}\ns_cbranch_scc0 {L}")
        k(f"buffer_load_dwordx2 {V(g0+4,2)}, v12, {S(SRD_WS)}, s{sT1} offen offset:{sp*16} sc1")
        k(f"buffer_load_dwordx4 {V(g0)}, v{vL16}, {S(SRD_WS)}, s{sT0} offen offset:{sp*1024} sc1")
        k(f"{L}:")
    k(f"s_waitcnt vmcnt(0)")
    for sp in range(3):
        L = k.newlabel("LA"); g0 = OG + 6 * sp
        k(f"s_bitcmp1_b32 s{sNT}, {sp}\ns_cbranch_scc0 {L}")
        sent(range(g0, g0 + 6), 8)
        k(f"s_cbranch_vccnz {L}\ns_bitset0_b32 s{sNT}, {sp}\n{L}:")
    k(f"s_cmp_eq_u32 s{sNT}, 0\ns_cbranch_scc1 L_ALD\ns_cmp_lg_u32 s{sNT}, 7\ns_cbranch_scc1 L_ALS\ns_sleep {o.get('asleep', 8)}\nL_ALS:")
    budget_loop("L_AL")
    k("L_ALD:\ns_setprio 3")
    stamp(9)
    def mm(sp): return OG + 6 * sp + 4
    AC = 132
    k(f"v_max3_f32 v8, v{mm(0)}, v{mm(1)}, v{mm(2)}")
    for sp in range(3): k(f"v_sub_f32 v{mm(sp)}, v{mm(sp)}, v8")
    for sp in range(3): k(f"v_mul_f32 v{mm(sp)}, s{sCC}, v{mm(sp)}")
    for sp in range(3): k(f"v_exp_f32 v{mm(sp)}, v{mm(sp)}")
    for r in range(4): unpack(AC + 2 * r, AC + 2 * r + 1, OG + r)
    for sp in range(3): k(f"v_mul_f32 v{mm(sp)}, v{mm(sp)}, v{mm(sp)+1}")
    k(f"v_add_f32 v8, v{mm(0)}, v{mm(1)}\nv_add_f32 v8, v8, v{mm(2)}\nv_rcp_f32 v8, v8")
    for r in range(4): unpack(AC + 8 + 2 * r, AC + 9 + 2 * r, OG + 6 + r)
    for sp in range(3): k(f"v_mul_f32 v{mm(sp)}, v{mm(sp)}, v8")
    for r in range(8): k(f"v_mul_f32 v{AC+r}, v{AC+r}, v{mm(0)}")
    for r in range(8): k(f"v_fmac_f32 v{AC+r}, v{AC+8+r}, v{mm(1)}")
    for r in range(4): unpack(AC + 8 + 2 * r, AC + 9 + 2 * r, OG + 12 + r)
    for r in range(8): k(f"v_fmac_f32 v{AC+r}, v{AC+8+r}, v{mm(2)}")
    for p in range(4): k(f"v_cvt_pk_bf16_f32 v{OG+12+p}, v{AC+2*p}, v{AC+2*p+1}")
    k(f"""
ds_write_b64 v{vOAW}, {V(OG+12,2)} offset:{L_OA}
ds_write_b64 v{vOAW}, {V(OG+14,2)} offset:{L_OA+2048}
s_waitcnt lgkmcnt(0)
""")
    k("L_TB1:\ns_barrier            ; T1")
    k(f"s_cmp_ge_u32 s{sW}, 8\ns_cbranch_scc1 L_WOD\ns_cmp_ge_u32 s{sY1}, 56\ns_cbranch_scc1 L_WOD")
    ACT = [112 + 4 * i for i in range(8)]
    for T in range(8): k(f"ds_read_b128 {V(ACT[T])}, v{vBA} offset:{L_OA+T*512}")
    for T in range(16):
        k(f"s_waitcnt lgkmcnt({min(7, 15-T)})")
        k(f"{MF} v[144:147], {V(FW+4*T)}, {V(ACT[T%8])}, {'0' if T == 0 else 'v[144:147]'}")
        if T < 8: k(f"ds_read_b128 {V(ACT[T])}, v{vBA} offset:{L_OA+(T+8)*512}")
    for r in range(4): k(f"v_min_u32 v{144+r}, -2, v{144+r}")
    k(f"s_andn2_b64 exec, exec, s[{sMN}:{sMN+1}]")
    lstore([f"buffer_store_dwordx4 v[144:147], v{vST}, {S(SRD_WS)}, s{sY0} offen"])
    k("s_mov_b64 exec, -1\nL_WOD:")
    stamp(10)
    k(f"{isF}\ns_cbranch_scc1 L_FIN")
    k(f"s_cmp_lt_u32 s{sW}, 8\ns_cbranch_scc1 L_B2S\ns_cmp_ge_u32 s{sW}, 10\ns_cbranch_scc1 L_TB3")
    k(f"""
L_B1S:
s_mul_i32 s{sT0}, s{sT4}, 2176
s_add_u32 s{sT0}, s{sT0}, {WS_PA}
s_setprio 0
L_B1:
buffer_load_dwordx4 v[136:139], v{vL16}, {S(SRD_WS)}, s{sT0} offen sc1
buffer_load_dwordx4 v[140:143], v{vL16}, {S(SRD_WS)}, s{sT0} offen offset:1024 sc1
s_waitcnt vmcnt(0)
""")
    sent(range(136, 144), 8)
    retry("L_B1", "s_mov_b64 exec, vcc" + (f"\ns_sleep {o['r1']}" if o.get("r1") else ""))
    k("s_setprio 3\ns_mov_b64 exec, -1")
    stamp(11)
    def fold8(a):
        for r in range(4): k(f"v_permlane32_swap_b32 v{a+r}, v{a+4+r}")
        k(f"v_pk_add_f32 {V(a,2)}, {V(a,2)}, {V(a+4,2)}\nv_pk_add_f32 {V(a+2,2)}, {V(a+2,2)}, {V(a+6,2)}")
        k(f"v_permlane16_swap_b32 v{a}, v{a+2}\nv_permlane16_swap_b32 v{a+1}, v{a+3}\nv_pk_add_f32 {V(a,2)}, {V(a,2)}, {V(a+2,2)}")
        k(f"v_add_f32_dpp v{a}, v{a}, v{a} row_ror:8 row_mask:0xf bank_mask:0xf\nv_add_f32_dpp v{a+1}, v{a+1}, v{a+1} row_ror:8 row_mask:0xf bank_mask:0xf")
    fold8(136)
    round2(136, 137, 8)
    k(f"v_pk_mul_f32 v[136:137], v[136:137], {V(vGA,2)}")
    round2(136, 137, 8)
    k(f"""
v_pk_add_f32 v[136:137], v[136:137], {V(vXX,2)}
v_cvt_pk_bf16_f32 v138, v136, v137
v_min_u32 v138, -2, v138
s_andn2_b64 exec, exec, s[{sMN}:{sMN+1}]
""")
    lstore([f"buffer_store_dword v138, v12, {S(SRD_WS)}, s{sY1} offen"])
    k("s_mov_b64 exec, -1")
    stamp(12)
    unpack(vX1, vX1 + 1, 138)
    k("s_branch L_TB3")
    Y = 128
    k("L_PAD0:\ns_branch L_PAD1\nL_B2S:")
    chunk_dst(144)
    k(f"""
s_lshl_b32 s{sT0}, s{sW}, 10
s_add_u32 s{sT0}, s{sT0}, {WS_X1}
v_mov_b32 v136, 0
v_mov_b32 v137, 0
v_mov_b32 v138, 0
v_mov_b32 v139, 0
v_mov_b32 v145, 0x3f803f80
v_mov_b32 v146, {f32(1.0/448)}
s_mul_i32 s{sT3}, s{sW}, 896
s_add_u32 s{sT3}, s{sT3}, {L_MC}
v_add_u32 v8, s{sT3}, v{vL16}
v_add_u32 v9, {L_MS-L_MC}, v8
ds_read_b128 {V(MC)}, v8
ds_read_b128 {V(MS)}, v9
s_waitcnt lgkmcnt(0)
""")
    CU_, SU_ = 16, 24
    for r in range(4):
        unpack(CU_ + 2 * r, CU_ + 2 * r + 1, MC + r)
        k(f"v_add_f32 v{CU_+2*r}, 1.0, v{CU_+2*r}\nv_add_f32 v{CU_+2*r+1}, 1.0, v{CU_+2*r+1}")
        round2(CU_ + 2 * r, CU_ + 2 * r + 1, 8)
        unpack(SU_ + 2 * r, SU_ + 2 * r + 1, MS + r)
    k(f"""
s_mov_b32 exec_hi, 0x00ffffff
s_setprio 0
L_B2:
buffer_load_dwordx4 v[136:139], v{vL16}, {S(SRD_WS)}, s{sT0} offen sc1
s_waitcnt vmcnt(0)
v_max3_u32 v8, v136, v137, v138
v_max_u32 v8, v8, v139
v_cmp_eq_u32 vcc, -1, v8
""")
    retry("L_B2", "s_mov_b64 exec, vcc" + (f"\ns_sleep {o['r2']}" if o.get("r2") else ""))
    k("s_setprio 3\ns_mov_b64 exec, -1")
    stamp(13)
    k("v_dot2_f32_bf16 v8, v136, v145, 0\nv_dot2_f32_bf16 v9, v136, v136, 0")
    for r in range(1, 4): k(f"v_dot2_f32_bf16 v8, v{136+r}, v145, v8\nv_dot2_f32_bf16 v9, v{136+r}, v{136+r}, v9")
    unpack(Y, Y + 1, 136); unpack(Y + 2, Y + 3, 137)
    steps = [f"row_shr:{sh} row_mask:0xf bank_mask:0xf bound_ctrl:0" for sh in (1, 2, 4, 8)] + ["row_bcast:15 row_mask:0xa bank_mask:0xf", "row_bcast:31 row_mask:0xc bank_mask:0xf"]
    fill = [f"v_lshlrev_b32 v{Y+4}, 16, v138", f"v_and_b32 v{Y+5}, 0xffff0000, v138", f"v_lshlrev_b32 v{Y+6}, 16, v139", f"v_and_b32 v{Y+7}, 0xffff0000, v139"]
    for i, m in enumerate(steps):
        k(f"v_add_f32_dpp v8, v8, v8 {m}\nv_add_f32_dpp v9, v9, v9 {m}")
        if i < 4: k(fill[i])
    k(f"""
v_readlane_b32 s{sT1}, v8, 63
v_readlane_b32 s{sT2}, v9, 63
v_mul_f32 v10, s{sT1}, v146
v_mul_f32 v11, s{sT2}, v146
v_fma_f32 v11, -v10, v10, v11
v_max_f32 v11, 0, v11
""")
    round2(10, 11, 8)
    k(f"v_add_f32 v11, {f32(1e-5)}, v11")
    R = o.get("lnround", 0)
    seq = ["v_cvt_pk_bf16_f32 v11, v11, v11", "v_lshlrev_b32 v11, 16, v11", "v_sqrt_f32 v11, v11", "", "v_cvt_pk_bf16_f32 v11, v11, v11", "v_lshlrev_b32 v11, 16, v11", "v_rcp_f32 v11, v11", ""]
    for c in range(8):
        k(f"v_sub_f32 v{Y+c}, v{Y+c}, v10")
        if seq[c]: k(seq[c])
    if R:
        for p in range(4): round2(Y + 2 * p, Y + 2 * p + 1, 8)
    for c in range(8): k(f"v_mul_f32 v{Y+c}, v{Y+c}, v11")
    if R:
        for p in range(4): round2(Y + 2 * p, Y + 2 * p + 1, 8)
        for c in range(8): k(f"v_mul_f32 v{Y+c}, v{Y+c}, v{CU_+c}")
        for p in range(4): round2(Y + 2 * p, Y + 2 * p + 1, 8)
        for c in range(8): k(f"v_add_f32 v{Y+c}, v{Y+c}, v{SU_+c}")
    else:
        for c in range(8): k(f"v_fma_f32 v{Y+c}, v{Y+c}, v{CU_+c}, v{SU_+c}")
    for p in range(4): k(f"v_cvt_pk_bf16_f32 v{136+p}, v{Y+2*p}, v{Y+2*p+1}")
    k(f"""
s_mov_b32 exec_hi, 0x00ffffff
ds_write_b64 v144, v[136:137] offset:{L_SC}
ds_write_b64 v144, v[138:139] offset:{L_SC+128}
s_mov_b64 exec, -1
s_waitcnt lgkmcnt(0)
L_TB3:
s_barrier            ; T3
s_cmp_ge_u32 s{sW}, 8
s_cbranch_scc1 L_W13
s_cmp_eq_u32 s{sW}, 7
s_cbranch_scc1 L_FIN
v_and_b32 v9, 7, v{vN}
v_mul_u32_u24 v8, 136, v9
v_lshl_add_u32 v8, v{vG}, 3, v8
v_add_u32 v8, {L_G}, v8
v_lshrrev_b32 v10, 3, v{vN}
v_lshl_add_u32 v10, v10, 2, v{vG}
v_mul_u32_u24 v10, 4224, v10
v_lshl_add_u32 v9, v9, 4, v10
s_mul_i32 s{sT0}, s{sW}, {8*4224}
s_lshl_b32 s{sT1}, s{sID}, 7
s_add_u32 s{sT0}, s{sT0}, s{sT1}
s_add_u32 s{sT0}, s{sT0}, {WS_PB}
s_barrier            ; T4
ds_read2_b64 v[112:115], v8 offset0:0 offset1:4
ds_read2_b64 v[116:119], v8 offset0:8 offset1:12
""")
    for T in range(2):
        k(f"s_waitcnt lgkmcnt({1-T})")
        for q in range(4):
            k(f"{MF} {V(128+4*q)}, {V(F2+(T*4+q)*4)}, {V(112+4*T)}, {'0' if T == 0 else V(128+4*q)}")
    for q in range(4):
        k(f"v_cvt_pk_bf16_f32 v{144+2*q}, v{128+4*q}, v{129+4*q}\nv_cvt_pk_bf16_f32 v{145+2*q}, v{130+4*q}, v{131+4*q}")
    for r in range(4):
        k(f"v_cndmask_b32 v{144+r}, v{144+r}, v{148+r}, s[{sMN}:{sMN+1}]\nv_min_u32 v{144+r}, -2, v{144+r}")
    lstore([f"buffer_store_dwordx4 v[144:147], v9, {S(SRD_WS)}, s{sT0} offen"])
    stamp(14)
    k("s_branch L_FIN")
    k("L_PAD1:\ns_branch L_PAD2\nL_W13:")
    stamp(7)
    HA = [128 + 4 * i for i in range(6)]
    A0, A1 = 160, 164
    for t in range(6): k(f"ds_read_b128 {V(HA[t])}, v{vBA} offset:{L_SC+t*512}")
    k(f"""
s_mov_b32 s{sT3}, {f32(-LOG2E)}
v_and_b32 v8, 7, v{vN}
v_mul_u32_u24 v8, 136, v8
v_and_b32 v9, 1, v{vG}
v_lshl_add_u32 v8, v9, 3, v8
v_lshrrev_b32 v9, 5, v{vL}
v_lshl_add_u32 v8, v9, 2, v8
v_lshrrev_b32 v9, 3, v{vN}
v_lshl_add_u32 v8, v9, 4, v8
s_sub_u32 s{sT1}, s{sW}, 8
s_lshl_b32 s{sT1}, s{sT1}, 5
v_add_u32 v8, s{sT1}, v8
""")
    for t in range(14):
        k(f"s_waitcnt lgkmcnt({min(5, 13-t)})")
        k(f"{MF} {V(A0)}, {V(F13+4*t)}, {V(HA[t%6])}, {'0' if t == 0 else V(A0)}")
        k(f"{MF} {V(A1)}, {V(F13+56+4*t)}, {V(HA[t%6])}, {'0' if t == 0 else V(A1)}")
        if t + 6 < 14: k(f"ds_read_b128 {V(HA[t%6])}, v{vBA} offset:{L_SC+(t+6)*512}")
    for r in range(4): k(f"v_cndmask_b32 v{A0+r}, v{A0+r}, v{A1+r}, s[{sMN}:{sMN+1}]")
    k(f"""
v_permlane32_swap_b32 v{A0}, v{A0+2}
v_permlane32_swap_b32 v{A0+1}, v{A0+3}
""")
    round2(A0, A0 + 1, 12)
    k(f"""
v_mul_f32 v10, s{sT3}, v{A0}
v_mul_f32 v11, s{sT3}, v{A0+1}
v_exp_f32 v10, v10
v_exp_f32 v11, v11
""")
    round2(A0 + 2, A0 + 3, 12)
    k(f"""
v_add_f32 v10, 1.0, v10
v_add_f32 v11, 1.0, v11
v_rcp_f32 v10, v10
v_rcp_f32 v11, v11
v_mul_f32 v{A0}, v{A0}, v10
v_mul_f32 v{A0+1}, v{A0+1}, v11
""")
    round2(A0, A0 + 1, 12)
    k(f"""
v_mul_f32 v{A0}, v{A0}, v{A0+2}
v_mul_f32 v{A0+1}, v{A0+1}, v{A0+3}
v_cvt_pk_bf16_f32 v10, v{A0}, v{A0+1}
ds_write_b32 v8, v10 offset:{L_G}
s_waitcnt lgkmcnt(0)
s_barrier            ; T4
""")
    stamp(14)
    k(f"s_cmp_ge_u32 s{sW}, 10\ns_cbranch_scc1 L_FIN")
    k(f"""
s_mul_i32 s{sT0}, s{sT4}, 4224
s_add_u32 s{sT0}, s{sT0}, {WS_PB}
v_mov_b32 v28, 0
v_mov_b32 v29, 0
v_mov_b32 v30, 0
v_mov_b32 v31, 0
s_setprio 0
L_FB:
s_mov_b64 s[{sX0}:{sX0+1}], exec
""")
    for i in range(3): k(f"buffer_load_dwordx4 {V(16+4*i)}, v{vL16}, {S(SRD_WS)}, s{sT0} offen offset:{i*1024} sc1")
    k(f"""
s_mov_b32 exec_hi, 0
s_cbranch_execz L_FB2
buffer_load_dwordx4 v[28:31], v{vL16}, {S(SRD_WS)}, s{sT0} offen offset:3072 sc1
L_FB2:
s_mov_b64 exec, s[{sX0}:{sX0+1}]
s_waitcnt vmcnt(0)
""")
    sent(range(16, 32), 8)
    retry("L_FB", "s_mov_b64 exec, vcc" + (f"\ns_sleep {o['r3']}" if o.get("r3") else ""))
    k("s_mov_b64 exec, -1\ns_setprio 3")
    stamp(13)
    k("v_mov_b32 v8, 0x3f80\nv_mov_b32 v9, 0x3f800000")
    for i in range(4):
        for r in range(4):
            for h in range(2):
                d = 32 + 2 * r + h
                k(f"v_dot2_f32_bf16 v{d}, v{16+4*i+r}, v{8+h}, {'0' if i == 0 else 'v%d' % d}")
    k("s_nop 2")
    fold8(32)
    round2(32, 33, 8)
    k(f"v_pk_mul_f32 v[32:33], v[32:33], {V(vGB,2)}")
    round2(32, 33, 8)
    k(f"""
v_pk_add_f32 v[32:33], v[32:33], {V(vX1,2)}
v_cvt_pk_bf16_f32 v16, v32, v33
s_andn2_b64 exec, exec, s[{sMN}:{sMN+1}]
buffer_store_dword v16, v13, {S(SRD_C)}, s{sY0} offen
s_mov_b64 exec, -1
""")
    stamp(15)
    if o.get("probe"):
        k(f"s_cmp_lg_u32 s2, 0\ns_cbranch_scc1 L_FIN\ns_cmp_lg_u32 s{sW}, 8\ns_cbranch_scc1 L_FIN\nv_mov_b32 v8, 0")
        for j, i in enumerate([1, 2, 3, 4, 10, 12, 14, 15]):
            k(f"s_sub_u32 s{sT0}, s{sSTAMP+2*i}, s{sSTAMP}\nv_writelane_b32 v8, s{sT0}, {j}")
        k(f"v_lshlrev_b32 v7, 2, v0\ns_mov_b64 exec, 0xff\nbuffer_store_dword v8, v7, {S(SRD_B)}, 0 offen offset:16 sc1")
    if debug:
        k("s_branch L_FIN\nL_PAD2:\ns_branch L_T22")
        for blk in ool[::-1]: k(blk)
    k("L_FIN:")
    if debug:
        k("s_mov_b64 exec, -1\nv_mov_b32 v8, 0")
        for i in range(16): k(f"v_writelane_b32 v8, s{sSTAMP+2*i}, {i}")
        k(f"v_writelane_b32 v8, s{sBUD}, 16")
        k(f"""
s_mul_i32 s{sT0}, s2, 12
s_add_u32 s{sT0}, s{sT0}, s{sW}
s_lshl_b32 s{sT0}, s{sT0}, 7
s_add_u32 s{sT0}, s{sT0}, {WS_DBG}
v_lshlrev_b32 v7, 2, v0
s_mov_b32 exec_hi, 0
buffer_store_dword v8, v7, {S(SRD_WS)}, s{sT0} offen
""")
    k("L_END:\ns_endpgm")
    if not debug:
        k("L_PAD2:\ns_branch L_T22")
        for blk in ool: k(blk)
    k("L_CODE_END:")
    kt = kernel_text(KNAME + "_kernel", k.text(), NVGPR)
    desc = """; Single fused launch, 256 co-resident workgroups (one per CU), generated by the author's own script.
;  wg%8==0      : 32 tail WGs  - hold wo / w1 / w3 / w2 fragments, run o->wo->LN->SwiGLU->out
;  first 32 rest: chain WGs    - mod = silu(c)@w_mod, h, q = h@wq
; write-through stores are used across workgroups unless a run-time census shows all tail WGs on one XCD."""
    return file_text([f"; @launch grid=(256,1,1) block=(768,1,1) lds={LDS_BYTES}", desc], [kt])

if __name__ == "__main__":
    open("h_dbg.s", "w").write(gen(debug=True))
    open("h_rel.s", "w").write(gen(debug=False))
    for a in sys.argv[1:]:
        name, *kv = a.split(",")
        op = {x.split("=")[0]: (int(x.split("=")[1]) if x.split("=")[1].lstrip("-").isdigit() else x.split("=")[1]) for x in kv}
        open(name, "w").write(gen(debug="dbg" in name, opts=op))
```

```python
import sys, struct
from emit import K
from asmlib import KNAME, kernel_text, file_text

WS_MU = 0x0000
WS_M = 0x4000
WS_ML = 0x50000
WS_CNT = 0x51000
WS_X1 = 0xE000
WS_Q = 0x10000
WS_O = 0x20000
WS_PA = 0xA0000
WS_PB = 0xC0000
WS_DBG = 0x200000
WS_BYTES = 0x20000000
D_GA, D_GO2, D_GB, D_MODE, D_GM = 0, 4, 8, 12, 48
D_GQ, D_CM, D_XC, D_CB, D_CC = 128, 144, 148, 152, 156
AL_QF, AL_T, AL_G, AL_P, AL_N = 0, 4, 8, 12, 16
AL_Q = 64
AL_O = 2048
L_SC = 0
L_H = 7168
L_OA = L_H
L_G = L_H + 8256
L_T = 16640
L_B = 20224
L_A = L_B + 65536 + 16
L_MC = L_B + 57344
L_MS = L_A + 57344
LDS_BYTES = 152320
assert L_A + 65536 <= LDS_BYTES and L_MS % 16 == 0
LOG2E = 1.4426950408889634
def f32(x): return "0x%08x" % struct.unpack("<I", struct.pack("<f", x))[0]

P_X, P_K, P_V, P_WQ, P_WO, P_W1, P_W3, P_W2, P_C, P_WM, P_OUT, P_DBG, P_WS = 4, 6, 8, 10, 12, 16, 18, 20, 22, 24, 26, 28, 30
SRD_WS = 32
sID, sSP, sB, sKVH, sBUD = 36, 37, 38, 39, 40
sT0, sT1, sT2, sT3, sT4, sT5 = 41, 42, 43, 44, 45, 46
sMODE = 47
SRD_A, SRD_B, SRD_C = 48, 52, 56
sMN, sMH = 60, 62
sX0 = 64
sY0, sY1 = 66, 67
sCC = 68
sNT = 69
sW = 3
sSTAMP = 70
BUDGET = 400000
NVGPR = 168

def gen(debug=False, opts=None):
    o = dict(nt_w="nt", first=4, qsleep=20, qdelay=127, fsleep=4, b1sleep=2, b2sleep=0, asleep2=0)
    if opts: o.update(opts)
    NTW = o["nt_w"].replace("+", " ")
    k = K()
    def srd(dst, ptr, nbytes):
        k(f"s_mov_b32 s{dst}, s{ptr}\ns_and_b32 s{dst+1}, s{ptr+1}, 0xffff\ns_mov_b32 s{dst+2}, {nbytes}\ns_mov_b32 s{dst+3}, 0x20000")
    def S(r): return f"s[{r}:{r+3}]"
    def V(r, n=4): return f"v[{r}:{r+n-1}]"
    jn = [0]
    def stamp(i):
        if o.get("jitter"):
            jn[0] += 1
            L = k.newlabel("LJ")
            c = (o["jitter"] * 2654435761 + jn[0] * 40503) & 0x7fffffff | 1
            k(f"s_mul_i32 s100, s2, 12\ns_add_u32 s100, s100, s{sW}\ns_add_u32 s100, s100, 1\ns_mul_i32 s100, s100, {c}\ns_bfe_u32 s100, s100, 0x20010")
            k(f"s_cmp_lg_u32 s100, 0\ns_cbranch_scc1 {L}\ns_sleep {40 + 40 * (jn[0] % 3)}\n{L}:")
        if debug and (not o.get("lite") or i in (0, 5, 15)): k(f"s_memrealtime s[{sSTAMP+2*i}:{sSTAMP+2*i+1}]\ns_waitcnt lgkmcnt(0)")
    def stamp_init():
        if debug:
            for i in range(15 if o.get("st0") else 16): k(f"s_mov_b32 s{sSTAMP+2*i}, 0")
        stamp(0)
    def budget_loop(L):
        k(f"s_add_u32 s{sBUD}, s{sBUD}, 1\ns_cmp_lt_u32 s{sBUD}, {BUDGET}\ns_cbranch_scc1 {L}")
    def wave_red(op, v, sdst):
        ins = {"add": "v_add_f32_dpp", "max": "v_max_f32_dpp"}[op]
        bc = " bound_ctrl:0" if op == "add" else ""
        for sh in (1, 2, 4, 8):
            k(f"{ins} v{v}, v{v}, v{v} row_shr:{sh} row_mask:0xf bank_mask:0xf{bc}")
        k(f"{ins} v{v}, v{v}, v{v} row_bcast:15 row_mask:0xa bank_mask:0xf")
        k(f"{ins} v{v}, v{v}, v{v} row_bcast:31 row_mask:0xc bank_mask:0xf")
        k(f"v_readlane_b32 s{sdst}, v{v}, 63")
    def xg(op, v, t):
        ins = {"add": "v_add_f32", "max": "v_max_f32"}[op]
        k(f"v_mov_b32 v{t}, v{v}\nv_permlane32_swap_b32 v{t}, v{v}\n{ins} v{v}, v{v}, v{t}")
        k(f"v_mov_b32 v{t}, v{v}\nv_permlane16_swap_b32 v{t}, v{v}\n{ins} v{v}, v{v}, v{t}")
    def fold4(*bases):
        for a in bases: k(f"v_permlane32_swap_b32 v{a}, v{a+1}\nv_permlane32_swap_b32 v{a+2}, v{a+3}")
        for a in bases: k(f"v_add_f32 v{a}, v{a}, v{a+1}\nv_add_f32 v{a+2}, v{a+2}, v{a+3}")
        for a in bases: k(f"v_permlane16_swap_b32 v{a}, v{a+2}")
        for a in bases: k(f"v_add_f32 v{a}, v{a}, v{a+2}")
    def unpack(dlo, dhi, src):
        k(f"v_lshlrev_b32 v{dlo}, 16, v{src}\nv_and_b32 v{dhi}, 0xffff0000, v{src}")
    def round2(a, b, t):
        k(f"v_cvt_pk_bf16_f32 v{t}, v{a}, v{b}"); unpack(a, b, t)
    def round1(a):
        k(f"v_cvt_pk_bf16_f32 v{a}, v{a}, v{a}\nv_lshlrev_b32 v{a}, 16, v{a}")
    def sent(regs, t):
        regs = list(regs)
        if len(regs) == 1: k(f"v_cmp_eq_u32 vcc, -1, v{regs[0]}"); return
        if len(regs) == 2: k(f"v_max_u32 v{t}, v{regs[0]}, v{regs[1]}"); rest = []
        else: k(f"v_max3_u32 v{t}, v{regs[0]}, v{regs[1]}, v{regs[2]}"); rest = regs[3:]
        while len(rest) >= 2: k(f"v_max3_u32 v{t}, v{t}, v{rest[0]}, v{rest[1]}"); rest = rest[2:]
        if rest: k(f"v_max_u32 v{t}, v{t}, v{rest[0]}")
        k(f"v_cmp_eq_u32 vcc, -1, v{t}")
    def neg1(a=8):
        for r in range(4): k(f"v_mov_b32 v{a+r}, -1")
    def lstore(lines):
        L1, L2 = k.newlabel("LS"), k.newlabel("LS")
        k(f"s_cmp_eq_u32 s{sMODE}, 1\ns_cbranch_scc0 {L1}")
        for l in lines: k(l)
        k(f"{L2}:")
        ool.append(f"{L1}:\n" + "\n".join(l + " sc1" for l in lines) + f"\ns_nop 1\ns_branch {L2}")
    ool = []
    def retry(loop, extra=""):
        L, C = k.newlabel("LR"), k.newlabel("LC")
        k(f"s_cbranch_vccnz {L}\n{C}:")
        ool.append(f"{L}:\n{extra}\ns_add_u32 s{sBUD}, s{sBUD}, 1\ns_cmp_lt_u32 s{sBUD}, {BUDGET}\ns_cbranch_scc1 {loop}\ns_branch {C}")
    MF = "v_mfma_f32_16x16x32_bf16"
    vL, vG, vN, vZ, vONE = 0, 1, 2, 3, 4

    k(f"""
{"s_memrealtime s[100:101]" if o.get("st0") else ""}
s_cmp_ge_u32 s2, 256
s_cbranch_scc1 L_END
s_load_dwordx16 s[4:19], s[0:1], 0
s_load_dwordx8 s[20:27], s[0:1], 64
s_load_dwordx4 s[28:31], s[0:1], 96
v_lshrrev_b32 v1, 6, v0
v_readfirstlane_b32 s{sW}, v1
v_and_b32 v{vL}, 63, v0
s_and_b32 s{sT0}, s2, 7
s_lshr_b32 s{sID}, s2, 3
s_mov_b32 s{sBUD}, 0
v_lshrrev_b32 v{vG}, 4, v{vL}
v_and_b32 v{vN}, 15, v{vL}
v_mov_b32 v{vZ}, 0
v_mov_b32 v{vONE}, 1
s_mov_b32 s{sCC}, {f32(0.0625*LOG2E)}
s_cmp_eq_u32 s{sT0}, 0
s_cbranch_scc1 L_TAILWG
s_mul_i32 s{sID}, s{sID}, 7
s_add_u32 s{sID}, s{sID}, s{sT0}
s_sub_u32 s{sID}, s{sID}, 1
s_cmp_lt_u32 s{sID}, 32
s_cbranch_scc1 L_CHAIN
s_sub_u32 s{sT0}, s{sID}, 32
s_mul_i32 s{sT1}, s{sT0}, 781
s_lshr_b32 s{sT1}, s{sT1}, 14              ; a/21
s_mul_i32 s{sT2}, s{sT1}, 21
s_sub_u32 s{sT2}, s{sT0}, s{sT2}           ; a%21
s_mul_i32 s{sSP}, s{sT2}, 37
s_lshr_b32 s{sSP}, s{sSP}, 8               ; r
s_mul_i32 s{sT3}, s{sSP}, 5
s_sub_u32 s{sT3}, s{sT2}, s{sT3}           ; c + 2r
s_sub_u32 s{sT4}, s{sT3}, 7
s_cmp_ge_u32 s{sT3}, 7
s_cselect_b32 s{sT3}, s{sT4}, s{sT3}
s_mul_i32 s{sID}, s{sT1}, 7
s_add_u32 s{sID}, s{sID}, s{sT3}
s_cmp_ge_u32 s{sT0}, 189
s_cselect_b32 s{sID}, 63, s{sID}
s_cselect_b32 s{sSP}, s{sT2}, s{sSP}
""")
    KB, VB, QF, SA = 16, 80, 144, 160
    k(f"""
s_lshl_b32 s{sT0}, s{sSP}, 3
s_add_u32 s{sT0}, s{sT0}, s{sW}
s_lshl_b32 s{sT0}, s{sT0}, 14
s_lshl_b32 s{sY0}, s{sID}, 21
s_add_u32 s{sY0}, s{sY0}, {3072*512}
s_add_u32 s{sT0}, s{sT0}, s{sY0}
s_add_u32 s{sT1}, s{sT0}, 8192
v_lshlrev_b32 v5, 9, v{vN}
v_lshl_add_u32 v5, v{vG}, 4, v5            ; K: n*512 + g*16
v_lshlrev_b32 v6, 11, v{vG}
v_lshl_add_u32 v6, v{vN}, 4, v6            ; V: g*2048 + n*16
v_mov_b32 v8, 0
v_mov_b32 v9, 0
v_mov_b32 v10, 0
v_mov_b32 v11, 0
ds_write_b128 v{vZ}, v[8:11]
ds_write_b128 v{vZ}, v[8:11] offset:16
s_waitcnt lgkmcnt(0)
""")
    stamp_init()
    srd(SRD_A, P_K, 0x8000000)
    def kv_loads(dyn):
        n = 0
        seq = [("K", tl, i) for tl in range(2) for i in range(8)] + [("V", i, hf) for i in range(8) for hf in range(2)]
        for kind, a_, b_ in seq:
            if kind == "K":
                k(f"buffer_load_dwordx4 {V(KB+(a_*8+b_)*4)}, v5, {S(SRD_A)}, s{sT0+a_} offen offset:{b_*64} {o.get('kvpol', 'nt').replace('+', ' ')}")
            else:
                k(f"buffer_load_dwordx4 {V(VB+(a_*2+b_)*4)}, v6, {S(SRD_B)}, s{sT0+(a_>>2)} offen offset:{(a_&3)*512+b_*256} {o.get('kvpol', 'nt').replace('+', ' ')}")
            n += 1
            if not dyn and n == o["first"]:
                if o.get("st0"): k(f"s_memrealtime s[{sSTAMP+4}:{sSTAMP+5}]")
                k("s_barrier"); srd(SRD_B, P_V, 0x8000000)
            if not dyn and n == o.get("trig0", 26):
                k(f"s_cmp_lg_u32 s{sW}, 4\ns_cbranch_scc1 L_NT0\nds_write_b32 v{vZ}, v{vONE} offset:{AL_N}\nL_NT0:")
            if not dyn and n == o.get("trigq", 32):
                k(f"s_cmp_lg_u32 s{sW}, 5\ns_cbranch_scc1 L_NTQ\nds_write_b32 v{vZ}, v{vONE} offset:{AL_P}\nL_NTQ:")
            if dyn and n == o.get("trig1", 12):
                k(f"ds_write_b32 v7, v{vONE} offset:{AL_N+4}")
    k(f"s_cmp_ge_u32 s{sW}, 8\ns_cbranch_scc1 L_DYN")
    if o.get("x_extra"):
        k(f"s_sub_u32 s{sT2}, s{sT0}, 0x100000\nv_lshlrev_b32 v7, 4, v{vL}")
        for i in range(6):
            if i == 4: k(f"s_add_u32 s{sT2}, s{sT2}, 4096")
            k(f"buffer_load_dwordx4 {V(144+4*i)}, v7, {S(SRD_A)}, s{sT2} offen offset:{(i&3)*1024} nt")
    kv_loads(False)
    k("L_KVD:")
    stamp(1)
    srd(SRD_WS, P_WS, WS_BYTES)
    k(f"""
v_lshrrev_b32 v7, 3, v{vN}
v_lshlrev_b32 v7, 9, v7
v_lshl_add_u32 v7, v{vG}, 4, v7
v_and_b32 v12, 1, v{vL}
v_cmp_eq_u32 vcc, 1, v12
v_mov_b32 v13, 0xffff
v_mov_b32 v14, 0xffff0000
v_cndmask_b32 v13, v13, v14, vcc
v_bfe_u32 v12, v{vL}, 1, 2
""")
    for r in range(4): k(f"v_cmp_eq_u32 vcc, {r}, v12\nv_cndmask_b32 v{8+r}, 0, v13, vcc")
    k(f"""
{"s_branch L_AQD" if o.get("x_fakeq") else ""}
s_cmp_ge_u32 s{sW}, 4
s_cbranch_scc1 L_AQW
s_lshl_b32 s{sT2}, s{sID}, 10
s_lshl_b32 s{sT3}, s{sW}, 8
s_add_u32 s{sT2}, s{sT2}, s{sT3}
s_add_u32 s{sT2}, s{sT2}, {WS_Q}
s_add_u32 s{sX0}, s{P_WS}, s{sT2}
s_addc_u32 s{sX0+1}, s{P_WS+1}, 0
s_cmp_eq_u32 s{sW}, 0
s_cbranch_scc1 L_AG0
L_AGL:
ds_read_b32 v12, v{vZ} offset:{AL_G}
s_waitcnt lgkmcnt(0)
v_readfirstlane_b32 s{sT4}, v12
s_cmp_lg_u32 s{sT4}, 0
s_cbranch_scc1 L_AP0
s_sleep 2
""")
    budget_loop("L_AGL")
    k(f"""
s_branch L_AP
L_AG0:
s_and_b32 s{sT3}, s2, 1
s_lshl_b32 s{sT3}, s{sT3}, 6
s_add_u32 s{sT3}, s{sT3}, {D_GQ}
L_AG:
s_load_dword s{sT4}, s[{P_DBG}:{P_DBG+1}], s{sT3} glc
s_waitcnt lgkmcnt(0)
s_cmp_lg_u32 s{sT4}, 0
s_cbranch_scc1 L_AG1
s_sleep 32
""")
    budget_loop("L_AG")
    k(f"""
L_AG1:
ds_write_b32 v{vZ}, v{vONE} offset:{AL_G}
L_AP0:
s_sleep 4
ds_read_b32 v12, v{vZ} offset:{AL_P}
s_waitcnt lgkmcnt(0)
v_readfirstlane_b32 s{sT4}, v12
s_cmp_lg_u32 s{sT4}, 0
s_cbranch_scc1 L_AP
""")
    budget_loop("L_AP0")
    k(f"""
L_AP:
s_load_dwordx16 s[4:19], s[{sX0}:{sX0+1}], 0 glc
s_load_dwordx16 s[48:63], s[{sX0}:{sX0+1}], 64 glc
s_load_dwordx16 s[84:99], s[{sX0}:{sX0+1}], 128 glc
s_load_dwordx8 s[20:27], s[{sX0}:{sX0+1}], 192 glc
s_load_dwordx8 s[76:83], s[{sX0}:{sX0+1}], 224 glc
s_waitcnt lgkmcnt(0)
s_max_u32 s{sT4}, s63, s83
s_cmp_lg_u32 s{sT4}, -1
s_cbranch_scc1 L_AF
L_AR:
s_sleep {o.get("qsleep", 10)}
""")
    budget_loop("L_AP")
    k("L_AF:")
    src = list(range(4, 20)) + list(range(48, 64)) + list(range(84, 100)) + list(range(20, 28)) + list(range(76, 84))
    for i, r in enumerate(src): k(f"v_writelane_b32 v12, s{r}, {i}")
    k(f"v_cmp_eq_u32 vcc, -1, v12\ns_cbranch_vccz L_AW\ns_cmp_lt_u32 s{sBUD}, {BUDGET}\ns_cbranch_scc1 L_AR")
    if debug:
        pass
    k(f"""
L_AW:
s_lshl_b32 s{sT3}, s{sW}, 8
v_lshlrev_b32 v13, 2, v{vL}
v_add_u32 v13, s{sT3}, v13
ds_write_b32 v13, v12 offset:{AL_Q}
s_waitcnt lgkmcnt(0)
s_mov_b64 exec, 1
ds_add_u32 v{vZ}, v{vONE} offset:{AL_QF}
s_mov_b64 exec, -1
L_AQW:
ds_read_b32 v12, v{vZ} offset:{AL_QF}
s_waitcnt lgkmcnt(0)
v_readfirstlane_b32 s{sT4}, v12
s_cmp_ge_u32 s{sT4}, 4
s_cbranch_scc1 L_AQD
s_sleep 2
""")
    budget_loop("L_AQW")
    k("L_AQD:")
    if debug:
        for i in range(3, 15 if o.get("st0") else 16): k(f"s_mov_b32 s{sSTAMP+2*i}, 0")
    if not o.get("st0"): stamp(2)
    for i in range(4): k(f"ds_read_b128 {V(QF+4*i)}, v7 offset:{AL_Q+i*64}")
    PD, AS, OAC, vM, vLs = 16, 24, 40, 48, 49
    def adr():
        k(f"""
v_lshlrev_b32 v15, 4, v{vL}
v_lshlrev_b32 v14, 3, v{vL}
s_and_b32 s{sKVH}, s{sID}, 7
s_lshr_b32 s{sB}, s{sID}, 3
v_lshrrev_b32 v6, 5, v{vL}
v_lshlrev_b32 v6, 3, v6                    ; ML: h*8
s_mul_i32 s{sY0}, s{sB}, 3
s_add_u32 s{sY0}, s{sY0}, s{sSP}
s_lshl_b32 s{sY0}, s{sY0}, 10
s_mul_i32 s{sT2}, s{sKVH}, 24576
s_add_u32 s{sY0}, s{sY0}, s{sT2}
s_add_u32 s{sY0}, s{sY0}, {WS_O}
s_lshl_b32 s{sT0}, s{sB}, 2
s_add_u32 s{sT0}, s{sT0}, s{sSP}
s_lshl_b32 s{sT5}, s{sT0}, 4
s_lshl_b32 s{sT2}, s{sKVH}, 9
s_add_u32 s{sT5}, s{sT5}, s{sT2}
s_add_u32 s{sT5}, s{sT5}, {WS_ML}
s_mov_b32 s{sNT}, 12
""")
    adr()
    k(f"s_mov_b32 s{sT4}, 1")
    for n in range(16):
        tl, i = n >> 3, n & 7
        w = f"vmcnt({31-n}) " if True else ""
        k(f"s_waitcnt {w}lgkmcnt({min(3, 15-n)})")
        k(f"{MF} {V(SA+4*tl)}, {V(KB+n*4)}, {V(QF+4*(n&3))}, {'0' if i == 0 else V(SA+4*tl)}")
        if n < 12: k(f"ds_read_b128 {V(QF+4*(n&3))}, v7 offset:{AL_Q+((n+4)&7)*64}")
        if n == 11:
            round2(SA, SA + 1, 12); round2(SA + 2, SA + 3, 12)
            k(f"v_max3_f32 v13, v{SA}, v{SA+1}, v{SA+2}\nv_max_f32 v13, v13, v{SA+3}")
    round2(SA + 4, SA + 5, 12); round2(SA + 6, SA + 7, 12)
    k(f"v_max3_f32 v13, v13, v{SA+4}, v{SA+5}\nv_max3_f32 v12, v13, v{SA+6}, v{SA+7}")
    xg("max", 12, 5)
    for i in range(8): k(f"v_sub_f32 v{SA+i}, v{SA+i}, v12")
    for i in range(8): k(f"v_mul_f32 v{SA+i}, s{sCC}, v{SA+i}")
    for i in range(8): k(f"v_exp_f32 v{SA+i}, v{SA+i}")
    for i in range(8): k(f"v_cvt_pk_bf16_f32 v{PD+i}, v{SA+i}, v{SA+i}")
    stamp(3)
    for i in range(8):
        a = AS + 4 * (i & 3)
        for r in range(4): k(f"v_and_b32 v{a+r}, v{PD+i}, v{8+r}")
        for hf in range(2):
            k(f"s_waitcnt vmcnt({15-(2*i+hf)})")
            k(f"{MF} {V(OAC+4*hf)}, {V(a)}, {V(VB+(i*2+hf)*4)}, {'0' if i == 0 else V(OAC+4*hf)}")
        if i == 0: k(f"v_add_f32 v13, v{SA}, v{SA+1}\nv_add_f32 v5, v{SA+2}, v{SA+3}\nv_add_f32 v50, v{SA+4}, v{SA+5}\nv_add_f32 v51, v{SA+6}, v{SA+7}")
        if i == 1: k("v_add_f32 v13, v13, v5\nv_add_f32 v50, v50, v51\nv_add_f32 v13, v13, v50")
        if i == 2: xg("add", 13, 5)
        if i == 3:
            k(f"""
v_readlane_b32 s{sT0}, v12, 0
v_readlane_b32 s{sT1}, v12, 8
v_readlane_b32 s{sT2}, v13, 0
v_readlane_b32 s{sT3}, v13, 8
""")
        if i == 4:
            k(f"""
v_mov_b32 v{vM}, s{sT0}
v_mov_b32 v{vLs}, s{sT2}
s_mov_b32 exec_lo, 0
v_mov_b32 v{vM}, s{sT1}
v_mov_b32 v{vLs}, s{sT3}
s_mov_b64 exec, -1
""")
    stamp(4)
    k(f"""
s_setprio 3
L_MG:
s_mov_b64 exec, 1
ds_wrxchg_rtn_b32 v12, v{vZ}, v{vZ} offset:{AL_T}
s_mov_b64 exec, -1
s_waitcnt lgkmcnt(0)
v_readfirstlane_b32 s{sT0}, v12
s_cmp_eq_u32 s{sT0}, 0
s_cbranch_scc1 L_MLEAVE
s_and_b32 s{sT1}, s{sT0}, 0xffff
s_lshr_b32 s{sT0}, s{sT0}, 16
s_add_u32 s{sT4}, s{sT4}, s{sT0}
v_add_u32 v12, s{sT1}, v14
v_add_u32 v13, s{sT1}, v15
ds_read_b64 v[60:61], v12 offset:2048
ds_read_b128 v[52:55], v13
ds_read_b128 v[56:59], v13 offset:1024
s_waitcnt lgkmcnt(2)
v_max_f32 v62, v{vM}, v60
v_sub_f32 v63, v{vM}, v62
v_sub_f32 v60, v60, v62
v_mul_f32 v63, s{sCC}, v63
v_mul_f32 v60, s{sCC}, v60
v_exp_f32 v63, v63
v_exp_f32 v60, v60
v_mov_b32 v{vM}, v62
v_mul_f32 v{vLs}, v{vLs}, v63
v_fmac_f32 v{vLs}, v61, v60
""")
    for r in range(8): k(f"v_mul_f32 v{OAC+r}, v{OAC+r}, v63")
    k("s_waitcnt lgkmcnt(0)")
    for r in range(8): k(f"v_fmac_f32 v{OAC+r}, v{52+r}, v60")
    k(f"""
s_cmp_ge_u32 s{sT4}, s{sNT}
s_cbranch_scc1 L_MPUB
""")
    budget_loop("L_MG")
    k(f"""
s_branch L_FIN
L_MLEAVE:
s_mul_i32 s{sT1}, s{sW}, 2560
s_add_u32 s{sT1}, s{sT1}, {AL_O}
v_add_u32 v12, s{sT1}, v14
v_add_u32 v13, s{sT1}, v15
ds_write_b128 v13, {V(OAC)}
ds_write_b128 v13, {V(OAC+4)} offset:1024
ds_write_b64 v12, v[{vM}:{vLs}] offset:2048
s_lshl_b32 s{sT0}, s{sT4}, 16
s_or_b32 s{sT0}, s{sT0}, s{sT1}
v_mov_b32 v13, s{sT0}
s_waitcnt lgkmcnt(0)
s_mov_b64 exec, 1
ds_cmpst_rtn_b32 v12, v{vZ}, v{vZ}, v13 offset:{AL_T}
s_mov_b64 exec, -1
s_waitcnt lgkmcnt(0)
v_readfirstlane_b32 s{sT0}, v12
s_cmp_eq_u32 s{sT0}, 0
s_cbranch_scc1 L_FIN
""")
    budget_loop("L_MG")
    k("s_branch L_FIN")
    k("L_MPUB:")
    k(f"v_rcp_f32 v62, v{vLs}")
    for r in range(8): k(f"v_mul_f32 v{OAC+r}, v{OAC+r}, v62")
    for p in range(4): k(f"v_cvt_pk_bf16_f32 v{52+p}, v{OAC+2*p}, v{OAC+2*p+1}\nv_min_u32 v{52+p}, -2, v{52+p}")
    k(f"""
buffer_store_dwordx4 v[52:55], v15, {S(SRD_WS)}, s{sY0} offen sc1
v_min_u32 v{vM}, -2, v{vM}
v_min_u32 v{vLs}, -2, v{vLs}
s_mov_b32 exec_lo, 1
s_mov_b32 exec_hi, 1
buffer_store_dwordx2 v[{vM}:{vLs}], v6, {S(SRD_WS)}, s{sT5} offen sc1
""")
    stamp(5)
    k("s_branch L_FIN")
    k(f"""
L_DYN:
s_barrier
s_sub_u32 s{sT2}, s{sW}, 8
s_lshl_b32 s{sT2}, s{sT2}, 2
v_mov_b32 v7, s{sT2}
s_lshl_b32 s{sT2}, s{sID}, 7
s_add_u32 s{sT2}, s{sT2}, {WS_CNT}
s_add_u32 s{sX0}, s{P_WS}, s{sT2}
s_addc_u32 s{sX0+1}, s{P_WS+1}, 0
""")
    srd(SRD_B, P_V, 0x8000000)
    k(f"""
L_DW:
s_sleep 2
ds_read_b32 v12, v7 offset:{AL_N}
ds_read_b32 v13, v{vZ} offset:{AL_G}
s_waitcnt lgkmcnt(0)
v_readfirstlane_b32 s{sT4}, v12
v_readfirstlane_b32 s{sT5}, v13
s_cmp_eq_u32 s{sT4}, 2
s_cbranch_scc1 L_END
s_and_b32 s{sT4}, s{sT4}, s{sT5}
s_cbranch_scc1 L_DC
""")
    budget_loop("L_DW")
    k(f"""
s_endpgm
L_DC:
s_mov_b32 s{sT4}, 1
s_atomic_add s{sT4}, s[{sX0}:{sX0+1}], 0 glc
s_waitcnt lgkmcnt(0)
s_add_u32 s{sT4}, s{sT4}, 1
s_cmp_ge_u32 s{sT4}, 8
s_cbranch_scc1 L_DF
s_add_u32 s{sT0}, s{sT4}, 24
s_lshl_b32 s{sT0}, s{sT0}, 14
s_add_u32 s{sT0}, s{sT0}, s{sY0}
s_add_u32 s{sT1}, s{sT0}, 8192
""")
    kv_loads(True)
    k(f"""
s_branch L_KVD
L_DF:
v_mov_b32 v8, 2
v_mov_b32 v9, 2
v_mov_b32 v10, 2
v_mov_b32 v11, 2
ds_write_b128 v{vZ}, v[8:11] offset:{AL_N}
""")
    srd(SRD_WS, P_WS, WS_BYTES)
    for r in range(8): k(f"v_mov_b32 v{OAC+r}, 0")
    adr()
    k(f"v_mov_b32 v{vM}, 0xff800000\nv_mov_b32 v{vLs}, 0\ns_sub_u32 s{sT4}, 12, s{sW}\ns_branch L_MG")

    vSW, vTR, vRW, vL16, vBA = 5, 6, 7, 15, 14
    def svc_setup():
        k("s_waitcnt lgkmcnt(0)")
        stamp_init()
        srd(SRD_WS, P_WS, WS_BYTES); srd(SRD_B, P_DBG, 256)
        k(f"""
v_cmp_lt_u32 s[{sMN}:{sMN+1}], 7, v{vN}
v_lshlrev_b32 v{vL16}, 4, v{vL}
v_bfe_u32 v8, v{vL}, 1, 2
v_bfe_u32 v9, v{vL}, 4, 2
v_xor_b32 v8, v8, v9
v_lshlrev_b32 v8, 5, v8
v_and_b32 v9, 1, v{vL}
v_lshl_add_u32 v{vSW}, v9, 4, v8
s_and_b32 s{sT5}, s{sW}, 3
""")
    def svc_setup2():
        k(f"""
v_bfe_u32 v8, v{vL}, 2, 2
v_lshl_add_u32 v{vTR}, v{vG}, 2, v8        ; 4g + r
v_mul_u32_u24 v{vRW}, 928, v{vTR}
v_and_b32 v8, 3, v{vL}
v_lshl_add_u32 v{vRW}, v8, 4, v{vRW}
v_and_b32 v{vBA}, 7, v{vN}
v_lshlrev_b32 v{vBA}, 4, v{vBA}
v_lshl_add_u32 v{vBA}, v{vG}, 7, v{vBA}
""")
    def code_prefetch(tag, sidx):
        k(f"""
s_getpc_b64 s[{sX0}:{sX0+1}]
L_PC{tag}:
s_sub_u32 s{sX0}, s{sX0}, L_PC{tag}-{KNAME}_kernel
s_subb_u32 s{sX0+1}, s{sX0+1}, 0
v_lshlrev_b32 v12, 7, v{vL}
s_lshl_b32 s{sT0}, s{sidx}, 13
v_add_u32 v12, s{sT0}, v12
v_cmp_gt_u32 vcc, L_CODE_END-{KNAME}_kernel, v12
s_and_b64 exec, exec, vcc
s_cbranch_execz L_NOPF{tag}
global_load_dword v13, v12, s[{sX0}:{sX0+1}]
L_NOPF{tag}:
s_mov_b64 exec, -1
""")
    def dma_tile(srdreg, pitch, scol, buf):
        k(f"""
v_lshrrev_b32 v8, 3, v{vL}
v_mul_u32_u24 v8, {pitch}, v8
v_add_u32 v8, v8, v{vSW}
s_mul_i32 s{sT2}, s{sW}, {56*pitch}
s_add_u32 s{sT2}, s{sT2}, s{scol}
s_mul_i32 s{sT3}, s{sW}, 7168
s_add_u32 s{sT3}, s{sT3}, {buf}
""")
        for i in range(7):
            k(f"s_mov_b32 m0, s{sT3}\nbuffer_load_dwordx4 v8, {S(srdreg)}, s{sT2} offen {NTW} lds")
            if i < 6: k(f"s_add_u32 s{sT2}, s{sT2}, {8*pitch}\ns_add_u32 s{sT3}, s{sT3}, 1024")
    def dma_rows(srdreg, srow, buf):
        k(f"""
s_lshl_b32 s{sT2}, s{sW}, 3
s_mul_i32 s{sT3}, s{sT2}, 928
s_add_u32 s{sT3}, s{sT3}, {buf}
s_add_u32 s{sT2}, s{sT2}, s{srow}
s_mul_i32 s{sT2}, s{sT2}, 896
s_mov_b32 exec_hi, 0x00ffffff
""")
        for i in range(8):
            k(f"s_mov_b32 m0, s{sT3}\nbuffer_load_dwordx4 v{vL16}, {S(srdreg)}, s{sT2} offen {NTW} lds")
            if i < 7: k(f"s_add_u32 s{sT2}, s{sT2}, 896\ns_add_u32 s{sT3}, s{sT3}, 928")
        k("s_mov_b64 exec, -1")
    def frag_tile(dst, vaddr):
        for t in range(14):
            k(f"ds_read_b64_tr_b16 {V(dst+4*t,2)}, v{vaddr} offset:{t*4096}\nds_read_b64_tr_b16 {V(dst+4*t+2,2)}, v{vaddr} offset:{t*4096+2048}")
            if t in (6, 13): k("s_waitcnt lgkmcnt(0)")
    def tile_addr(dst, sq, sbuf):
        k(f"""
v_lshrrev_b32 v8, 1, v{vTR}
v_and_b32 v8, 3, v8
v_xor_b32 v8, s{sq}, v8
v_lshlrev_b32 v8, 5, v8
v_lshl_add_u32 v8, v{vTR}, 7, v8
v_and_b32 v9, 3, v{vL}
v_lshl_add_u32 v8, v9, 3, v8
v_add_u32 v{dst}, {sbuf}, v8
""")
    def frag_rows(dst, buf):
        L = k.newlabel("LFR")
        k(f"s_cmp_ge_u32 s{sW}, 7\ns_cbranch_scc1 {L}")
        k(f"s_lshl_b32 s{sT2}, s{sW}, 7\ns_add_u32 s{sT2}, s{sT2}, {buf}\nv_add_u32 v8, s{sT2}, v{vRW}")
        for T in range(2):
            for q in range(4):
                r = dst + (T * 4 + q) * 4
                qo = (q >> 1) * 64 + (q & 1) * 8
                k(f"ds_read_b64_tr_b16 {V(r,2)}, v8 offset:{T*29696+qo}\nds_read_b64_tr_b16 {V(r+2,2)}, v8 offset:{T*29696+qo+14848}")
            k("s_waitcnt lgkmcnt(0)")
        k(f"{L}:")
    def poll_flag(off, name, sleep=2):
        k(f"""
s_mov_b64 exec, 1
{name}:
buffer_load_dword v9, v{vZ}, {S(SRD_B)}, 0 offen offset:{off} sc1
s_waitcnt vmcnt(0)
v_cmp_eq_u32 vcc, 0, v9
s_cbranch_vccz {name}D
s_sleep {sleep}
""")
        budget_loop(name)
        k(f"{name}D:\ns_mov_b64 exec, -1")
    def ln_stats(X, vmean, vrden):
        k(f"v_add_f32 v8, v{X}, v{X+1}\nv_add_f32 v9, v{X+2}, v{X+3}\nv_add_f32 v12, v{X+4}, v{X+5}\nv_add_f32 v13, v{X+6}, v{X+7}")
        k("v_add_f32 v8, v8, v9\nv_add_f32 v12, v12, v13\nv_add_f32 v8, v8, v12")
        wave_red("add", 8, sT2)
        k(f"v_mov_b32 v12, {f32(1.0/448)}\nv_mul_f32 v{vmean}, s{sT2}, v12")
        for c in range(8):
            k(f"v_sub_f32 v9, v{X+c}, v{vmean}")
            k("v_mul_f32 v8, v9, v9" if c == 0 else "v_fmac_f32 v8, v9, v9")
        k("v_cndmask_b32 v8, 0, v8, vcc")
        wave_red("add", 8, sT2)
        k(f"v_mul_f32 v{vrden}, s{sT2}, v12")
        round2(vmean, vrden, 8)
        k(f"v_add_f32 v{vrden}, {f32(1e-5)}, v{vrden}"); round1(vrden)
        k(f"v_sqrt_f32 v{vrden}, v{vrden}"); round1(vrden)
        k(f"v_rcp_f32 v{vrden}, v{vrden}")
    def chunk_dst(dst):
        k(f"""
v_lshrrev_b32 v11, 2, v{vL}
v_lshlrev_b32 v11, 9, v11
v_and_b32 v12, 1, v{vL}
v_lshl_add_u32 v11, v12, 8, v11
v_bfe_u32 v12, v{vL}, 1, 1
v_lshl_add_u32 v11, v12, 3, v11
s_lshl_b32 s{sT1}, s{sW}, 4
v_add_u32 v{dst}, s{sT1}, v11
""")
    def counter_go(off_c, last, off_go, name):
        k(f"""
s_mov_b32 s{sT1}, 1
s_atomic_add s{sT1}, s[{P_DBG}:{P_DBG+1}], {off_c} glc
s_waitcnt lgkmcnt(0)
s_cmp_lg_u32 s{sT1}, {last}
s_cbranch_scc1 {name}
s_mov_b64 exec, 1
buffer_store_dword v{vONE}, v{vZ}, {S(SRD_B)}, 0 offen offset:{off_go} sc1
s_mov_b64 exec, -1
{name}:
""")

    WF, AF, D0 = 48, 104, 160
    CV, XR, LNV, SAv, CAv = 16, 20, 24, 28, 32
    k("L_CHAIN:")
    svc_setup()
    svc_setup2()
    def tile_mfma(lbase):
        for t in range(14): k(f"ds_read_b128 {V(AF+4*t)}, v{vBA} offset:{lbase+t*512}")
        k(f"""
v_and_b32 v8, 7, v{vN}
v_mul_u32_u24 v8, 144, v8
v_lshl_add_u32 v8, v{vG}, 3, v8
s_lshr_b32 s{sT2}, s{sW}, 2
s_mul_i32 s{sT2}, s{sT2}, 1152
s_lshl_b32 s{sT3}, s{sT5}, 5
s_add_u32 s{sT2}, s{sT2}, s{sT3}
v_add_u32 v8, s{sT2}, v8
""")
        for t in range(14):
            k(f"s_waitcnt lgkmcnt({13-t})")
            k(f"{MF} {V(D0)}, {V(WF+4*t)}, {V(AF+4*t)}, {'0' if t == 0 else V(D0)}")
        k(f"""
v_cvt_pk_bf16_f32 v10, v{D0}, v{D0+1}
v_cvt_pk_bf16_f32 v11, v{D0+2}, v{D0+3}
v_min_u32 v10, -2, v10
v_min_u32 v11, -2, v11
ds_write_b64 v8, v[10:11] offset:{L_T}
s_waitcnt lgkmcnt(0)
""")
    def stage_pub(pitch_shift, soff):
        k(f"""
v_lshrrev_b32 v12, 3, v{vL}
v_mul_u32_u24 v13, 144, v12
v_and_b32 v9, 7, v{vL}
v_lshl_add_u32 v13, v9, 4, v13
s_lshr_b32 s{sT2}, s{sW}, 2
s_mul_i32 s{sT3}, s{sT2}, 1152
v_add_u32 v13, s{sT3}, v13
v_lshlrev_b32 v12, {pitch_shift}, v12
v_lshl_add_u32 v12, v9, 4, v12
ds_read_b128 v[8:11], v13 offset:{L_T}
s_lshl_b32 s{sT2}, s{sT2}, 7
s_add_u32 s{sT2}, s{sT2}, s{soff}
s_waitcnt lgkmcnt(0)
buffer_store_dwordx4 v[8:11], v12, {S(SRD_WS)}, s{sT2} offen sc1
""")

    def spoll(off, name):
        k(f"""
{name}:
s_load_dword s{sT1}, s[{P_DBG}:{P_DBG+1}], {off} glc
s_waitcnt lgkmcnt(0)
s_cmp_lg_u32 s{sT1}, 0
s_cbranch_scc1 {name}D
s_sleep 6
""")
        budget_loop(name)
        k(f"{name}D:")
    k(f"""
s_mul_i32 s{sY0}, s{sID}, 384
s_sub_u32 s{sY0}, s{sY0}, {28*128}         ; first tile column bytes: (14+3(k-14))*128 for k<28
s_lshl_b32 s{sT1}, s{sID}, 8               ;                          (56+2(k-28))*128 for k>=28
s_cmp_ge_u32 s{sID}, 28
s_cselect_b32 s{sY0}, s{sT1}, s{sY0}
s_lshl_b32 s{sY1}, s{sID}, 7
s_cmp_lt_u32 s{sW}, 8
s_cbranch_scc1 L_C8
""")
    srd(SRD_A, P_X, 7168)
    k(f"""
s_setprio 3
s_mul_i32 s{sT1}, s{sT5}, 1792
buffer_load_dwordx4 v[16:19], v{vL16}, {S(SRD_A)}, s{sT1} offen
buffer_load_dwordx4 v[20:23], v{vL16}, {S(SRD_A)}, s{sT1} offen offset:896
""")
    neg1()
    k(f"s_cmp_ge_u32 s{sID}, 7\ns_cbranch_scc1 L_CNP")
    code_prefetch("C", sT5)
    k(f"""
L_CNP:
s_cmp_lt_u32 s{sID}, 14
s_cbranch_scc1 L_CX
s_cmp_eq_u32 s{sW}, 9
s_cbranch_scc1 L_CLQ
s_cmp_lg_u32 s{sW}, 8
s_cbranch_scc1 L_CX
s_cmp_lg_u32 s{sID}, 28
s_cbranch_scc1 L_CX
s_mov_b32 s{sT0}, {WS_MU}
L_CLM:
""")
    for i in range(4): k(f"buffer_store_dwordx4 v[8:11], v{vL16}, {S(SRD_WS)}, s{sT0} offen offset:{i*1024} sc1")
    k(f"""
s_add_u32 s{sT0}, s{sT0}, 4096
s_cmp_lt_u32 s{sT0}, {WS_MU+16384}
s_cbranch_scc1 L_CLM
s_waitcnt vmcnt(0)
s_mov_b64 exec, 1
buffer_store_dword v{vONE}, v{vZ}, {S(SRD_B)}, 0 offen offset:{D_GA} sc1
s_mov_b64 exec, -1
s_branch L_CX
L_CLQ:
s_sub_u32 s{sT0}, s{sID}, 14
s_mul_i32 s{sT0}, s{sT0}, 15360
s_add_u32 s{sT0}, s{sT0}, {WS_Q}
""")
    for i in range(15):
        k(f"buffer_store_dwordx4 v[8:11], v{vL16}, {S(SRD_WS)}, s{sT0} offen offset:{(i&3)*1024} sc1")
        if i & 3 == 3: k(f"s_add_u32 s{sT0}, s{sT0}, 4096")
    k(f"""
s_mov_b32 s{sT1}, 1
s_waitcnt vmcnt(0)
s_atomic_add s{sT1}, s[{P_DBG}:{P_DBG+1}], {D_CC} glc
s_waitcnt lgkmcnt(0)
s_cmp_lg_u32 s{sT1}, 17
s_cbranch_scc1 L_CX
s_mov_b64 exec, 1
buffer_store_dword v{vONE}, v{vZ}, {S(SRD_B)}, 0 offen offset:{D_GQ} sc1
buffer_store_dword v{vONE}, v{vZ}, {S(SRD_B)}, 0 offen offset:{D_GQ+64} sc1
buffer_store_dword v{vONE}, v{vZ}, {S(SRD_B)}, 0 offen offset:{D_GB} sc1
s_mov_b64 exec, -1
L_CX:
s_waitcnt vmcnt(0)
v_cmp_gt_u32 vcc, 56, v{vL}
""")
    for rr in range(2):
        for r in range(4):
            k(f"v_cndmask_b32 v{16+4*rr+r}, 0, v{16+4*rr+r}, vcc")
            unpack(36 + 2 * r, 37 + 2 * r, 16 + 4 * rr + r)
        ln_stats(36, 10, 11)
        for c in range(8): k(f"v_sub_f32 v{36+c}, v{36+c}, v10")
        for p in range(4): round2(36 + 2 * p, 37 + 2 * p, 8)
        for p in range(4):
            k(f"v_mul_f32 v{36+2*p}, v{36+2*p}, v11\nv_mul_f32 v{37+2*p}, v{37+2*p}, v11\nv_cvt_pk_bf16_f32 v{16+4*rr+p}, v{36+2*p}, v{37+2*p}")
    k(f"""
s_cmp_ge_u32 s{sID}, 14
s_cbranch_scc1 L_SGQ
s_cmp_lg_u32 s{sW}, 8
s_cbranch_scc1 L_SGAD
s_branch L_SGA
L_SGQ:
s_sleep 48
""")
    spoll(D_GA, "L_SGA")
    stamp(1)
    k(f"""
s_cmp_ge_u32 s{sID}, 14
s_cbranch_scc1 L_HN
s_barrier            ; c1
s_barrier            ; u1
s_barrier            ; u2
L_HN:
v_lshrrev_b32 v11, 2, v{vL}
v_lshlrev_b32 v11, 9, v11
v_and_b32 v12, 1, v{vL}
v_lshl_add_u32 v11, v12, 8, v11
v_bfe_u32 v12, v{vL}, 1, 1
v_lshl_add_u32 v11, v12, 3, v11
s_lshl_b32 s{sT1}, s{sT5}, 5
v_add_u32 v13, s{sT1}, v11
s_lshl_b32 s{sT0}, s{sT5}, 12
s_add_u32 s{sT0}, s{sT0}, {WS_MU}
s_mov_b32 exec_hi, 0x00ffffff
L_MU:
""")
    for rr in range(2):
        k(f"buffer_load_dwordx4 {V(24+8*rr)}, v{vL16}, {S(SRD_WS)}, s{sT0} offen offset:{rr*2048} sc1")
        k(f"buffer_load_dwordx4 {V(28+8*rr)}, v{vL16}, {S(SRD_WS)}, s{sT0} offen offset:{rr*2048+896} sc1")
    k("s_waitcnt vmcnt(0)")
    sent(range(24, 40), 8)
    retry("L_MU", "s_mov_b64 exec, vcc\ns_sleep 4")
    k("s_mov_b32 exec_lo, -1\ns_mov_b32 exec_hi, 0x00ffffff")
    stamp(4)
    for rr in range(2):
        for p in range(4):
            unpack(8, 9, 28 + 8 * rr + p)
            k("v_add_f32 v8, 1.0, v8\nv_add_f32 v9, 1.0, v9")
            round2(8, 9, 10)
            unpack(10, 11, 16 + 4 * rr + p)
            k("v_mul_f32 v8, v8, v10\nv_mul_f32 v9, v9, v11")
            round2(8, 9, 10)
            unpack(10, 11, 24 + 8 * rr + p)
            k(f"v_add_f32 v8, v8, v10\nv_add_f32 v9, v9, v11\nv_cvt_pk_bf16_f32 v{24+8*rr+p}, v8, v9")
        k(f"ds_write_b64 v13, {V(24+8*rr,2)} offset:{L_H+16*rr}\nds_write_b64 v13, {V(26+8*rr,2)} offset:{L_H+128+16*rr}")
    k("s_mov_b64 exec, -1")
    k(f"s_cmp_lg_u32 s{sW}, 8\ns_cbranch_scc1 L_SGBD")
    spoll(D_GB, "L_SGB")
    k(f"""
s_waitcnt lgkmcnt(0)
s_cmp_lt_u32 s{sID}, 14
s_cbranch_scc1 L_HM
s_barrier            ; c1
s_barrier            ; q1
L_HM:
s_barrier            ; c2
s_cmp_ge_u32 s{sID}, 28
s_cbranch_scc1 L_FIN
""")
    tile_addr(10, sT5, L_A)
    frag_tile(WF, 10)
    tile_mfma(L_H)
    k(f"""
s_barrier            ; c3
s_cmp_lg_u32 s{sW}, 8
s_cbranch_scc1 L_FIN
s_sub_u32 s{sT1}, s{sY1}, 256
s_cmp_lt_u32 s{sID}, 14
s_cselect_b32 s{sT1}, s{sT1}, s{sY0}
s_add_u32 s{sT1}, s{sT1}, {WS_Q}
""")
    stage_pub(13, sT1)
    k("s_barrier            ; c7")
    stamp(6)
    k("s_branch L_FIN")
    k("L_C8:")
    srd(SRD_A, P_C, 7168)
    k(f"s_lshl_b32 s{sT1}, s{sW}, 10\nbuffer_load_dwordx4 {V(CV)}, v{vL16}, {S(SRD_A)}, s{sT1} offen")
    srd(SRD_C, P_WQ, 448 * 8192); srd(SRD_A, P_WM, 448 * 5376)
    k(f"s_cmp_ge_u32 s{sID}, 14\ns_cbranch_scc1 L_R1Q")
    dma_tile(SRD_A, 5376, sY1, L_A)
    k("s_branch L_R1D\nL_R1Q:")
    k(f"""
v_lshrrev_b32 v8, 3, v{vL}
v_lshlrev_b32 v8, 13, v8
v_add_u32 v8, v8, v{vSW}
v_add_u32 v9, 128, v8
s_mul_i32 s{sT2}, s{sW}, {56*8192}
s_add_u32 s{sT2}, s{sT2}, s{sY0}
s_mul_i32 s{sT3}, s{sW}, 7168
s_add_u32 s{sT1}, s{sT3}, {L_B}
s_add_u32 s{sT3}, s{sT3}, {L_A}
""")
    for i in range(7):
        k(f"s_mov_b32 m0, s{sT3}\nbuffer_load_dwordx4 v8, {S(SRD_C)}, s{sT2} offen {NTW} lds")
        k(f"s_mov_b32 m0, s{sT1}\nbuffer_load_dwordx4 v9, {S(SRD_C)}, s{sT2} offen {NTW} lds")
        L = k.newlabel("LT3")
        k(f"s_cmp_ge_u32 s{sID}, 28\ns_cbranch_scc1 {L}")
        k(f"buffer_load_dwordx4 {V(AF+4*i)}, v8, {S(SRD_C)}, s{sT2} offen offset:256 {NTW}\n{L}:")
        if i < 6: k(f"s_add_u32 s{sT2}, s{sT2}, {8*8192}\ns_add_u32 s{sT3}, s{sT3}, 1024\ns_add_u32 s{sT1}, s{sT1}, 1024")
    k("L_R1D:")
    k("s_waitcnt vmcnt(7)")
    stamp(1)
    k(f"s_cmp_eq_u32 s{sW}, 7\ns_cbranch_scc1 L_NOSILU")
    k(f"s_mov_b32 s{sT3}, {f32(-LOG2E)}")
    for r in range(4):
        unpack(8, 9, CV + r)
        k(f"""
v_mul_f32 v10, s{sT3}, abs(v8)
v_mul_f32 v11, s{sT3}, abs(v9)
v_exp_f32 v10, v10
v_exp_f32 v11, v11
v_add_f32 v12, 1.0, v10
v_add_f32 v13, 1.0, v11
v_rcp_f32 v12, v12
v_rcp_f32 v13, v13
v_mul_f32 v10, v10, v12                    ; sigmoid(-|x|)
v_mul_f32 v11, v11, v13
v_max_f32 v12, 0, v8
v_max_f32 v13, 0, v9
v_fma_f32 v8, -abs(v8), v10, v12
v_fma_f32 v9, -abs(v9), v11, v13
v_cvt_pk_bf16_f32 v{CV+r}, v8, v9
""")
    k(f"""
s_lshl_b32 s{sT1}, s{sW}, 6
v_add_u32 v8, s{sT1}, v{vL}
v_mul_u32_u24 v9, 1171, v8
v_lshrrev_b32 v9, 16, v9                   ; m
v_mul_u32_u24 v10, 56, v9
v_sub_u32 v10, v8, v10                     ; cc
v_lshrrev_b32 v11, 2, v10
v_lshlrev_b32 v11, 9, v11
v_lshl_add_u32 v11, v9, 4, v11
v_and_b32 v12, 1, v10
v_lshl_add_u32 v11, v12, 8, v11
v_bfe_u32 v12, v10, 1, 1
v_lshl_add_u32 v11, v12, 3, v11
ds_write_b64 v11, {V(CV,2)} offset:{L_SC}
ds_write_b64 v11, {V(CV+2,2)} offset:{L_SC+128}
L_NOSILU:
""")
    k("s_waitcnt vmcnt(0) lgkmcnt(0)\ns_barrier            ; c1")
    stamp(2)
    def frag_ab():
        k(f"s_mov_b32 s{sT1}, {L_B}\ns_cmp_lt_u32 s{sW}, 4\ns_cselect_b32 s{sT1}, {L_A}, s{sT1}")
        tile_addr(10, sT5, f"s{sT1}")
        frag_tile(WF, 10)
    k(f"s_cmp_ge_u32 s{sID}, 14\ns_cbranch_scc1 L_CQ")
    k(f"s_cmp_ge_u32 s{sW}, 4\ns_cbranch_scc1 L_U1")
    frag_ab()
    tile_mfma(L_SC)
    k("L_U1:\ns_barrier            ; u1")
    k(f"s_cmp_lg_u32 s{sW}, 0\ns_cbranch_scc1 L_U2")
    k(f"s_add_u32 s{sT1}, s{sY1}, {WS_MU}")
    stage_pub(11, sT1)
    stamp(3)
    k("L_U2:\ns_barrier            ; u2")
    dma_tile(SRD_C, 8192, sY1, L_A)
    k("s_waitcnt vmcnt(0)\ns_barrier            ; c2\ns_barrier            ; c3\ns_branch L_CLZ")
    k("L_CQ:")
    frag_ab()
    k(f"s_barrier            ; q1\ns_mul_i32 s{sT2}, s{sW}, 7168\ns_add_u32 s{sT2}, s{sT2}, {L_A}\nv_add_u32 v8, s{sT2}, v{vL16}")
    for i in range(7): k(f"ds_write_b128 v8, {V(AF+4*i)} offset:{i*1024}")
    k("s_waitcnt lgkmcnt(0)\ns_barrier            ; c2")
    tile_mfma(L_H)
    k("s_barrier            ; c3")
    k(f"s_cmp_lg_u32 s{sT5}, 0\ns_cbranch_scc1 L_CQ2")
    k(f"s_add_u32 s{sT1}, s{sY0}, {WS_Q}")
    stage_pub(13, sT1)
    stamp(5)
    k(f"L_CQ2:\ns_cmp_ge_u32 s{sID}, 28\ns_cbranch_scc1 L_FIN")
    k("L_CLZ:\ns_barrier            ; c7")
    k(f"s_add_u32 s{sT1}, s{sY1}, {14*128}")
    if not o.get("x_nolazy"): dma_tile(SRD_A, 5376, sT1, L_B)
    k("s_waitcnt vmcnt(0)\ns_barrier            ; c8")
    k(f"s_cmp_lt_u32 s{sW}, 4\ns_cbranch_scc1 L_FIN")
    frag_ab()
    tile_mfma(L_SC)
    k("s_barrier            ; c9")
    k(f"s_cmp_lg_u32 s{sW}, 4\ns_cbranch_scc1 L_FIN")
    k(f"s_add_u32 s{sT1}, s{sY1}, {WS_M-128}")
    stage_pub(12, sT1)
    k("s_waitcnt vmcnt(0)")
    counter_go(D_CM, 27, D_GM, "L_CG1")
    stamp(7)
    k("s_branch L_FIN")

    FW, F2, F13 = 16, 80, 16
    k("L_TAILWG:")
    if o.get("x_notw"): k("s_endpgm")
    svc_setup()
    k(f"s_mov_b32 s{sMODE}, 0\ns_cmp_lt_u32 s{sW}, 8\ns_cbranch_scc1 L_T8")
    neg1()
    k(f"""
s_sub_u32 s{sT5}, s{sW}, 8
s_cmp_lg_u32 s{sW}, 10
s_cbranch_scc1 L_TC3
s_setprio 3
s_getreg_b32 s{sT1}, hwreg(HW_REG_XCC_ID, 0, 4)
s_mul_i32 s{sT2}, s{sT1}, s{sT1}
s_lshl_b32 s{sT2}, s{sT2}, 16
s_lshl_b32 s{sT1}, s{sT1}, 6
s_add_u32 s{sT2}, s{sT2}, s{sT1}
s_add_u32 s{sT2}, s{sT2}, 1                ; 1 | x<<6 | x^2<<16
v_mov_b32 v12, s{sT2}
s_mov_b64 exec, 1
buffer_atomic_add v12, v{vZ}, {S(SRD_B)}, 0 offen offset:{D_XC} sc0 sc1
s_waitcnt vmcnt(0)
v_readfirstlane_b32 s{sT1}, v12
s_add_u32 s{sT1}, s{sT1}, s{sT2}
s_and_b32 s{sT2}, s{sT1}, 63
s_cmp_lg_u32 s{sT2}, 32
s_cbranch_scc1 L_TC5
s_bfe_u32 s{sT2}, s{sT1}, 0xa0006
s_mul_i32 s{sT2}, s{sT2}, s{sT2}
s_lshr_b32 s{sT1}, s{sT1}, 16
s_lshl_b32 s{sT1}, s{sT1}, 5
s_cmp_eq_u32 s{sT1}, s{sT2}
s_cselect_b32 s{sT1}, {2 if o.get("slow") else 1}, 2
v_mov_b32 v12, s{sT1}
buffer_store_dword v12, v{vZ}, {S(SRD_B)}, 0 offen offset:{D_MODE} sc1
L_TC5:
s_mov_b64 exec, -1
s_setprio 0
L_TC3:
s_cmp_lg_u32 s{sID}, 31
s_cbranch_scc1 L_T9
""")
    code_prefetch("T", sT5)
    k(f"""
s_branch L_T9
L_T8:
""")
    srd(SRD_C, P_WO, 4096 * 896)
    k(f"""
v_lshrrev_b32 v8, 3, v{vL}
v_mul_u32_u24 v8, 896, v8
v_add_u32 v8, v8, v{vSW}
v_add_u32 v9, 128, v8
s_lshr_b32 s{sT1}, s{sID}, 2
s_lshl_b32 s{sT1}, s{sT1}, 9
s_lshl_b32 s{sT2}, s{sW}, 5
s_add_u32 s{sT1}, s{sT1}, s{sT2}
s_mul_i32 s{sT1}, s{sT1}, 896
s_and_b32 s{sT0}, s{sID}, 3
s_lshl_b32 s{sT2}, s{sT0}, 8
s_add_u32 s{sT2}, s{sT2}, s{sT1}
s_lshl_b32 s{sT3}, s{sW}, 12
s_add_u32 s{sT3}, s{sT3}, {L_A}
s_cmp_lg_u32 s{sT0}, 3
s_cbranch_scc1 L_WX
v_mov_b32 v9, v8
L_WX:
""")
    for i in range(8):
        k(f"s_mov_b32 m0, s{sT3}\nbuffer_load_dwordx4 v8, {S(SRD_C)}, s{sT2} offen {NTW} lds")
        k(f"s_add_u32 s{sT1}, s{sT3}, 32768\ns_mov_b32 m0, s{sT1}\nbuffer_load_dwordx4 v9, {S(SRD_C)}, s{sT2} offen {NTW} lds")
        if i == 3: k(f"s_add_u32 s{sT2}, s{sT2}, {(256-24)*896}\ns_sub_u32 s{sT3}, s{sT3}, {L_A-L_B+3*1024}")
        elif i < 7: k(f"s_add_u32 s{sT2}, s{sT2}, {8*896}\ns_add_u32 s{sT3}, s{sT3}, 1024")
    k("L_T9:")
    svc_setup2()
    isF = f"s_cmp_ge_u32 s{sID}, 28"
    def frag_wo(dst, buf):
        L = k.newlabel("LFW")
        k(f"s_cmp_ge_u32 s{sW}, 8\ns_cbranch_scc1 {L}")
        k(f"s_lshr_b32 s{sT2}, s{sW}, 2\ns_lshl_b32 s{sT2}, s{sT2}, 15\ns_add_u32 s{sT2}, s{sT2}, {buf}")
        tile_addr(10, sT5, f"s{sT2}")
        for T in range(8):
            k(f"ds_read_b64_tr_b16 {V(dst+4*T,2)}, v10 offset:{T*4096}\nds_read_b64_tr_b16 {V(dst+4*T+2,2)}, v10 offset:{T*4096+2048}")
            if T in (3, 7): k("s_waitcnt lgkmcnt(0)")
        k(f"{L}:")
    def if_loader(fn):
        L = k.newlabel("LL")
        k(f"s_cmp_ge_u32 s{sW}, 8\ns_cbranch_scc1 {L}\n{isF}\ns_cbranch_scc1 {L}")
        if o.get("x_noffn"): k(f"s_branch {L}")
        fn()
        k(f"{L}:")
    k("s_waitcnt vmcnt(8)\ns_barrier            ; t1")
    stamp(1)
    frag_wo(FW, L_A)
    k("s_barrier            ; t2")
    def ld_w2():
        srd(SRD_A, P_W2, 1792 * 896)
        k(f"s_lshl_b32 s{sT1}, s{sID}, 6")
        dma_rows(SRD_A, sT1, L_A)
        k("s_waitcnt vmcnt(8)\ns_branch L_T10")
    if_loader(ld_w2)
    k("s_waitcnt vmcnt(0)\nL_T10:\ns_barrier            ; t3")
    stamp(2)
    frag_wo(FW + 32, L_B)
    k("s_barrier            ; t4")
    def ld_w1():
        srd(SRD_A, P_W1, 448 * 3584)
        k(f"s_lshl_b32 s{sT1}, s{sID}, 7")
        dma_tile(SRD_A, 3584, sT1, L_B)
        k("s_waitcnt vmcnt(7)\ns_branch L_T14")
    if_loader(ld_w1)
    k(f"s_cmp_lt_u32 s{sW}, 8\ns_cbranch_scc1 L_T11\ns_cmp_eq_u32 s{sW}, 11\ns_cbranch_scc1 L_T11")
    poll_flag(D_MODE, "L_PM", sleep=4)
    k(f"v_readfirstlane_b32 s{sMODE}, v9\n{isF}\ns_cbranch_scc1 L_T11")
    neg1()
    k(f"""
s_cmp_eq_u32 s{sW}, 10
s_cbranch_scc1 L_T12
s_mul_i32 s{sT0}, s{sID}, 4352
s_add_u32 s{sT0}, s{sT0}, {WS_PA}
s_add_u32 s{sT1}, s{sT0}, 8192
s_cmp_eq_u32 s{sW}, 8
s_cbranch_scc1 L_T13
s_mul_i32 s{sT0}, s{sID}, 8448
s_add_u32 s{sT0}, s{sT0}, {WS_PB}
s_add_u32 s{sT1}, s{sT0}, 12288
L_T13:
""")
    lstore([f"buffer_store_dwordx4 v[8:11], v{vL16}, {S(SRD_WS)}, s{sT0} offen offset:{i*1024}" for i in range(4)])
    k(f"""
s_add_u32 s{sT0}, s{sT0}, 4096
s_cmp_lt_u32 s{sT0}, s{sT1}
s_cbranch_scc1 L_T13
s_branch L_T11
L_T12:
s_cmp_ge_u32 s{sID}, 8
s_cbranch_scc1 L_T11
s_lshl_b32 s{sT0}, s{sID}, 10
s_add_u32 s{sT0}, s{sT0}, {WS_X1}
""")
    lstore([f"buffer_store_dwordx4 v[8:11], v{vL16}, {S(SRD_WS)}, s{sT0} offen"])
    k("L_T11:")
    k("s_waitcnt vmcnt(0)\nL_T14:\ns_barrier            ; t5")
    stamp(3)
    k(f"s_cmp_lg_u32 s{sW}, 8\ns_cbranch_scc1 L_T15")
    counter_go(D_CB, 31, D_GO2, "L_CG2")
    k("L_T15:")
    k(f"{isF}\ns_cbranch_scc1 L_T16")
    frag_rows(F2, L_A)
    k("L_T16:\ns_barrier            ; t6")
    def ld_w3():
        srd(SRD_A, P_W3, 448 * 3584)
        k(f"s_lshl_b32 s{sT1}, s{sID}, 7")
        dma_tile(SRD_A, 3584, sT1, L_A)
    if_loader(ld_w3)
    k(f"s_cmp_lg_u32 s{sW}, 8\ns_cbranch_scc1 L_T17")
    poll_flag(D_GO2, "L_G1", sleep=8)
    poll_flag(D_GB, "L_G1B", sleep=8)
    k(f"v_mov_b32 v9, s{sMODE}\nds_write_b32 v{vZ}, v9 offset:{L_T}")
    k("L_T17:\ns_waitcnt vmcnt(0) lgkmcnt(0)\ns_barrier            ; t7")
    stamp(4)
    if o.get("x_notail"): k("s_branch L_FIN")
    k(f"ds_read_b32 v9, v{vZ} offset:{L_T}\ns_waitcnt lgkmcnt(0)\nv_readfirstlane_b32 s{sMODE}, v9")
    srd(SRD_A, P_X, 7168); srd(SRD_C, P_OUT, 7168)
    k(f"v_lshlrev_b32 v13, 1, v{vL}\ns_mov_b32 s{sY0}, 0\ns_mov_b32 s{sY1}, 0\ns_mov_b32 s{sT4}, 0")
    MC, MS = 160, 164
    vGA, vGB, vXX, vX1 = 152, 154, 156, 158
    vOAW, vST = 152, 153
    k(f"""
v_mov_b32 v{vST}, 0
v_mov_b32 v12, 0
s_cmp_ge_u32 s{sW}, 8
s_cbranch_scc1 L_T21
v_lshrrev_b32 v8, 5, v{vL}
v_lshlrev_b32 v12, 3, v8                   ; ML: h*8
v_lshlrev_b32 v8, 12, v8                   ; 8h*512
v_lshrrev_b32 v9, 2, v{vN}
v_lshl_add_u32 v8, v9, 9, v8               ; (n>>2)*512
v_and_b32 v9, 1, v{vN}
v_lshl_add_u32 v8, v9, 8, v8               ; 2(n&1)*128
v_and_b32 v9, 1, v{vG}
v_lshl_add_u32 v8, v9, 7, v8               ; (gq&1)*128
v_bfe_u32 v9, v{vN}, 1, 1
v_lshl_add_u32 v8, v9, 3, v8               ; half*8
s_lshl_b32 s{sT1}, s{sW}, 4
v_add_u32 v{vOAW}, s{sT1}, v8
v_lshrrev_b32 v8, 1, v{vG}
v_mul_u32_u24 v8, 2176, v8
v_and_b32 v9, 1, v{vG}
v_lshl_add_u32 v8, v9, 10, v8
v_lshl_add_u32 v{vST}, v{vN}, 4, v8
s_lshr_b32 s{sKVH}, s{sID}, 2
s_mul_i32 s{sT0}, s{sKVH}, 24576
s_mul_i32 s{sT1}, s{sW}, 3072
s_add_u32 s{sT0}, s{sT0}, s{sT1}
s_add_u32 s{sT0}, s{sT0}, {WS_O}
s_lshl_b32 s{sT1}, s{sKVH}, 9
s_lshl_b32 s{sT2}, s{sW}, 6
s_add_u32 s{sT1}, s{sT1}, s{sT2}
s_add_u32 s{sT1}, s{sT1}, {WS_ML}
s_mov_b32 s{sNT}, 7
s_and_b32 s{sY0}, s{sID}, 3
s_lshl_b32 s{sY0}, s{sY0}, 4
s_lshl_b32 s{sT2}, s{sW}, 1
s_add_u32 s{sY0}, s{sY0}, s{sT2}
s_mov_b32 s{sY1}, s{sY0}                   ; first task of this wave (>= 56: no wo block)
s_mul_i32 s{sY0}, s{sY0}, 2176
s_lshl_b32 s{sT2}, s{sKVH}, 7
s_add_u32 s{sY0}, s{sY0}, s{sT2}
s_add_u32 s{sY0}, s{sY0}, {WS_PA}
""")
    k("s_branch L_AL0\nL_T21:")
    def frag13():
        k(f"""
s_sub_u32 s{sT2}, s{sW}, 8
v_lshrrev_b32 v8, 1, v{vTR}
v_and_b32 v8, 3, v8
v_xor_b32 v8, s{sT2}, v8
v_lshlrev_b32 v8, 5, v8
v_lshl_add_u32 v8, v{vTR}, 7, v8
v_and_b32 v9, 1, v{vL}
v_lshl_add_u32 v8, v9, 3, v8
v_bfe_u32 v9, v{vL}, 1, 1
v_mul_u32_u24 v9, {L_A-L_B}, v9
v_add_u32 v8, v8, v9
v_add_u32 v10, {L_B}, v8
v_add_u32 v11, 16, v10
""")
        frag_tile(F13, 10); frag_tile(F13 + 56, 11)
    frag13()
    k(f"{isF}\ns_cbranch_scc1 L_T22\ns_cmp_eq_u32 s{sW}, 11\ns_cbranch_scc1 L_PAD0")
    k(f"""
s_mul_i32 s{sT0}, s{sID}, 8448
s_add_u32 s{sT0}, s{sT0}, {WS_PB}
s_mul_i32 s{sT1}, s{sID}, 4352
s_add_u32 s{sT1}, s{sT1}, {WS_PA}
s_cmp_eq_u32 s{sW}, 9
s_cselect_b32 s{sT0}, s{sT1}, s{sT0}
s_cmp_eq_u32 s{sW}, 10
s_cselect_b32 s{sT0}, {WS_X1}, s{sT0}
v_lshlrev_b32 v8, 7, v{vL}
buffer_load_dword v128, v8, {S(SRD_WS)}, s{sT0} offen sc1
""")
    if not o.get("x_nom"): poll_flag(D_GM, "L_PGMM", sleep=8)
    k(f"s_cmp_lg_u32 s{sW}, 10\ns_cbranch_scc1 L_T23")
    k(f"s_mov_b32 exec_hi, 0x00ffffff\ns_mov_b32 s{sT0}, {WS_M+896}\ns_mov_b32 s{sT1}, {WS_M+1792}")
    for bb in range(8):
        k(f"s_mov_b32 m0, {L_MS+bb*896}\nbuffer_load_dwordx4 v{vL16}, {S(SRD_WS)}, s{sT0} offen sc1 lds")
        k(f"s_mov_b32 m0, {L_MC+bb*896}\nbuffer_load_dwordx4 v{vL16}, {S(SRD_WS)}, s{sT1} offen sc1 lds")
        if bb < 7: k(f"s_add_u32 s{sT0}, s{sT0}, 4096\ns_add_u32 s{sT1}, s{sT1}, 4096")
    k("s_waitcnt vmcnt(0)")
    k("s_mov_b64 exec, -1\ns_branch L_T22")
    k(f"""
L_T23:
s_lshl_b32 s{sT4}, s{sID}, 1
s_add_u32 s{sT4}, s{sT4}, s{sW}
s_sub_u32 s{sT4}, s{sT4}, 8                ; task
s_lshl_b32 s{sY0}, s{sT4}, 4
s_add_u32 s{sT1}, s{sY0}, {WS_M}
s_add_u32 s{sY1}, s{sY0}, {WS_X1}
v_and_b32 v8, 7, v{vL}
v_lshlrev_b32 v9, 2, v{vG}
v_lshl_add_u32 v10, v8, 12, v9             ; M : b*4096 + pair*4
v_lshl_add_u32 v12, v8, 10, v9             ; X1: b*1024 + pair*4
v_mul_u32_u24 v13, 896, v8
v_add_u32 v13, v13, v9
buffer_load_dword v{vGA}, v10, {S(SRD_WS)}, s{sT1} offen sc1
buffer_load_dword v{vGB}, v10, {S(SRD_WS)}, s{sT1} offen offset:2688 sc1
buffer_load_dword v{vXX}, v13, {S(SRD_A)}, s{sY0} offen
""")
    k("s_waitcnt vmcnt(0)")
    for r in (vGA, vGB, vXX): k(f"v_and_b32 v{r+1}, 0xffff0000, v{r}\nv_lshlrev_b32 v{r}, 16, v{r}")
    k("L_T22:\ns_setprio 3\ns_branch L_TB1")
    OG = 112
    k(".p2align 12\nL_AL0:")
    stamp(8)
    k("L_AL:")
    for sp in range(3):
        L = k.newlabel("LA"); g0 = OG + 6 * sp
        k(f"s_bitcmp1_b32 s{sNT}, {sp}\ns_cbranch_scc0 {L}")
        k(f"buffer_load_dwordx2 {V(g0+4,2)}, v12, {S(SRD_WS)}, s{sT1} offen offset:{sp*16} sc1")
        k(f"buffer_load_dwordx4 {V(g0)}, v{vL16}, {S(SRD_WS)}, s{sT0} offen offset:{sp*1024} sc1")
        k(f"{L}:")
    k(f"s_waitcnt vmcnt(0)")
    for sp in range(3):
        L = k.newlabel("LA"); g0 = OG + 6 * sp
        k(f"s_bitcmp1_b32 s{sNT}, {sp}\ns_cbranch_scc0 {L}")
        sent(range(g0, g0 + 6), 8)
        k(f"s_cbranch_vccnz {L}\ns_bitset0_b32 s{sNT}, {sp}\n{L}:")
    k(f"s_cmp_eq_u32 s{sNT}, 0\ns_cbranch_scc1 L_ALD\ns_cmp_lg_u32 s{sNT}, 7\ns_cbranch_scc1 L_ALS\ns_sleep {o.get('asleep', 8)}\nL_ALS:")
    budget_loop("L_AL")
    k("L_ALD:\ns_setprio 3")
    stamp(9)
    def mm(sp): return OG + 6 * sp + 4
    AC = 132
    k(f"v_max3_f32 v8, v{mm(0)}, v{mm(1)}, v{mm(2)}")
    for sp in range(3): k(f"v_sub_f32 v{mm(sp)}, v{mm(sp)}, v8")
    for sp in range(3): k(f"v_mul_f32 v{mm(sp)}, s{sCC}, v{mm(sp)}")
    for sp in range(3): k(f"v_exp_f32 v{mm(sp)}, v{mm(sp)}")
    for r in range(4): unpack(AC + 2 * r, AC + 2 * r + 1, OG + r)
    for sp in range(3): k(f"v_mul_f32 v{mm(sp)}, v{mm(sp)}, v{mm(sp)+1}")
    k(f"v_add_f32 v8, v{mm(0)}, v{mm(1)}\nv_add_f32 v8, v8, v{mm(2)}\nv_rcp_f32 v8, v8")
    for r in range(4): unpack(AC + 8 + 2 * r, AC + 9 + 2 * r, OG + 6 + r)
    for sp in range(3): k(f"v_mul_f32 v{mm(sp)}, v{mm(sp)}, v8")
    for r in range(8): k(f"v_mul_f32 v{AC+r}, v{AC+r}, v{mm(0)}")
    for r in range(8): k(f"v_fmac_f32 v{AC+r}, v{AC+8+r}, v{mm(1)}")
    for r in range(4): unpack(AC + 8 + 2 * r, AC + 9 + 2 * r, OG + 12 + r)
    for r in range(8): k(f"v_fmac_f32 v{AC+r}, v{AC+8+r}, v{mm(2)}")
    for p in range(4): k(f"v_cvt_pk_bf16_f32 v{OG+12+p}, v{AC+2*p}, v{AC+2*p+1}")
    k(f"""
ds_write_b64 v{vOAW}, {V(OG+12,2)} offset:{L_OA}
ds_write_b64 v{vOAW}, {V(OG+14,2)} offset:{L_OA+2048}
s_waitcnt lgkmcnt(0)
""")
    k("L_TB1:\ns_barrier            ; T1")
    k(f"s_cmp_ge_u32 s{sW}, 8\ns_cbranch_scc1 L_WOD\ns_cmp_ge_u32 s{sY1}, 56\ns_cbranch_scc1 L_WOD")
    ACT = [112 + 4 * i for i in range(8)]
    for T in range(8): k(f"ds_read_b128 {V(ACT[T])}, v{vBA} offset:{L_OA+T*512}")
    for T in range(16):
        k(f"s_waitcnt lgkmcnt({min(7, 15-T)})")
        k(f"{MF} v[144:147], {V(FW+4*T)}, {V(ACT[T%8])}, {'0' if T == 0 else 'v[144:147]'}")
        if T < 8: k(f"ds_read_b128 {V(ACT[T])}, v{vBA} offset:{L_OA+(T+8)*512}")
    for r in range(4): k(f"v_min_u32 v{144+r}, -2, v{144+r}")
    k(f"s_andn2_b64 exec, exec, s[{sMN}:{sMN+1}]")
    lstore([f"buffer_store_dwordx4 v[144:147], v{vST}, {S(SRD_WS)}, s{sY0} offen"])
    k("s_mov_b64 exec, -1\nL_WOD:")
    stamp(10)
    k(f"{isF}\ns_cbranch_scc1 L_FIN")
    k(f"s_cmp_lt_u32 s{sW}, 8\ns_cbranch_scc1 L_B2S\ns_cmp_ge_u32 s{sW}, 10\ns_cbranch_scc1 L_TB3")
    k(f"""
L_B1S:
s_mul_i32 s{sT0}, s{sT4}, 2176
s_add_u32 s{sT0}, s{sT0}, {WS_PA}
s_setprio 0
L_B1:
buffer_load_dwordx4 v[136:139], v{vL16}, {S(SRD_WS)}, s{sT0} offen sc1
buffer_load_dwordx4 v[140:143], v{vL16}, {S(SRD_WS)}, s{sT0} offen offset:1024 sc1
s_waitcnt vmcnt(0)
""")
    sent(range(136, 144), 8)
    retry("L_B1", "s_mov_b64 exec, vcc" + (f"\ns_sleep {o['r1']}" if o.get("r1") else ""))
    k("s_setprio 3\ns_mov_b64 exec, -1")
    stamp(11)
    def fold8(a):
        for r in range(4): k(f"v_permlane32_swap_b32 v{a+r}, v{a+4+r}")
        k(f"v_pk_add_f32 {V(a,2)}, {V(a,2)}, {V(a+4,2)}\nv_pk_add_f32 {V(a+2,2)}, {V(a+2,2)}, {V(a+6,2)}")
        k(f"v_permlane16_swap_b32 v{a}, v{a+2}\nv_permlane16_swap_b32 v{a+1}, v{a+3}\nv_pk_add_f32 {V(a,2)}, {V(a,2)}, {V(a+2,2)}")
        k(f"v_add_f32_dpp v{a}, v{a}, v{a} row_ror:8 row_mask:0xf bank_mask:0xf\nv_add_f32_dpp v{a+1}, v{a+1}, v{a+1} row_ror:8 row_mask:0xf bank_mask:0xf")
    fold8(136)
    round2(136, 137, 8)
    k(f"v_pk_mul_f32 v[136:137], v[136:137], {V(vGA,2)}")
    round2(136, 137, 8)
    k(f"""
v_pk_add_f32 v[136:137], v[136:137], {V(vXX,2)}
v_cvt_pk_bf16_f32 v138, v136, v137
v_min_u32 v138, -2, v138
s_andn2_b64 exec, exec, s[{sMN}:{sMN+1}]
""")
    lstore([f"buffer_store_dword v138, v12, {S(SRD_WS)}, s{sY1} offen"])
    k("s_mov_b64 exec, -1")
    stamp(12)
    unpack(vX1, vX1 + 1, 138)
    k("s_branch L_TB3")
    Y = 128
    k("L_PAD0:\ns_branch L_PAD1\nL_B2S:")
    chunk_dst(144)
    k(f"""
s_lshl_b32 s{sT0}, s{sW}, 10
s_add_u32 s{sT0}, s{sT0}, {WS_X1}
v_mov_b32 v136, 0
v_mov_b32 v137, 0
v_mov_b32 v138, 0
v_mov_b32 v139, 0
v_mov_b32 v145, 0x3f803f80
v_mov_b32 v146, {f32(1.0/448)}
s_mul_i32 s{sT3}, s{sW}, 896
s_add_u32 s{sT3}, s{sT3}, {L_MC}
v_add_u32 v8, s{sT3}, v{vL16}
v_add_u32 v9, {L_MS-L_MC}, v8
ds_read_b128 {V(MC)}, v8
ds_read_b128 {V(MS)}, v9
s_waitcnt lgkmcnt(0)
""")
    CU_, SU_ = 16, 24
    for r in range(4):
        unpack(CU_ + 2 * r, CU_ + 2 * r + 1, MC + r)
        k(f"v_add_f32 v{CU_+2*r}, 1.0, v{CU_+2*r}\nv_add_f32 v{CU_+2*r+1}, 1.0, v{CU_+2*r+1}")
        round2(CU_ + 2 * r, CU_ + 2 * r + 1, 8)
        unpack(SU_ + 2 * r, SU_ + 2 * r + 1, MS + r)
    k(f"""
s_mov_b32 exec_hi, 0x00ffffff
s_setprio 0
L_B2:
buffer_load_dwordx4 v[136:139], v{vL16}, {S(SRD_WS)}, s{sT0} offen sc1
s_waitcnt vmcnt(0)
v_max3_u32 v8, v136, v137, v138
v_max_u32 v8, v8, v139
v_cmp_eq_u32 vcc, -1, v8
""")
    retry("L_B2", "s_mov_b64 exec, vcc" + (f"\ns_sleep {o['r2']}" if o.get("r2") else ""))
    k("s_setprio 3\ns_mov_b64 exec, -1")
    stamp(13)
    k("v_dot2_f32_bf16 v8, v136, v145, 0\nv_dot2_f32_bf16 v9, v136, v136, 0")
    for r in range(1, 4): k(f"v_dot2_f32_bf16 v8, v{136+r}, v145, v8\nv_dot2_f32_bf16 v9, v{136+r}, v{136+r}, v9")
    unpack(Y, Y + 1, 136); unpack(Y + 2, Y + 3, 137)
    steps = [f"row_shr:{sh} row_mask:0xf bank_mask:0xf bound_ctrl:0" for sh in (1, 2, 4, 8)] + ["row_bcast:15 row_mask:0xa bank_mask:0xf", "row_bcast:31 row_mask:0xc bank_mask:0xf"]
    fill = [f"v_lshlrev_b32 v{Y+4}, 16, v138", f"v_and_b32 v{Y+5}, 0xffff0000, v138", f"v_lshlrev_b32 v{Y+6}, 16, v139", f"v_and_b32 v{Y+7}, 0xffff0000, v139"]
    for i, m in enumerate(steps):
        k(f"v_add_f32_dpp v8, v8, v8 {m}\nv_add_f32_dpp v9, v9, v9 {m}")
        if i < 4: k(fill[i])
    k(f"""
v_readlane_b32 s{sT1}, v8, 63
v_readlane_b32 s{sT2}, v9, 63
v_mul_f32 v10, s{sT1}, v146
v_mul_f32 v11, s{sT2}, v146
v_fma_f32 v11, -v10, v10, v11
v_max_f32 v11, 0, v11
""")
    round2(10, 11, 8)
    k(f"v_add_f32 v11, {f32(1e-5)}, v11")
    R = o.get("lnround", 0)
    seq = ["v_cvt_pk_bf16_f32 v11, v11, v11", "v_lshlrev_b32 v11, 16, v11", "v_sqrt_f32 v11, v11", "", "v_cvt_pk_bf16_f32 v11, v11, v11", "v_lshlrev_b32 v11, 16, v11", "v_rcp_f32 v11, v11", ""]
    for c in range(8):
        k(f"v_sub_f32 v{Y+c}, v{Y+c}, v10")
        if seq[c]: k(seq[c])
    if R:
        for p in range(4): round2(Y + 2 * p, Y + 2 * p + 1, 8)
    for c in range(8): k(f"v_mul_f32 v{Y+c}, v{Y+c}, v11")
    if R:
        for p in range(4): round2(Y + 2 * p, Y + 2 * p + 1, 8)
        for c in range(8): k(f"v_mul_f32 v{Y+c}, v{Y+c}, v{CU_+c}")
        for p in range(4): round2(Y + 2 * p, Y + 2 * p + 1, 8)
        for c in range(8): k(f"v_add_f32 v{Y+c}, v{Y+c}, v{SU_+c}")
    else:
        for c in range(8): k(f"v_fma_f32 v{Y+c}, v{Y+c}, v{CU_+c}, v{SU_+c}")
    for p in range(4): k(f"v_cvt_pk_bf16_f32 v{136+p}, v{Y+2*p}, v{Y+2*p+1}")
    k(f"""
s_mov_b32 exec_hi, 0x00ffffff
ds_write_b64 v144, v[136:137] offset:{L_SC}
ds_write_b64 v144, v[138:139] offset:{L_SC+128}
s_mov_b64 exec, -1
s_waitcnt lgkmcnt(0)
L_TB3:
s_barrier            ; T3
s_cmp_ge_u32 s{sW}, 8
s_cbranch_scc1 L_W13
s_cmp_eq_u32 s{sW}, 7
s_cbranch_scc1 L_FIN
v_and_b32 v9, 7, v{vN}
v_mul_u32_u24 v8, 136, v9
v_lshl_add_u32 v8, v{vG}, 3, v8
v_add_u32 v8, {L_G}, v8
v_lshrrev_b32 v10, 3, v{vN}
v_lshl_add_u32 v10, v10, 2, v{vG}
v_mul_u32_u24 v10, 4224, v10
v_lshl_add_u32 v9, v9, 4, v10
s_mul_i32 s{sT0}, s{sW}, {8*4224}
s_lshl_b32 s{sT1}, s{sID}, 7
s_add_u32 s{sT0}, s{sT0}, s{sT1}
s_add_u32 s{sT0}, s{sT0}, {WS_PB}
s_barrier            ; T4
ds_read2_b64 v[112:115], v8 offset0:0 offset1:4
ds_read2_b64 v[116:119], v8 offset0:8 offset1:12
""")
    for T in range(2):
        k(f"s_waitcnt lgkmcnt({1-T})")
        for q in range(4):
            k(f"{MF} {V(128+4*q)}, {V(F2+(T*4+q)*4)}, {V(112+4*T)}, {'0' if T == 0 else V(128+4*q)}")
    for q in range(4):
        k(f"v_cvt_pk_bf16_f32 v{144+2*q}, v{128+4*q}, v{129+4*q}\nv_cvt_pk_bf16_f32 v{145+2*q}, v{130+4*q}, v{131+4*q}")
    for r in range(4):
        k(f"v_cndmask_b32 v{144+r}, v{144+r}, v{148+r}, s[{sMN}:{sMN+1}]\nv_min_u32 v{144+r}, -2, v{144+r}")
    lstore([f"buffer_store_dwordx4 v[144:147], v9, {S(SRD_WS)}, s{sT0} offen"])
    stamp(14)
    k("s_branch L_FIN")
    k("L_PAD1:\ns_branch L_PAD2\nL_W13:")
    stamp(7)
    HA = [128 + 4 * i for i in range(6)]
    A0, A1 = 160, 164
    for t in range(6): k(f"ds_read_b128 {V(HA[t])}, v{vBA} offset:{L_SC+t*512}")
    k(f"""
s_mov_b32 s{sT3}, {f32(-LOG2E)}
v_and_b32 v8, 7, v{vN}
v_mul_u32_u24 v8, 136, v8
v_and_b32 v9, 1, v{vG}
v_lshl_add_u32 v8, v9, 3, v8
v_lshrrev_b32 v9, 5, v{vL}
v_lshl_add_u32 v8, v9, 2, v8
v_lshrrev_b32 v9, 3, v{vN}
v_lshl_add_u32 v8, v9, 4, v8
s_sub_u32 s{sT1}, s{sW}, 8
s_lshl_b32 s{sT1}, s{sT1}, 5
v_add_u32 v8, s{sT1}, v8
""")
    for t in range(14):
        k(f"s_waitcnt lgkmcnt({min(5, 13-t)})")
        k(f"{MF} {V(A0)}, {V(F13+4*t)}, {V(HA[t%6])}, {'0' if t == 0 else V(A0)}")
        k(f"{MF} {V(A1)}, {V(F13+56+4*t)}, {V(HA[t%6])}, {'0' if t == 0 else V(A1)}")
        if t + 6 < 14: k(f"ds_read_b128 {V(HA[t%6])}, v{vBA} offset:{L_SC+(t+6)*512}")
    for r in range(4): k(f"v_cndmask_b32 v{A0+r}, v{A0+r}, v{A1+r}, s[{sMN}:{sMN+1}]")
    k(f"""
v_permlane32_swap_b32 v{A0}, v{A0+2}
v_permlane32_swap_b32 v{A0+1}, v{A0+3}
""")
    round2(A0, A0 + 1, 12)
    k(f"""
v_mul_f32 v10, s{sT3}, v{A0}
v_mul_f32 v11, s{sT3}, v{A0+1}
v_exp_f32 v10, v10
v_exp_f32 v11, v11
""")
    round2(A0 + 2, A0 + 3, 12)
    k(f"""
v_add_f32 v10, 1.0, v10
v_add_f32 v11, 1.0, v11
v_rcp_f32 v10, v10
v_rcp_f32 v11, v11
v_mul_f32 v{A0}, v{A0}, v10
v_mul_f32 v{A0+1}, v{A0+1}, v11
""")
    round2(A0, A0 + 1, 12)
    k(f"""
v_mul_f32 v{A0}, v{A0}, v{A0+2}
v_mul_f32 v{A0+1}, v{A0+1}, v{A0+3}
v_cvt_pk_bf16_f32 v10, v{A0}, v{A0+1}
ds_write_b32 v8, v10 offset:{L_G}
s_waitcnt lgkmcnt(0)
s_barrier            ; T4
""")
    stamp(14)
    k(f"s_cmp_ge_u32 s{sW}, 10\ns_cbranch_scc1 L_FIN")
    k(f"""
s_mul_i32 s{sT0}, s{sT4}, 4224
s_add_u32 s{sT0}, s{sT0}, {WS_PB}
v_mov_b32 v28, 0
v_mov_b32 v29, 0
v_mov_b32 v30, 0
v_mov_b32 v31, 0
s_setprio 0
L_FB:
s_mov_b64 s[{sX0}:{sX0+1}], exec
""")
    for i in range(3): k(f"buffer_load_dwordx4 {V(16+4*i)}, v{vL16}, {S(SRD_WS)}, s{sT0} offen offset:{i*1024} sc1")
    k(f"""
s_mov_b32 exec_hi, 0
s_cbranch_execz L_FB2
buffer_load_dwordx4 v[28:31], v{vL16}, {S(SRD_WS)}, s{sT0} offen offset:3072 sc1
L_FB2:
s_mov_b64 exec, s[{sX0}:{sX0+1}]
s_waitcnt vmcnt(0)
""")
    sent(range(16, 32), 8)
    retry("L_FB", "s_mov_b64 exec, vcc" + (f"\ns_sleep {o['r3']}" if o.get("r3") else ""))
    k("s_mov_b64 exec, -1\ns_setprio 3")
    stamp(13)
    k("v_mov_b32 v8, 0x3f80\nv_mov_b32 v9, 0x3f800000")
    for i in range(4):
        for r in range(4):
            for h in range(2):
                d = 32 + 2 * r + h
                k(f"v_dot2_f32_bf16 v{d}, v{16+4*i+r}, v{8+h}, {'0' if i == 0 else 'v%d' % d}")
    k("s_nop 2")
    fold8(32)
    round2(32, 33, 8)
    k(f"v_pk_mul_f32 v[32:33], v[32:33], {V(vGB,2)}")
    round2(32, 33, 8)
    k(f"""
v_pk_add_f32 v[32:33], v[32:33], {V(vX1,2)}
v_cvt_pk_bf16_f32 v16, v32, v33
s_andn2_b64 exec, exec, s[{sMN}:{sMN+1}]
buffer_store_dword v16, v13, {S(SRD_C)}, s{sY0} offen
s_mov_b64 exec, -1
""")
    stamp(15)
    if o.get("probe"):
        k(f"s_cmp_lg_u32 s2, 0\ns_cbranch_scc1 L_FIN\ns_cmp_lg_u32 s{sW}, 8\ns_cbranch_scc1 L_FIN\nv_mov_b32 v8, 0")
        for j, i in enumerate([1, 2, 3, 4, 10, 12, 14, 15]):
            k(f"s_sub_u32 s{sT0}, s{sSTAMP+2*i}, s{sSTAMP}\nv_writelane_b32 v8, s{sT0}, {j}")
        k(f"v_lshlrev_b32 v7, 2, v0\ns_mov_b64 exec, 0xff\nbuffer_store_dword v8, v7, {S(SRD_B)}, 0 offen offset:16 sc1")
    if debug:
        k("s_branch L_FIN\nL_PAD2:\ns_branch L_T22")
        for blk in ool[::-1]: k(blk)
    k("L_FIN:")
    if debug:
        k("s_mov_b64 exec, -1\nv_mov_b32 v8, 0")
        for i in range(16): k(f"v_writelane_b32 v8, s{sSTAMP+2*i}, {i}")
        k(f"v_writelane_b32 v8, s{sBUD}, 16")
        k(f"""
s_mul_i32 s{sT0}, s2, 12
s_add_u32 s{sT0}, s{sT0}, s{sW}
s_lshl_b32 s{sT0}, s{sT0}, 7
s_add_u32 s{sT0}, s{sT0}, {WS_DBG}
v_lshlrev_b32 v7, 2, v0
s_mov_b32 exec_hi, 0
buffer_store_dword v8, v7, {S(SRD_WS)}, s{sT0} offen
""")
    k("L_END:\ns_endpgm")
    if not debug:
        k("L_PAD2:\ns_branch L_T22")
        for blk in ool: k(blk)
    k("L_CODE_END:")
    kt = kernel_text(KNAME + "_kernel", k.text(), NVGPR)
    desc = """; Single fused launch, 256 co-resident workgroups (one per CU), generated by the author's own script.
;  wg%8==0      : 32 tail WGs  - hold wo / w1 / w3 / w2 fragments, run o->wo->LN->SwiGLU->out
;  first 32 rest: chain WGs    - mod = silu(c)@w_mod, h, q = h@wq
; write-through stores are used across workgroups unless a run-time census shows all tail WGs on one XCD."""
    return file_text([f"; @launch grid=(256,1,1) block=(768,1,1) lds={LDS_BYTES}", desc], [kt])

if __name__ == "__main__":
    open("h_dbg.s", "w").write(gen(debug=True))
    open("h_rel.s", "w").write(gen(debug=False))
    for a in sys.argv[1:]:
        name, *kv = a.split(",")
        op = {x.split("=")[0]: (int(x.split("=")[1]) if x.split("=")[1].lstrip("-").isdigit() else x.split("=")[1]) for x in kv}
        open(name, "w").write(gen(debug="dbg" in name, opts=op))
```
